```python
import torch

def _softmax(x, axis=-1):
    return torch.softmax(x, dim=axis)
def _gelu(x):
    return torch.nn.functional.gelu(x, approximate="tanh")
def _silu(x):
    return torch.nn.functional.silu(x)
def _sigmoid(x):
    return torch.sigmoid(x)
def _layernorm(x, axis=-1, eps=1e-5):
    m = x.mean(dim=axis, keepdim=True)
    v = x.var(dim=axis, keepdim=True, unbiased=False)
    return (x - m) / torch.sqrt(v + eps)
def _scatter_add(tgt, idx, src, axis=0):
    return tgt.clone().index_add_(axis, idx, src)
def _segment_sum(src, seg, n):
    out = torch.zeros((n,) + src.shape[1:], dtype=src.dtype)
    return out.index_add_(0, seg, src)
def _pad(x, pw):
    flat = tuple(v for pair in reversed(pw) for v in pair)
    return torch.nn.functional.pad(x, flat)

kernel_name = 'standalone__edge_featured_mpnn_gatedgcn__graph'

def setup_inputs():

    _w = (lambda a: (lambda t: t.to(torch.bfloat16) if t.is_floating_point() else t)(torch.as_tensor(a)))
    N, deg, D, De = 10000, 64, 64, max(0, 1)
    E = N * deg
    return {
        "x": _w((lambda *s: torch.randn(*s, dtype=torch.bfloat16) * 0.8)(N, D)),
        "e_attr": _w((lambda *s: torch.randn(*s, dtype=torch.bfloat16) * 1.6)(E, De)),
        "src": _w((lambda lo, hi, *s: torch.randint(lo, hi, s))(0, N, E).to(torch.int64)),
        "dst": _w((lambda lo, hi, *s: torch.randint(lo, hi, s))(0, N, E).to(torch.int64)),
        "w_a": _w((lambda *s: torch.randn(*s, dtype=torch.bfloat16) * 0.8)(D, D)),
        "w_b": _w((lambda *s: torch.randn(*s, dtype=torch.bfloat16) * 0.8)(D, D)),
        "w_c": _w((lambda *s: torch.randn(*s, dtype=torch.bfloat16) * 1.6)(De, D)),
        "w_u": _w((lambda *s: torch.randn(*s, dtype=torch.bfloat16) * 0.05)(D, D)),
        "w_v": _w((lambda *s: torch.randn(*s, dtype=torch.bfloat16) * 0.05)(D, D)),
    }

def reference(x, e_attr, src, dst, w_a, w_b, w_c, w_u, w_v):
    N, D = x.shape
    hv = x @ w_v
    g = x[dst] @ w_a + x[src] @ w_b + e_attr @ w_c
    eta = _sigmoid(g)
    denom = _segment_sum(eta, dst, N) + 1e-6
    eta_n = eta / denom[dst]
    agg = _segment_sum(eta_n * hv[src], dst, N)
    z = x @ w_u + agg
    relu_z = torch.where(z > 0, z, 0 * z)
    return x + relu_z
```

```python
import sys
FL = set(sys.argv[1].split(',')) if len(sys.argv) > 1 else set()
STAMP = "stamp" in FL

L = []
def o(s=""): L.append(s)

class Regs:
    def __init__(self, pfx, start, limit):
        self.pfx, self.n, self.limit, self.m = pfx, start, limit, {}
    def alloc(self, name, cnt=1, align=1):
        self.n = (self.n + align - 1)//align*align
        r = self.n; self.n += cnt
        assert self.n <= self.limit, (name, self.n)
        self.m[name] = r
        return r
    def at(self, name, idx): self.m[name] = idx; return idx

def vr(a, n=1): return f"v{a}" if n == 1 else f"v[{a}:{a+n-1}]"
def sr(a, n=1): return f"s{a}" if n == 1 else f"s[{a}:{a+n-1}]"

N, D, E = 10000, 64, 640000
NB = 256
CH = E // NB
BMUL = 26843
WS_T = 0
T_BYTES = (N+1)*256
WS_O = 0x280000
WS_C = 0x2C0000
C_BYTES = NB*CH*8
WS_STAMP = 0x800000
NGEMM = 125
K1_GRID = NB + NGEMM
NLOG2E = 0xBFB8AA3B
WROW = 144

def srd(dst, base, nrec, w3=0x20000, stride=0, off=0):
    if off:
        o(f"    s_add_u32 s{dst}, s{base}, {off:#x}")
        o(f"    s_addc_u32 s{dst+1}, s{base+1}, 0")
        o(f"    s_and_b32 s{dst+1}, s{dst+1}, 0xffff")
    else:
        o(f"    s_mov_b32 s{dst}, s{base}")
        o(f"    s_and_b32 s{dst+1}, s{base+1}, 0xffff")
    if stride: o(f"    s_or_b32 s{dst+1}, s{dst+1}, {stride<<16:#x}")
    o(f"    s_mov_b32 s{dst+2}, {nrec:#x}")
    o(f"    s_mov_b32 s{dst+3}, {w3:#x}")

def wave_scan(v):
    for ctl in ("row_shr:1 row_mask:0xf bank_mask:0xf bound_ctrl:1", "row_shr:2 row_mask:0xf bank_mask:0xf bound_ctrl:1",
                "row_shr:4 row_mask:0xf bank_mask:0xf bound_ctrl:1", "row_shr:8 row_mask:0xf bank_mask:0xf bound_ctrl:1",
                "row_bcast:15 row_mask:0xa bank_mask:0xf", "row_bcast:31 row_mask:0xc bank_mask:0xf"):
        o("    s_nop 1")
        o(f"    v_add_u32_dpp v{v}, v{v}, v{v} {ctl}")

def stamp(idx, sreg_pair, srdws, vtmp, wavereg, nwaves, kern):
    if not STAMP: return
    o(f"    s_memrealtime s[{sreg_pair}:{sreg_pair+1}]")
    o(f"    s_waitcnt lgkmcnt(0)")
    o(f"    v_mov_b32 v{vtmp}, s{sreg_pair}")
    o(f"    s_lshl_b32 s{sreg_pair}, s2, 4")
    o(f"    s_add_u32 s{sreg_pair}, s{sreg_pair}, s{wavereg}")
    o(f"    s_lshl_b32 s{sreg_pair}, s{sreg_pair}, 6")
    o(f"    s_add_u32 s{sreg_pair}, s{sreg_pair}, {kern*0x100000 + idx*4}")
    o(f"    v_mov_b32 v{vtmp+1}, 0")
    o(f"    s_mov_b64 s[{sreg_pair+2}:{sreg_pair+3}], exec")
    o(f"    s_mov_b64 exec, 1")
    o(f"    buffer_store_dword v{vtmp}, v{vtmp+1}, s[{srdws}:{srdws+3}], s{sreg_pair} offen")
    o(f"    s_mov_b64 exec, s[{sreg_pair+2}:{sreg_pair+3}]")

K2_LDS_CNT = 0
K2_LDS_MSK = 256
K2_LDS_FLG = 512
K2_LDS_O   = 768
K2_LDS_E   = K2_LDS_O + 12800
K2_LDS_A   = K2_LDS_E + 12800
K2_LDS_SL  = K2_LDS_A + 48*272
K2_LDS_U   = K2_LDS_SL + 56*512
K2_LDS     = K2_LDS_U + 48*272
CAPQ = 768

K1_LDS_CNT = 0
K1_LDS_BASE = 1024
K1_LDS_SORT = 2048
K1_LDS = 2048 + 20000 + 32

o(f"; @launch kernel=gcn_k1_kernel grid=({K1_GRID},1,1) block=(640,1,1) lds={K1_LDS}")
o(f"; @launch kernel=gcn_k2_kernel grid=({NB},1,1) block=(1024,1,1) lds={K2_LDS}")
o('.amdgcn_target "amdgcn-amd-amdhsa--gfx950"')
o(".text")

o(".globl gcn_k1_kernel\n.p2align 8\n.type gcn_k1_kernel,@function\ngcn_k1_kernel:")
o(f"""    s_cmp_ge_u32 s2, {K1_GRID}
    s_cbranch_scc1 K1_done
    s_cmp_ge_u32 s2, {NB}
    s_cbranch_scc1 K1_gemm
    s_load_dwordx2 s[4:5], s[0:1], 8          ; e_attr
    s_load_dwordx4 s[8:11], s[0:1], 16
    s_load_dwordx2 s[6:7], s[0:1], 88         ; ws
    v_lshrrev_b32 v1, 6, v0
    v_lshlrev_b32 v2, 2, v0                   ; t*4
    v_readfirstlane_b32 s3, v1
    v_mov_b32 v3, 0
    v_mov_b32 v4, 1
    s_cmp_ge_u32 s3, 4
    s_cbranch_scc1 K1_nozero
    ds_write_b32 v2, v3 offset:{K1_LDS_CNT}
K1_nozero:
    v_lshlrev_b32 v5, 4, v0                   ; t*16
    v_lshlrev_b32 v6, 3, v0                   ; t*8
    s_mul_i32 s32, s2, {CH*4}
    s_mul_i32 s33, s2, {CH*2}
    s_mul_i32 s34, s2, {CH*8}
    s_lshl_b32 s35, s2, 10
    v_cmp_gt_u32 vcc, {CH//4}, v0             ; t < 625
    s_mov_b64 s[36:37], vcc
    s_waitcnt lgkmcnt(0)""")
srd(12, 10, E*4)
srd(16, 8, E*4)
srd(20, 4, E*2)
srd(24, 6, NB*1024, off=WS_O)
srd(28, 6, C_BYTES, off=WS_C)
if STAMP: srd(40, 6, 0x200000, off=WS_STAMP)
stamp(0, 44, 40, 50, 3, 10, 0)
o(f"""    s_mov_b64 exec, s[36:37]
    buffer_load_dwordx4 v[8:11], v5, s[12:15], s32 offen      ; dst
    buffer_load_dwordx4 v[12:15], v5, s[16:19], s32 offen     ; src
    buffer_load_dwordx2 v[16:17], v6, s[20:23], s33 offen     ; e
    s_mov_b64 exec, -1
    s_waitcnt lgkmcnt(0)
    s_barrier
    s_mov_b64 exec, s[36:37]
    s_waitcnt vmcnt(2)""")
for i in range(4):
    o(f"    v_mul_u32_u24 v{20+i}, {BMUL}, v{8+i}")
for i in range(4):
    o(f"    v_lshrrev_b32 v{20+i}, 18, v{20+i}")
for i in range(4):
    o(f"    v_and_b32 v{20+i}, 0x3fc, v{20+i}")
for i in range(4):
    o(f"    ds_add_rtn_u32 v{24+i}, v{20+i}, v4 offset:{K1_LDS_CNT}")
for i in range(4):
    o(f"    v_and_b32 v{8+i}, 63, v{8+i}")
o("    s_waitcnt vmcnt(0)")
stamp(1, 44, 40, 50, 3, 10, 0)
for i in range(4):
    o(f"    v_lshl_or_b32 v{30+2*i}, v{12+i}, 8, v{8+i}")
o("""    v_lshlrev_b32 v31, 16, v16
    v_and_b32 v33, 0xffff0000, v16
    v_lshlrev_b32 v35, 16, v17
    v_and_b32 v37, 0xffff0000, v17
    s_mov_b64 exec, -1
    s_waitcnt lgkmcnt(0)
    s_barrier
    s_cmp_lg_u32 s3, 0
    s_cbranch_scc1 K1_noscan""")
o(f"""    ds_read_b128 v[40:43], v5 offset:{K1_LDS_CNT}
    s_waitcnt lgkmcnt(0)
    v_add_u32 v44, v40, v41
    v_add_u32 v45, v44, v42
    v_add_u32 v46, v45, v43
    v_mov_b32 v47, v46""")
wave_scan(47)
o(f"""    v_sub_u32 v48, v47, v46
    v_add_u32 v49, v48, v40
    v_add_u32 v50, v48, v44
    v_add_u32 v51, v48, v45
    ds_write_b128 v5, v[48:51] offset:{K1_LDS_BASE}
    v_lshl_or_b32 v52, v40, 16, v48
    v_lshl_or_b32 v53, v41, 16, v49
    v_lshl_or_b32 v54, v42, 16, v50
    v_lshl_or_b32 v55, v43, 16, v51
    buffer_store_dwordx4 v[52:55], v5, s[24:27], s35 offen
K1_noscan:
    s_waitcnt lgkmcnt(0)
    s_barrier
    s_mov_b64 exec, s[36:37]""")
for i in range(4):
    o(f"    ds_read_b32 v{40+i}, v{20+i} offset:{K1_LDS_BASE}")
o("    s_waitcnt lgkmcnt(0)")
for i in range(4):
    o(f"    v_add_lshl_u32 v{40+i}, v{40+i}, v{24+i}, 3")
for i in range(4):
    o(f"    ds_write_b64 v{40+i}, v[{30+2*i}:{31+2*i}] offset:{K1_LDS_SORT}")
o(f"""    s_mov_b64 exec, -1
    s_waitcnt lgkmcnt(0)
    s_barrier
    ds_read_b128 v[8:11], v5 offset:{K1_LDS_SORT}
    v_cmp_gt_u32 vcc, {CH*8//16 - 640}, v0
    v_add_u32 v6, {640*16}, v5
    s_and_saveexec_b64 s[38:39], vcc
    ds_read_b128 v[12:15], v6 offset:{K1_LDS_SORT}
    s_mov_b64 exec, s[38:39]
    s_waitcnt lgkmcnt(0)
    buffer_store_dwordx4 v[8:11], v5, s[28:31], s34 offen
    s_and_b64 exec, exec, vcc
    s_cbranch_execz K1_done
    buffer_store_dwordx4 v[12:15], v6, s[28:31], s34 offen""")
if STAMP:
    o("    s_mov_b64 exec, -1")
    o("    s_waitcnt vmcnt(0)")
    stamp(2, 44, 40, 50, 3, 10, 0)
o("    s_branch K1_done")

o(f"""K1_gemm:
    s_load_dwordx2 s[4:5], s[0:1], 0          ; x
    s_load_dwordx2 s[6:7], s[0:1], 40         ; w_b
    s_load_dwordx2 s[8:9], s[0:1], 64         ; w_v
    s_load_dwordx2 s[10:11], s[0:1], 88       ; ws
    v_lshrrev_b32 v1, 6, v0
    v_and_b32 v2, 63, v0                      ; lane
    v_readfirstlane_b32 s3, v1                ; wave
    s_sub_u32 s32, s2, {NB}                   ; G
    v_lshrrev_b32 v3, 3, v0
    v_mul_u32_u24 v3, {WROW}, v3
    v_and_b32 v4, 7, v0
    v_lshl_add_u32 v3, v4, 4, v3
    v_lshlrev_b32 v4, 4, v0                   ; t*16
    s_lshr_b32 s33, s3, 1                     ; tau
    s_and_b32 s34, s3, 1                      ; half
    s_mul_i32 s35, s32, 80
    s_lshl_b32 s36, s33, 4
    s_add_u32 s35, s35, s36
    v_and_b32 v5, 15, v2
    v_add_u32 v5, s35, v5                     ; node
    v_lshrrev_b32 v6, 4, v2                   ; g
    v_lshlrev_b32 v7, 7, v5
    v_lshl_add_u32 v7, v6, 4, v7              ; node*128 + g*16
    s_waitcnt lgkmcnt(0)""")
srd(12, 4, N*D*2)
srd(16, 6, D*D*2)
srd(20, 8, D*D*2)
srd(24, 10, T_BYTES, off=WS_T)
if STAMP: srd(40, 10, 0x200000, off=WS_STAMP)
stamp(0, 44, 40, 70, 3, 10, 0)
o(f"""    buffer_load_dwordx4 v[8:11], v7, s[12:15], 0 offen
    buffer_load_dwordx4 v[12:15], v7, s[12:15], 0 offen offset:64
    s_cmp_ge_u32 s3, 8
    s_cbranch_scc1 K1g_nob
    buffer_load_dwordx4 v[16:19], v4, s[16:19], 0 offen
K1g_nob:
    s_cmp_lt_u32 s3, 2
    s_cbranch_scc1 K1g_nov
    v_subrev_u32 v24, {128*16}, v4
    buffer_load_dwordx4 v[20:23], v24, s[20:23], 0 offen
K1g_nov:
    s_cmp_lg_u32 s2, {NB}
    s_cbranch_scc1 K1g_nodummy
    s_cmp_lg_u32 s3, 0
    s_cbranch_scc1 K1g_nodummy
    v_mov_b32 v24, 0x7f00
    v_lshlrev_b32 v25, 2, v2
    s_mov_b32 s37, {N*256}
    buffer_store_dword v24, v25, s[24:27], s37 offen
K1g_nodummy:
    s_waitcnt vmcnt(0)
    s_cmp_ge_u32 s3, 8
    s_cbranch_scc1 K1g_nob2
    ds_write_b128 v3, v[16:19]
K1g_nob2:
    s_cmp_lt_u32 s3, 2
    s_cbranch_scc1 K1g_nov2
    v_subrev_u32 v3, {16*WROW}, v3
    ds_write_b128 v3, v[20:23] offset:{64*WROW}
K1g_nov2:
    v_bfe_u32 v24, v2, 2, 2
    v_lshl_add_u32 v24, v6, 3, v24
    v_mul_u32_u24 v24, {WROW}, v24
    v_and_b32 v25, 3, v2
    v_lshl_add_u32 v24, v25, 3, v24
    s_lshl_b32 s36, s34, 6
    v_add_u32 v24, s36, v24
    s_waitcnt lgkmcnt(0)
    s_barrier""")
for m in range(2):
    for jj in range(2):
        for s in range(2):
            f = 28 + ((m*2+jj)*2+s)*4
            off = m*64*WROW + s*32*WROW + jj*32
            o(f"    ds_read_b64_tr_b16 v[{f}:{f+1}], v24 offset:{off}")
            o(f"    ds_read_b64_tr_b16 v[{f+2}:{f+3}], v24 offset:{off+4*WROW}")
for m in range(2):
    for jj in range(2):
        k = m*2+jj
        o(f"    s_waitcnt lgkmcnt({12-4*k})")
        f = 28 + k*8; a = 60 + k*4
        o(f"    v_mfma_f32_16x16x32_bf16 v[{a}:{a+3}], v[{f}:{f+3}], v[8:11], 0")
        o(f"    v_mfma_f32_16x16x32_bf16 v[{a}:{a+3}], v[{f+4}:{f+7}], v[12:15], v[{a}:{a+3}]")
o(f"""    s_mov_b32 s36, {NLOG2E:#x}
    s_mov_b32 s37, 0xffff0000
    s_mov_b32 s38, 0x80000000
    s_mov_b32 s39, 0x7fffffff
    v_lshlrev_b32 v5, 8, v5
    v_lshl_add_u32 v5, v6, 4, v5
    s_lshl_b32 s33, s34, 7
    v_add_u32 v5, s33, v5
    s_nop 7""")
for jj in range(2):
    B = 60 + jj*4; Vv = 68 + jj*4
    t = 16
    for i in range(4): o(f"    v_mul_f32 v{B+i}, s36, v{B+i}")
    o(f"    v_cvt_pk_bf16_f32 v{t}, v{B}, v{B+1}")
    o(f"    v_cvt_pk_bf16_f32 v{t+1}, v{B+2}, v{B+3}")
    o(f"    v_and_b32 v{B}, 0xffff, v{t}")
    o(f"    v_lshrrev_b32 v{B+1}, 16, v{t}")
    o(f"    v_and_b32 v{B+2}, 0xffff, v{t+1}")
    o(f"    v_lshrrev_b32 v{B+3}, 16, v{t+1}")
    for i in range(4): o(f"    v_and_b32 v{t+4+i}, s39, v{Vv+i}")
    for i in range(4): o(f"    v_add_u32 v{t+4+i}, 0x8000, v{t+4+i}")
    for i in range(4): o(f"    v_sub_u32_e64 v{t+4+i}, v{t+4+i}, v{B+i} clamp")
    for i in range(4): o(f"    v_and_or_b32 v{t+4+i}, v{t+4+i}, s37, v{B+i}")
    for i in range(4): o(f"    v_and_or_b32 v{t+4+i}, v{Vv+i}, s38, v{t+4+i}")
    o(f"    buffer_store_dwordx4 v[{t+4}:{t+7}], v5, s[24:27], 0 offen offset:{jj*64}")
    o("    s_nop 1")
if STAMP:
    o("    s_waitcnt vmcnt(0)")
    stamp(2, 44, 40, 70, 3, 10, 0)
o("K1_done:\n    s_endpgm")

o(".globl gcn_k2_kernel\n.p2align 8\n.type gcn_k2_kernel,@function\ngcn_k2_kernel:")
sX, sWA, sWC, sWU, sOUT, sWS = 4, 6, 8, 10, 12, 14
rX, rW, rWC, rOUT, rOFF, rCH, rTAB = 16, 20, 24, 28, 32, 36, 40
sSB, sNB, sSB4 = 44, 45, 46
sT0, sT1, sT2, sT3 = 47, 48, 49, 50
sM = 52
sBIG = 68
sSO = 70
sQ, sQ0, sQ1, sNODE, sBND, sSTOP, sREM = 76, 77, 78, 79, 80, 81, 82
sC63, sSEL, sSLOT, sIT = 84, 86, 87, 88
sSAVE = 90
sSTMP = 92
rST = 96

vLane, vWv, vT16, vLane4 = 1, 2, 3, 4
vJ, vJ16, vSeg = 5, 6, 7
vTT, vWst, vXf, vXe, vWc = 8, 12, 16, 24, 26
vEnt, vIdx, vRank = 28, 44, 52
vOne, vTmp = 60, 62
vInc, vBase = 70, 71
vFr, vAcc = 72, 88

def st2(idx): stamp(idx, sSTMP, rST, 100, 3, 16, 1)

o(f"""    s_cmp_ge_u32 s2, {NB}
    s_cbranch_scc1 K2_done
    s_load_dwordx2 s[{sX}:{sX+1}], s[0:1], 0
    s_load_dwordx2 s[{sWA}:{sWA+1}], s[0:1], 32
    s_load_dwordx4 s[{sWC}:{sWC+3}], s[0:1], 48
    s_load_dwordx2 s[{sOUT}:{sOUT+1}], s[0:1], 72
    s_load_dwordx2 s[{sWS}:{sWS+1}], s[0:1], 88
    v_and_b32 v{vLane}, 63, v0
    v_lshrrev_b32 v{vWv}, 6, v0
    v_lshlrev_b32 v{vT16}, 4, v0
    v_readfirstlane_b32 s3, v{vWv}
    v_lshlrev_b32 v{vLane4}, 2, v{vLane}
    v_mov_b32 v{vTmp}, {N*256}
    v_mov_b32 v{vTmp+1}, {N*256}
    v_mov_b32 v{vTmp+2}, {N*256}
    v_mov_b32 v{vTmp+3}, {N*256}
    v_mov_b32 v{vTmp+4}, 0
    v_mov_b32 v{vTmp+5}, 0
    v_mov_b32 v{vTmp+6}, 0
    v_mov_b32 v{vTmp+7}, 0
    v_mov_b32 v{vOne}, 1
    v_cmp_gt_u32 vcc, 800, v0
    s_and_saveexec_b64 s[{sSAVE}:{sSAVE+1}], vcc
    s_cbranch_execz K2_noinit
    ds_write_b128 v{vT16}, v[{vTmp}:{vTmp+3}] offset:{K2_LDS_O}
    ds_write_b128 v{vT16}, v[{vTmp+4}:{vTmp+7}] offset:{K2_LDS_E}
K2_noinit:
    s_mov_b64 exec, s[{sSAVE}:{sSAVE+1}]
    s_cmp_ge_u32 s3, 3
    s_cbranch_scc1 K2_noinit2
    v_lshlrev_b32 v{vTmp}, 2, v0
    ds_write_b32 v{vTmp}, v{vTmp+4} offset:{K2_LDS_CNT}
K2_noinit2:
    s_mul_i32 s{sSB}, s2, 40000
    s_lshr_b32 s{sSB}, s{sSB}, 10
K2_sb:
    s_mul_i32 s{sT0}, s{sSB}, {BMUL}
    s_lshr_b32 s{sT0}, s{sT0}, 20
    s_cmp_ge_u32 s{sT0}, s2
    s_cbranch_scc1 K2_sb_ok
    s_add_u32 s{sSB}, s{sSB}, 1
    s_branch K2_sb
K2_sb_ok:
    s_add_u32 s{sT1}, s2, 1
    s_mul_i32 s{sNB}, s{sT1}, 40000
    s_lshr_b32 s{sNB}, s{sNB}, 10
K2_se:
    s_mul_i32 s{sT0}, s{sNB}, {BMUL}
    s_lshr_b32 s{sT0}, s{sT0}, 20
    s_cmp_ge_u32 s{sT0}, s{sT1}
    s_cbranch_scc1 K2_se_ok
    s_add_u32 s{sNB}, s{sNB}, 1
    s_branch K2_se
K2_se_ok:
    s_min_u32 s{sNB}, s{sNB}, {N}
    s_sub_u32 s{sNB}, s{sNB}, s{sSB}
    s_lshl_b32 s{sSB4}, s{sSB}, 2
    v_and_b32 v{vJ}, 15, v{vLane}
    v_add_u32 v{vJ16}, 16, v{vJ}
    v_lshrrev_b32 v{vTmp}, 4, v0
    v_mul_u32_u24 v{vSeg}, {CH*8}, v{vTmp}
    v_lshlrev_b32 v{vTmp+1}, 10, v{vTmp}
    s_lshl_b32 s{sSO}, s2, 2
    s_add_u32 s{sSO+1}, s{sSO}, {64*1024}
    s_add_u32 s{sSO+2}, s{sSO}, {128*1024}
    s_add_u32 s{sSO+3}, s{sSO}, {192*1024}
    s_lshr_b32 s{sT0}, s3, 2
    s_lshl_b32 s{sT0}, s{sT0}, 4
    s_add_u32 s{sT0}, s{sT0}, s{sSB}
    v_add_u32 v{vTmp+2}, s{sT0}, v{vJ}
    v_lshlrev_b32 v{vTmp+2}, 7, v{vTmp+2}
    v_lshrrev_b32 v{vTmp+3}, 4, v{vLane}
    v_lshl_add_u32 v{vTmp+2}, v{vTmp+3}, 4, v{vTmp+2}
    v_add_u32 v{vTmp+4}, s{sSB}, v{vTmp}
    v_lshlrev_b32 v{vTmp+4}, 7, v{vTmp+4}
    v_lshl_add_u32 v{vTmp+4}, v{vJ}, 3, v{vTmp+4}
    v_and_b32 v{vTmp+5}, 511, v0
    v_lshlrev_b32 v{vTmp+6}, 4, v{vTmp+5}
    v_lshrrev_b32 v{vTmp+7}, 3, v{vTmp+5}
    v_mul_u32_u24 v{vTmp+7}, {WROW}, v{vTmp+7}
    v_and_b32 v{vTmp+5}, 7, v0
    v_lshl_add_u32 v{vTmp+7}, v{vTmp+5}, 4, v{vTmp+7}
    v_lshlrev_b32 v{vTmp+5}, 1, v{vLane}
    s_waitcnt lgkmcnt(0)
    s_cmp_ge_u32 s3, 8
    s_cselect_b32 s{sT0}, s{sWU}, s{sWA}
    s_cselect_b32 s{sT1}, s{sWU+1}, s{sWA+1}
    s_cselect_b32 s{sT2}, {64*WROW}, 0""")
srd(rOFF, sWS, NB*1024, off=WS_O)
o(f"    s_mov_b32 s{rW}, s{sT0}\n    s_and_b32 s{rW+1}, s{sT1}, 0xffff\n    s_mov_b32 s{rW+2}, {D*D*2}\n    s_mov_b32 s{rW+3}, 0x20000")
srd(rX, sX, N*D*2)
srd(rWC, sWC, D*2)
if STAMP: srd(rST, sWS, 0x200000, off=WS_STAMP)
st2(0)
for r in range(4):
    o(f"    buffer_load_dword v{vTT+r}, v{vTmp+1}, s[{rOFF}:{rOFF+3}], s{sSO+r} offen")
o(f"""    buffer_load_dwordx4 v[{vWst}:{vWst+3}], v{vTmp+6}, s[{rW}:{rW+3}], 0 offen
    buffer_load_dwordx4 v[{vXf}:{vXf+3}], v{vTmp+2}, s[{rX}:{rX+3}], 0 offen
    buffer_load_dwordx4 v[{vXf+4}:{vXf+7}], v{vTmp+2}, s[{rX}:{rX+3}], 0 offen offset:64
    buffer_load_dwordx2 v[{vXe}:{vXe+1}], v{vTmp+4}, s[{rX}:{rX+3}], 0 offen
    buffer_load_ushort v{vWc}, v{vTmp+5}, s[{rWC}:{rWC+3}], 0 offen""")
srd(rCH, sWS, C_BYTES, off=WS_C)
srd(rTAB, sWS, T_BYTES, w3=0x00800000, stride=4, off=WS_T)
srd(rOUT, sOUT, N*D*2)
o(f"""    v_add_u32 v{vTmp+7}, s{sT2}, v{vTmp+7}
    s_mov_b32 s{sSO}, 0
    s_mov_b32 s{sSO+1}, {64*CH*8}
    s_mov_b32 s{sSO+2}, {128*CH*8}
    s_mov_b32 s{sSO+3}, {192*CH*8}
    s_mov_b64 s[{sBIG}:{sBIG+1}], 0
    s_waitcnt vmcnt(0)""")
st2(1)
for r in range(4):
    T = vTT + r
    o(f"""    v_lshrrev_b32 v{vTmp}, 16, v{T}            ; count
    v_and_b32 v{vTmp+1}, 0xffff, v{T}
    v_add_u32 v{vTmp+1}, v{vTmp+1}, v{vJ}
    v_cmp_gt_u32 s[{sM+4*r}:{sM+4*r+1}], v{vTmp}, v{vJ}
    v_cmp_gt_u32 s[{sM+4*r+2}:{sM+4*r+3}], v{vTmp}, v{vJ16}
    v_cmp_lt_u32 vcc, 32, v{vTmp}
    v_lshl_add_u32 v{vTmp+1}, v{vTmp+1}, 3, v{vSeg}
    s_or_b64 s[{sBIG}:{sBIG+1}], s[{sBIG}:{sBIG+1}], vcc
    s_mov_b64 exec, s[{sM+4*r}:{sM+4*r+1}]
    s_cbranch_execz K2_nok0_{r}
    buffer_load_dwordx2 v[{vEnt+4*r}:{vEnt+4*r+1}], v{vTmp+1}, s[{rCH}:{rCH+3}], s{sSO+r} offen
K2_nok0_{r}:
    s_mov_b64 exec, s[{sM+4*r+2}:{sM+4*r+3}]
    s_cbranch_execz K2_nok1_{r}
    buffer_load_dwordx2 v[{vEnt+4*r+2}:{vEnt+4*r+3}], v{vTmp+1}, s[{rCH}:{rCH+3}], s{sSO+r} offen offset:128
K2_nok1_{r}:
    s_mov_b64 exec, -1""")
o(f"""    ds_write_b128 v{vTmp+7}, v[{vWst}:{vWst+3}] offset:{K2_LDS_SL}
    v_lshlrev_b32 v{vWc}, 16, v{vWc}
    v_mul_f32 v{vWc}, {NLOG2E:#x}, v{vWc}
    v_lshrrev_b32 v{vTmp}, 4, v{vLane}
    v_bfe_u32 v{vTmp+1}, v{vLane}, 2, 2
    v_lshl_add_u32 v{vTmp+1}, v{vTmp}, 3, v{vTmp+1}
    v_mul_u32_u24 v{vTmp+1}, {WROW}, v{vTmp+1}
    v_and_b32 v{vTmp+2}, 3, v{vLane}
    v_lshl_add_u32 v{vTmp+1}, v{vTmp+2}, 3, v{vTmp+1}
    s_and_b32 s{sT0}, s3, 3
    s_lshl_b32 s{sT1}, s{sT0}, 5
    v_add_u32 v{vTmp+1}, s{sT1}, v{vTmp+1}
    s_waitcnt lgkmcnt(0)
    s_barrier
    s_cmp_eq_u64 s[{sBIG}:{sBIG+1}], 0
    s_cbranch_scc1 K2_nobig
    v_mov_b32 v{vTmp+2}, 0
    ds_write_b32 v{vTmp+2}, v{vOne} offset:{K2_LDS_FLG}
K2_nobig:
    s_cmp_ge_u32 s3, 12
    s_cbranch_scc1 K2_nogemm""")
for m in range(2):
    for s_ in range(2):
        f = vFr + (m*2+s_)*4
        off = K2_LDS_SL + m*64*WROW + s_*32*WROW
        o(f"    ds_read_b64_tr_b16 v[{f}:{f+1}], v{vTmp+1} offset:{off}")
        o(f"    ds_read_b64_tr_b16 v[{f+2}:{f+3}], v{vTmp+1} offset:{off+4*WROW}")
o(f"""    ; LDS dest: (16*tau + (lane&15))*272 + (16*j' + 4*g)*4
    s_lshr_b32 s{sT1}, s3, 2
    s_lshl_b32 s{sT1}, s{sT1}, 4
    v_add_u32 v{vTmp+2}, s{sT1}, v{vJ}
    v_mul_u32_u24 v{vTmp+2}, 272, v{vTmp+2}
    v_lshl_add_u32 v{vTmp+2}, v{vTmp}, 4, v{vTmp+2}
    s_lshl_b32 s{sT0}, s{sT0}, 6
    v_add_u32 v{vTmp+2}, s{sT0}, v{vTmp+2}
    s_waitcnt lgkmcnt(4)
    v_mfma_f32_16x16x32_bf16 v[{vAcc}:{vAcc+3}], v[{vFr}:{vFr+3}], v[{vXf}:{vXf+3}], 0
    v_mfma_f32_16x16x32_bf16 v[{vAcc}:{vAcc+3}], v[{vFr+4}:{vFr+7}], v[{vXf+4}:{vXf+7}], v[{vAcc}:{vAcc+3}]
    s_waitcnt lgkmcnt(0)
    v_mfma_f32_16x16x32_bf16 v[{vAcc+4}:{vAcc+7}], v[{vFr+8}:{vFr+11}], v[{vXf}:{vXf+3}], 0
    v_mfma_f32_16x16x32_bf16 v[{vAcc+4}:{vAcc+7}], v[{vFr+12}:{vFr+15}], v[{vXf+4}:{vXf+7}], v[{vAcc+4}:{vAcc+7}]
    s_mov_b32 s{sT0}, {NLOG2E:#x}
    v_mov_b32 v{vTmp+3}, 0xc27c0000              ; -63
    s_nop 7""")
for i in range(4):
    o(f"    v_fma_f32 v{vAcc+i}, v{vAcc+i}, s{sT0}, v{vTmp+3}")
o(f"""    ds_write_b128 v{vTmp+2}, v[{vAcc}:{vAcc+3}] offset:{K2_LDS_A}
    v_add_u32 v{vTmp+2}, {K2_LDS_U}, v{vTmp+2}
    ds_write_b128 v{vTmp+2}, v[{vAcc+4}:{vAcc+7}]
K2_nogemm:
    s_waitcnt vmcnt(0)""")
st2(2)
for e in range(8):
    d0 = vEnt + 2*e
    o(f"    v_lshlrev_b32 v{vIdx+e}, 2, v{d0}")
    o(f"    v_subrev_u32 v{vIdx+e}, s{sSB4}, v{vIdx+e}")
    o(f"    v_and_b32 v{vIdx+e}, 0xfc, v{vIdx+e}")
for e in range(8):
    o(f"    s_mov_b64 exec, s[{sM+2*e}:{sM+2*e+1}]")
    if e & 1: o(f"    s_cbranch_execz K2_noat_{e}")
    o(f"    ds_add_rtn_u32 v{vRank+e}, v{vIdx+e}, v{vOne} offset:{K2_LDS_CNT}")
    if e & 1: o(f"K2_noat_{e}:")
o(f"""    s_mov_b64 exec, -1
    s_waitcnt lgkmcnt(0)
    s_barrier""")
st2(3)
o(f"""    ds_read_b32 v{vInc}, v{vLane4} offset:{K2_LDS_CNT}
    v_mov_b32 v{vTmp}, 0
    ds_read_b32 v{vTmp+1}, v{vTmp} offset:{K2_LDS_FLG}
    s_waitcnt lgkmcnt(0)
    v_readfirstlane_b32 s{sT0}, v{vTmp+1}
    v_add_u32 v{vInc}, 3, v{vInc}
    v_lshrrev_b32 v{vInc}, 2, v{vInc}
    v_mov_b32 v{vBase}, v{vInc}""")
wave_scan(vInc)
o(f"""    v_sub_u32 v{vBase}, v{vInc}, v{vBase}
    v_lshlrev_b32 v{vBase}, 2, v{vBase}
    v_readlane_b32 s{sQ}, v{vInc}, 63
    s_cmp_lg_u32 s{sT0}, 0
    s_cbranch_scc1 K2_slow
    s_cmp_gt_u32 s{sQ}, {CAPQ}
    s_cbranch_scc1 K2_slow""")
for e in range(8):
    if e & 1:
        o(f"    s_cmp_eq_u64 s[{sM+2*e}:{sM+2*e+1}], 0")
        o(f"    s_cbranch_scc1 K2_nowr_{e}")
    d0 = vEnt + 2*e
    o(f"    ds_bpermute_b32 v{vTmp+(e&1)*2}, v{vIdx+e}, v{vBase}")
    o(f"    v_and_b32 v{d0}, 0xffffff00, v{d0}")
    o(f"    s_waitcnt lgkmcnt(0)")
    o(f"    v_add_lshl_u32 v{vTmp+(e&1)*2}, v{vTmp+(e&1)*2}, v{vRank+e}, 2")
    o(f"    s_mov_b64 exec, s[{sM+2*e}:{sM+2*e+1}]")
    o(f"    ds_write_b32 v{vTmp+(e&1)*2}, v{d0} offset:{K2_LDS_O}")
    o(f"    ds_write_b32 v{vTmp+(e&1)*2}, v{d0+1} offset:{K2_LDS_E}")
    o(f"    s_mov_b64 exec, -1")
    if e & 1: o(f"K2_nowr_{e}:")
o(f"""    s_waitcnt lgkmcnt(0)
    s_barrier""")
st2(4)

vA, vDen, vNum, vAA, vLA = 8, 10, 12, 14, 15
vO = 16
vE = [20, 28]
vDr = [32, 36, 40, 44]
vU, vAa, vP, vS_, vQ, vR = 48, 52, 56, 58, 62, 64
vF = 66
RING = 4
o(f"""    s_mul_i32 s{sQ0}, s{sQ}, s3
    s_lshr_b32 s{sQ0}, s{sQ0}, 4
    s_add_u32 s{sT0}, s3, 1
    s_mul_i32 s{sQ1}, s{sQ}, s{sT0}
    s_lshr_b32 s{sQ1}, s{sQ1}, 4
    s_cmp_ge_u32 s{sQ0}, s{sQ1}
    s_cbranch_scc1 K2_main_done
    v_cmp_ge_u32 vcc, s{sQ0}, v{vInc}
    s_lshl_b32 s{sT0}, s{sQ0}, 4
    v_mov_b32 v{vLA}, s{sT0}
    ds_read_b128 v[{vO}:{vO+3}], v{vLA} offset:{K2_LDS_O}
    s_mov_b32 s{sC63}, 0x5f000000                ; 2^63
    s_mov_b32 s{sC63+1}, 0x5f000000
    s_mov_b32 s{sSEL}, 0x00003f80
    s_bcnt1_i32_b64 s{sNODE}, vcc
    s_mov_b32 s{sIT}, 0
    v_mov_b32 v{vDen}, 0
    v_mov_b32 v{vDen+1}, 0
    v_readlane_b32 s{sBND}, v{vInc}, s{sNODE}
    v_mov_b32 v{vNum}, 0
    v_mov_b32 v{vNum+1}, 0
    s_mul_i32 s{sT0}, s{sNODE}, 272
    v_add_u32 v{vAA}, s{sT0}, v{vLane4}
    ds_read_b32 v{vA}, v{vAA} offset:{K2_LDS_A}
    s_add_u32 s{sT1}, s{sNODE}, s3
    s_lshl_b32 s{sSLOT}, s{sT1}, 9
    s_min_u32 s{sSTOP}, s{sBND}, s{sQ1}
    s_sub_u32 s{sREM}, s{sSTOP}, s{sQ0}
    s_setprio 3""")
for j in range(RING-1):
    o(f"    s_waitcnt lgkmcnt({1 if j == 0 else 0})")
    for i in range(4):
        o(f"    buffer_load_dword v{vDr[j]+i}, v{vO+i}, s[{rTAB}:{rTAB+3}], 0 offen")
    o(f"    ds_read_b128 v[{vO}:{vO+3}], v{vLA} offset:{K2_LDS_O+16*(j+1)}")
o(f"    ds_read_b128 v[{vE[0]}:{vE[0]+3}], v{vLA} offset:{K2_LDS_E}")
o(".p2align 3")
o("K2_loop:")
for k in range(RING):
    e = vE[k%2]; en = vE[(k+1)%2]; Dk = vDr[k]; Dn = vDr[(k+RING-1)%RING]
    o(f"    s_waitcnt lgkmcnt(0)")
    o(f"    s_sub_u32 s{sREM}, s{sREM}, 1")
    for i in range(4):
        o(f"    buffer_load_dword v{Dn+i}, v{vO+i}, s[{rTAB}:{rTAB+3}], 0 offen")
    o(f"    ds_read_b128 v[{vO}:{vO+3}], v{vLA} offset:{K2_LDS_O+16*(k+RING)}")
    o(f"    ds_read_b128 v[{en}:{en+3}], v{vLA} offset:{K2_LDS_E+16*(k+1)}")
    o(f"    s_cbranch_scc1 K2_h{k}")
    o(f"K2_r{k}:")
    o(f"    s_waitcnt vmcnt({4*(RING-1)})")
    o(f"    v_pk_fma_f32 v[{vU}:{vU+1}], v[{e}:{e+1}], v[{vWc}:{vWc+1}], v[{vA}:{vA+1}] op_sel_hi:[1,0,0]")
    o(f"    v_pk_fma_f32 v[{vU+2}:{vU+3}], v[{e+2}:{e+3}], v[{vWc}:{vWc+1}], v[{vA}:{vA+1}] op_sel_hi:[1,0,0]")
    for i in range(4): o(f"    v_dot2c_f32_bf16 v{vU+i}, s{sSEL}, v{Dk+i}")
    for i in range(4): o(f"    v_exp_f32_e64 v{vU+i}, v{vU+i} clamp")
    o(f"    v_pk_fma_f32 v[{vAa}:{vAa+1}], v[{vU}:{vU+1}], s[{sC63}:{sC63+1}], 1.0 op_sel_hi:[1,0,0]")
    o(f"    v_pk_fma_f32 v[{vAa+2}:{vAa+3}], v[{vU+2}:{vU+3}], s[{sC63}:{sC63+1}], 1.0 op_sel_hi:[1,0,0]")
    o(f"    v_pk_mul_f32 v[{vP}:{vP+1}], v[{vAa}:{vAa+1}], v[{vAa+2}:{vAa+3}]")
    o(f"    v_pk_add_f32 v[{vS_}:{vS_+1}], v[{vAa}:{vAa+1}], v[{vAa+2}:{vAa+3}]")
    o(f"    v_rcp_f32 v{vR}, v{vP}")
    o(f"    v_rcp_f32 v{vR+1}, v{vP+1}")
    o(f"    v_pk_mul_f32 v[{vQ}:{vQ+1}], v[{vAa+2}:{vAa+3}], v[{Dk}:{Dk+1}]")
    o(f"    v_pk_fma_f32 v[{vQ}:{vQ+1}], v[{vAa}:{vAa+1}], v[{Dk+2}:{Dk+3}], v[{vQ}:{vQ+1}]")
    o(f"    v_pk_fma_f32 v[{vDen}:{vDen+1}], v[{vS_}:{vS_+1}], v[{vR}:{vR+1}], v[{vDen}:{vDen+1}]")
    o(f"    v_pk_fma_f32 v[{vNum}:{vNum+1}], v[{vQ}:{vQ+1}], v[{vR}:{vR+1}], v[{vNum}:{vNum+1}]")
o(f"""    v_add_u32 v{vLA}, {16*RING}, v{vLA}
    s_add_u32 s{sIT}, s{sIT}, 1
    s_cmp_eq_u32 s{sIT}, 4
    s_cbranch_scc1 K2_p2
    s_cmp_eq_u32 s{sIT}, 7
    s_cbranch_scc1 K2_p1
    s_cmp_eq_u32 s{sIT}, 9
    s_cbranch_scc0 K2_loop
    s_setprio 0
    s_branch K2_loop
K2_p2:
    s_setprio 2
    s_branch K2_loop
K2_p1:
    s_setprio 1
    s_branch K2_loop""")
for k in range(RING):
    o(f"""K2_h{k}:
    v_add_f32 v{vF}, v{vDen}, v{vDen+1}
    v_add_f32 v{vF+1}, v{vNum}, v{vNum+1}
    v_add_u32 v{vF+2}, s{sSLOT}, v{vLane4}
    s_lshl_b32 s{sT0}, 1, s3
    v_mov_b32 v{vF+3}, s{sT0}
    s_lshl_b32 s{sT1}, s{sNODE}, 2
    v_mov_b32 v{vDen}, s{sT1}
    ds_write_b32 v{vF+2}, v{vF} offset:{K2_LDS_SL}
    ds_write_b32 v{vF+2}, v{vF+1} offset:{K2_LDS_SL+256}
    s_mov_b64 exec, 1
    ds_or_b32 v{vDen}, v{vF+3} offset:{K2_LDS_MSK}
    s_mov_b64 exec, -1
    s_cmp_ge_u32 s{sSTOP}, s{sQ1}
    s_cbranch_scc1 K2_main_done
    v_mov_b32 v{vDen}, 0
    v_mov_b32 v{vDen+1}, 0
    v_mov_b32 v{vNum}, 0
    v_mov_b32 v{vNum+1}, 0
K2_hn{k}:
    s_add_u32 s{sNODE}, s{sNODE}, 1
    v_readlane_b32 s{sBND}, v{vInc}, s{sNODE}
    v_add_u32 v{vAA}, 272, v{vAA}
    s_add_u32 s{sSLOT}, s{sSLOT}, 512
    s_nop 1
    s_cmp_eq_u32 s{sBND}, s{sSTOP}
    s_cbranch_scc1 K2_hn{k}
    ds_read_b32 v{vA}, v{vAA} offset:{K2_LDS_A}
    s_mov_b32 s{sT0}, s{sSTOP}
    s_min_u32 s{sSTOP}, s{sBND}, s{sQ1}
    s_sub_u32 s{sREM}, s{sSTOP}, s{sT0}
    s_sub_u32 s{sREM}, s{sREM}, 1
    s_waitcnt lgkmcnt(0)
    s_branch K2_r{k}""")

sP, sJ, sCNT, sPOS, sN = 76, 77, 78, 79, 80
o(f"""K2_slow:
    s_add_u32 s{sSO}, s{sWS}, {WS_O:#x}
    s_addc_u32 s{sSO+1}, s{sWS+1}, 0
    s_add_u32 s{sSO+2}, s{sWS}, {WS_C:#x}
    s_addc_u32 s{sSO+3}, s{sWS+1}, 0
    s_mov_b32 s{sC63}, 0x5f000000
    s_mov_b32 s{sSEL}, 0x00003f80
    s_mov_b32 s{sN}, s3
K2_s_node:
    s_cmp_ge_u32 s{sN}, s{sNB}
    s_cbranch_scc1 K2_main_done
    s_mul_i32 s{sT0}, s{sN}, 272
    v_add_u32 v{vAA}, s{sT0}, v{vLane4}
    ds_read_b32 v{vA}, v{vAA} offset:{K2_LDS_A}
    v_mov_b32 v{vDen}, 0
    v_mov_b32 v{vNum}, 0
    s_mov_b32 s{sP}, 0
K2_s_prod:
    s_lshl_b32 s{sT0}, s{sP}, 10
    s_lshl_b32 s{sT1}, s2, 2
    s_add_u32 s{sT0}, s{sT0}, s{sT1}
    s_load_dword s{sCNT}, s[{sSO}:{sSO+1}], s{sT0}
    s_waitcnt lgkmcnt(0)
    s_and_b32 s{sPOS}, s{sCNT}, 0xffff
    s_lshr_b32 s{sCNT}, s{sCNT}, 16
    s_mul_i32 s{sT0}, s{sP}, {CH}
    s_add_u32 s{sPOS}, s{sPOS}, s{sT0}
    s_lshl_b32 s{sPOS}, s{sPOS}, 3
K2_s_ent:
    s_cmp_eq_u32 s{sCNT}, 0
    s_cbranch_scc1 K2_s_prod_next
    s_load_dwordx2 s[{sM}:{sM+1}], s[{sSO+2}:{sSO+3}], s{sPOS}
    s_waitcnt lgkmcnt(0)
    s_sub_u32 s{sT0}, s{sM}, s{sSB}
    s_and_b32 s{sT0}, s{sT0}, 63
    s_cmp_lg_u32 s{sT0}, s{sN}
    s_cbranch_scc1 K2_s_ent_next
    s_and_b32 s{sT0}, s{sM}, 0xffffff00
    buffer_load_dword v{vU+1}, off, s[{rTAB}:{rTAB+3}], s{sT0}
    v_mov_b32 v{vU}, s{sM+1}
    v_fma_f32 v{vU}, v{vU}, v{vWc}, v{vA}
    s_waitcnt vmcnt(0)
    v_dot2c_f32_bf16 v{vU}, s{sSEL}, v{vU+1}
    s_nop 2
    v_exp_f32_e64 v{vU}, v{vU} clamp
    s_nop 0
    v_fma_f32 v{vU}, v{vU}, s{sC63}, 1.0
    v_rcp_f32 v{vU}, v{vU}
    s_nop 0
    v_add_f32 v{vDen}, v{vDen}, v{vU}
    v_fmac_f32 v{vNum}, v{vU}, v{vU+1}
K2_s_ent_next:
    s_add_u32 s{sPOS}, s{sPOS}, 8
    s_sub_u32 s{sCNT}, s{sCNT}, 1
    s_branch K2_s_ent
K2_s_prod_next:
    s_add_u32 s{sP}, s{sP}, 1
    s_cmp_lt_u32 s{sP}, {NB}
    s_cbranch_scc1 K2_s_prod
    s_lshl_b32 s{sT0}, s{sN}, 9
    v_add_u32 v{vF+2}, s{sT0}, v{vLane4}
    ds_write_b32 v{vF+2}, v{vDen} offset:{K2_LDS_SL}
    ds_write_b32 v{vF+2}, v{vNum} offset:{K2_LDS_SL+256}
    s_lshl_b32 s{sT0}, s{sN}, 2
    v_mov_b32 v{vF+3}, s{sT0}
    s_mov_b64 exec, 1
    ds_write_b32 v{vF+3}, v{vOne} offset:{K2_LDS_MSK}
    s_mov_b64 exec, -1
    s_add_u32 s{sN}, s{sN}, 16
    s_branch K2_s_node""")

eN, eC, eM, eW, eAd = 8, 9, 10, 11, 12
eDen, eNum, eT0, eT1, eU = 16, 20, 28, 32, 36
o(f"""K2_main_done:
    s_setprio 0
    s_waitcnt vmcnt(0) lgkmcnt(0)""")
st2(5)
o(f"""    s_barrier
    s_cmp_ge_u32 s3, 10
    s_cbranch_scc1 K2_done
    v_lshrrev_b32 v{eN}, 4, v0                   ; node
    v_and_b32 v{eC}, 15, v0
    v_lshlrev_b32 v{eAd}, 2, v{eN}
    ds_read_b32 v{eM}, v{eAd} offset:{K2_LDS_MSK}
    v_mul_u32_u24 v{eAd}, 272, v{eN}
    v_lshl_add_u32 v{eAd}, v{eC}, 4, v{eAd}
    v_add_u32 v{eAd}, {K2_LDS_U}, v{eAd}
    ds_read_b128 v[{eU}:{eU+3}], v{eAd}""")
for i in range(4):
    o(f"    v_mov_b32 v{eDen+i}, 0")
    o(f"    v_mov_b32 v{eNum+i}, 0")
o(f"""    s_waitcnt lgkmcnt(0)
K2_e_loop:
    v_cmp_ne_u32 vcc, 0, v{eM}
    s_and_saveexec_b64 s[{sSAVE}:{sSAVE+1}], vcc
    s_cbranch_execz K2_e_end
    v_ffbl_b32 v{eW}, v{eM}
    v_add_u32 v{eW}, v{eW}, v{eN}
    v_lshlrev_b32 v{eW}, 9, v{eW}
    v_lshl_add_u32 v{eW}, v{eC}, 4, v{eW}
    ds_read_b128 v[{eT0}:{eT0+3}], v{eW} offset:{K2_LDS_SL}
    ds_read_b128 v[{eT1}:{eT1+3}], v{eW} offset:{K2_LDS_SL+256}
    v_add_u32 v{eW}, -1, v{eM}
    v_and_b32 v{eM}, v{eM}, v{eW}
    s_waitcnt lgkmcnt(0)""")
for i in range(4):
    o(f"    v_add_f32 v{eDen+i}, v{eDen+i}, v{eT0+i}")
    o(f"    v_add_f32 v{eNum+i}, v{eNum+i}, v{eT1+i}")
o(f"""    s_mov_b64 exec, s[{sSAVE}:{sSAVE+1}]
    s_branch K2_e_loop
K2_e_end:
    s_mov_b64 exec, s[{sSAVE}:{sSAVE+1}]""")
for i in range(4): o(f"    v_add_f32 v{eDen+i}, 0x358637bd, v{eDen+i}")
for i in range(4): o(f"    v_rcp_f32 v{eDen+i}, v{eDen+i}")
o(f"""    v_lshlrev_b32 v{eT0}, 16, v{vXe}
    v_and_b32 v{eT0+1}, 0xffff0000, v{vXe}
    v_lshlrev_b32 v{eT0+2}, 16, v{vXe+1}
    v_and_b32 v{eT0+3}, 0xffff0000, v{vXe+1}""")
for i in range(4): o(f"    v_fma_f32 v{eU+i}, v{eNum+i}, v{eDen+i}, v{eU+i}")
for i in range(4): o(f"    v_max_f32 v{eU+i}, 0, v{eU+i}")
for i in range(4): o(f"    v_add_f32 v{eU+i}, v{eU+i}, v{eT0+i}")
o(f"""    v_cvt_pk_bf16_f32 v{eT1}, v{eU}, v{eU+1}
    v_cvt_pk_bf16_f32 v{eT1+1}, v{eU+2}, v{eU+3}
    v_add_u32 v{eAd}, s{sSB}, v{eN}
    v_lshlrev_b32 v{eAd}, 7, v{eAd}
    v_lshl_add_u32 v{eAd}, v{eC}, 3, v{eAd}
    v_cmp_gt_u32 vcc, s{sNB}, v{eN}
    s_and_saveexec_b64 s[{sSAVE}:{sSAVE+1}], vcc
    s_cbranch_execz K2_done
    buffer_store_dwordx2 v[{eT1}:{eT1+1}], v{eAd}, s[{rOUT}:{rOUT+3}], 0 offen""")
if STAMP:
    o("    s_mov_b64 exec, -1\n    s_waitcnt vmcnt(0)")
    st2(6)
o("K2_done:\n    s_endpgm")

def kd(name, vg, sg):
    o(f""".section .rodata,"a"
.p2align 6
.amdhsa_kernel {name}
  .amdhsa_next_free_vgpr {vg}
  .amdhsa_next_free_sgpr {sg}
  .amdhsa_accum_offset {vg}
  .amdhsa_group_segment_fixed_size 0
  .amdhsa_kernarg_size 96
  .amdhsa_user_sgpr_count 2
  .amdhsa_user_sgpr_kernarg_segment_ptr 1
  .amdhsa_system_sgpr_workgroup_id_x 1
  .amdhsa_dx10_clamp 0
.end_amdhsa_kernel""")
kd("gcn_k1_kernel", 80, 64)
kd("gcn_k2_kernel", 128, 102)
print("\n".join(L))
```

```python
import sys
FL = set(sys.argv[1].split(',')) if len(sys.argv) > 1 else set()
STAMP = "stamp" in FL
NAME = "standalone__edge_featured_mpnn_gatedgcn__graph_kernel"

L = []
def o(s=""): L.append(s)

N, D, E = 10000, 64, 640000
NB = 256
CH = E // NB
BMUL = 26843
WS_T = 0
T_BYTES = (N+1)*256
WS_O = 0x280000
O_BYTES = NB*NB*8
WS_C = 0x300000
C_BYTES = NB*CH*8
WS_EP = 0x7F0000
WS_STAMP = 0x800000
NLOG2E = 0xBFB8AA3B
WROW = 144
SPIN_MAX = 400000
SC = " sc1"

LDS_CNT2, LDS_MSK, LDS_FLG = 0, 256, 512
LDS_CNT1, LDS_BASE1 = 768, 1792
LDS_O = 2816
LDS_E = LDS_O + 12800
LDS_A = LDS_E + 12800
LDS_SL = LDS_A + 48*272
LDS_U = LDS_SL + 56*512
LDS_W2 = LDS_U + 48*272
LDS_TOT = LDS_W2 + 2*64*WROW
LDS_W1 = LDS_O
LDS_SORT = LDS_SL
CAPQ = 768
assert LDS_SORT + CH*8 + 16 < 65536 and LDS_W1 + 2*64*WROW <= LDS_A

def srd(dst, base, nrec, w3=0x20000, stride=0, off=0):
    if off:
        o(f"    s_add_u32 s{dst}, s{base}, {off:#x}")
        o(f"    s_addc_u32 s{dst+1}, s{base+1}, 0")
        o(f"    s_and_b32 s{dst+1}, s{dst+1}, 0xffff")
    else:
        o(f"    s_mov_b32 s{dst}, s{base}")
        o(f"    s_and_b32 s{dst+1}, s{base+1}, 0xffff")
    if stride: o(f"    s_or_b32 s{dst+1}, s{dst+1}, {stride<<16:#x}")
    o(f"    s_mov_b32 s{dst+2}, {nrec:#x}")
    o(f"    s_mov_b32 s{dst+3}, {w3:#x}")

def wave_scan(v):
    for ctl in ("row_shr:1 row_mask:0xf bank_mask:0xf bound_ctrl:1", "row_shr:2 row_mask:0xf bank_mask:0xf bound_ctrl:1",
                "row_shr:4 row_mask:0xf bank_mask:0xf bound_ctrl:1", "row_shr:8 row_mask:0xf bank_mask:0xf bound_ctrl:1",
                "row_bcast:15 row_mask:0xa bank_mask:0xf", "row_bcast:31 row_mask:0xc bank_mask:0xf"):
        o("    s_nop 1")
        o(f"    v_add_u32_dpp v{v}, v{v}, v{v} {ctl}")

sX, sEA, sSRC, sDST = 4, 6, 8, 10
sWA, sWB, sWC, sWU = 12, 14, 16, 18
sWV, sOUT = 20, 22
sWS = 24
sEP = 26
rA, rB, rC = 28, 32, 36
rX, rOFF, rCH, rTAB, rTABW, rOUT = 40, 44, 48, 52, 56, 60
sSB, sNB, sSB4 = 64, 65, 66
sT0, sT1, sT2, sT3 = 67, 68, 69, 70
sM = 72
sV625 = 72
sBIG = 88
sSO = 90
sTAGL, sTAGH = 94, 95
sSAVE = 96
sSPIN = 98
sSTMP = 100
sQ, sQ0, sQ1, sNODE, sBND, sSTOP, sREM = 72, 73, 74, 75, 76, 77, 78
sC63, sSEL, sSLOT, sIT = 80, 82, 83, 84

vLane, vWv, vT16, vLane4, vJ, vJ16, vSeg = 1, 2, 3, 4, 5, 6, 7
vW2, vXf2, vXe, vWc, vW1 = 12, 16, 24, 26, 28
vOne = 60
vTmp = 62
vST = 127

def stamp(idx, pre=False):
    if not STAMP: return
    if not pre:
        o(f"    s_memrealtime s[{sSTMP}:{sSTMP+1}]")
        o(f"    s_waitcnt lgkmcnt(0)")
    o(f"    v_writelane_b32 v{vST}, s{sSTMP}, {idx}")
def stamp_flush():
    if not STAMP: return
    o(f"""    s_mov_b64 exec, -1
    s_lshl_b32 s{sT0}, s2, 4
    s_add_u32 s{sT0}, s{sT0}, s3
    s_lshl_b32 s{sT0}, s{sT0}, 6
    s_add_u32 s{rA}, s{sWS}, {WS_STAMP:#x}
    s_addc_u32 s{rA+1}, s{sWS+1}, 0
    s_and_b32 s{rA+1}, s{rA+1}, 0xffff
    s_mov_b32 s{rA+2}, 0x100000
    s_mov_b32 s{rA+3}, 0x20000
    s_mov_b64 exec, 0xffff
    buffer_store_dword v{vST}, v{vLane4}, s[{rA}:{rA+3}], s{sT0} offen
    s_mov_b64 exec, -1""")

o(f"; @launch grid=({NB},1,1) block=(1024,1,1) lds={LDS_TOT}")
o('.amdgcn_target "amdgcn-amd-amdhsa--gfx950"')
o(".text")
o(f".globl {NAME}\n.p2align 8\n.type {NAME},@function\n{NAME}:")
if STAMP: o(f"    s_memrealtime s[{sSTMP}:{sSTMP+1}]")
o(f"""    s_cmp_ge_u32 s2, {NB}
    s_cbranch_scc1 K_done
    s_load_dwordx8 s[4:11], s[0:1], 0
    s_load_dwordx8 s[12:19], s[0:1], 32        ; w_a, w_b, w_c, w_u
    s_load_dwordx4 s[20:23], s[0:1], 64        ; w_v, out
    s_load_dwordx2 s[{sWS}:{sWS+1}], s[0:1], 88
    v_and_b32 v{vLane}, 63, v0
    v_lshrrev_b32 v{vWv}, 6, v0
    v_lshlrev_b32 v{vT16}, 4, v0
    v_readfirstlane_b32 s3, v{vWv}
    v_lshlrev_b32 v{vLane4}, 2, v{vLane}
    v_mov_b32 v{vOne}, 1
    v_mov_b32 v{vTmp}, 0
    v_lshlrev_b32 v{vTmp+1}, 2, v0
    s_cmp_ge_u32 s3, 7
    s_cbranch_scc1 K_nozero
    ds_write_b32 v{vTmp+1}, v{vTmp}
K_nozero:
    s_mul_i32 s{sSB}, s2, 40000
    s_lshr_b32 s{sSB}, s{sSB}, 10
K_sb:
    s_mul_i32 s{sT0}, s{sSB}, {BMUL}
    s_lshr_b32 s{sT0}, s{sT0}, 20
    s_cmp_ge_u32 s{sT0}, s2
    s_cbranch_scc1 K_sb_ok
    s_add_u32 s{sSB}, s{sSB}, 1
    s_branch K_sb
K_sb_ok:
    s_add_u32 s{sT1}, s2, 1
    s_mul_i32 s{sNB}, s{sT1}, 40000
    s_lshr_b32 s{sNB}, s{sNB}, 10
K_se:
    s_mul_i32 s{sT0}, s{sNB}, {BMUL}
    s_lshr_b32 s{sT0}, s{sT0}, 20
    s_cmp_ge_u32 s{sT0}, s{sT1}
    s_cbranch_scc1 K_se_ok
    s_add_u32 s{sNB}, s{sNB}, 1
    s_branch K_se
K_se_ok:
    s_min_u32 s{sNB}, s{sNB}, {N}
    s_sub_u32 s{sNB}, s{sNB}, s{sSB}
    s_lshl_b32 s{sSB4}, s{sSB}, 2
    v_and_b32 v{vJ}, 15, v{vLane}
    v_add_u32 v{vJ16}, 16, v{vJ}
    v_lshrrev_b32 v{vTmp}, 4, v0              ; t>>4
    v_mul_u32_u24 v{vSeg}, {CH*8}, v{vTmp}
    v_and_b32 v{vTmp+1}, 511, v0
    v_lshlrev_b32 v{vTmp+2}, 4, v{vTmp+1}
    v_lshrrev_b32 v{vTmp+3}, 3, v{vTmp+1}
    v_mul_u32_u24 v{vTmp+3}, {WROW}, v{vTmp+3}
    v_and_b32 v{vTmp+1}, 7, v0
    v_lshl_add_u32 v{vTmp+3}, v{vTmp+1}, 4, v{vTmp+3}
    s_lshr_b32 s{sT0}, s3, 2
    s_lshl_b32 s{sT0}, s{sT0}, 4
    s_add_u32 s{sT0}, s{sT0}, s{sSB}
    v_add_u32 v{vTmp+4}, s{sT0}, v{vJ}
    v_lshlrev_b32 v{vTmp+4}, 7, v{vTmp+4}
    v_lshrrev_b32 v{vTmp+5}, 4, v{vLane}
    v_lshl_add_u32 v{vTmp+4}, v{vTmp+5}, 4, v{vTmp+4}
    v_add_u32 v{vTmp+6}, s{sSB}, v{vTmp}
    v_lshlrev_b32 v{vTmp+6}, 7, v{vTmp+6}
    v_lshl_add_u32 v{vTmp+6}, v{vJ}, 3, v{vTmp+6}
    v_lshlrev_b32 v{vTmp+7}, 1, v{vLane}
    v_lshlrev_b32 v8, 3, v0                   ; t*8
    v_cmp_gt_u32 vcc, {CH//4}, v0
    s_mov_b64 s[{sV625}:{sV625+1}], vcc
    s_mul_i32 s{sSO}, s2, {CH*4}
    s_mul_i32 s{sSO+1}, s2, {CH*2}
    s_waitcnt lgkmcnt(0)""")
stamp(0, pre=True)
o(f"    s_add_u32 s{sSAVE}, s{sWS}, {WS_EP:#x}\n    s_addc_u32 s{sSAVE+1}, s{sWS+1}, 0\n    s_load_dwordx2 s[{sEP}:{sEP+1}], s[{sSAVE}:{sSAVE+1}], 0")
o(f"    s_cmp_ge_u32 s3, 10\n    s_cbranch_scc1 K_g_loads")
srd(rA, sDST, E*4); srd(rB, sSRC, E*4); srd(rC, sEA, E*2)
o(f"""    s_mov_b64 exec, s[{sV625}:{sV625+1}]
    buffer_load_dwordx4 v[32:35], v{vT16}, s[{rA}:{rA+3}], s{sSO} offen       ; dst
    buffer_load_dwordx4 v[36:39], v{vT16}, s[{rB}:{rB+3}], s{sSO} offen       ; src
    buffer_load_dwordx2 v[40:41], v8, s[{rC}:{rC+3}], s{sSO+1} offen          ; e
    s_mov_b64 exec, -1
    s_branch K_common_loads
K_g_loads:
    ; ---- table waves 10..15: x fragments of nodes 40*p + 16*tau + (lane&15)""")
srd(rA, sX, N*D*2)
o(f"""    s_sub_u32 s{sT0}, s3, 10
    s_lshr_b32 s{sT0}, s{sT0}, 1
    s_lshl_b32 s{sT0}, s{sT0}, 4              ; 16*tau
    s_mul_i32 s{sT1}, s2, 40
    s_add_u32 s{sT1}, s{sT1}, s{sT0}
    v_add_u32 v9, s{sT1}, v{vJ}               ; node
    v_lshlrev_b32 v10, 7, v9
    v_lshl_add_u32 v10, v{vTmp+5}, 4, v10
    buffer_load_dwordx4 v[32:35], v10, s[{rA}:{rA+3}], 0 offen
    buffer_load_dwordx4 v[36:39], v10, s[{rA}:{rA+3}], 0 offen offset:64
    buffer_load_ushort v40, v{vTmp+7}, s[{rA}:{rA+3}], 0 offen
K_common_loads:
    s_cmp_ge_u32 s3, 8
    s_cselect_b32 s{sT0}, s{sWV}, s{sWB}
    s_cselect_b32 s{sT1}, s{sWV+1}, s{sWB+1}
    s_cselect_b32 s{sT2}, s{sWU}, s{sWA}
    s_cselect_b32 s{sT3}, s{sWU+1}, s{sWA+1}
    s_cselect_b32 s{sSPIN}, {64*WROW}, 0
    s_mov_b32 s{rA}, s{sT0}
    s_and_b32 s{rA+1}, s{sT1}, 0xffff
    s_mov_b32 s{rA+2}, {D*D*2}
    s_mov_b32 s{rA+3}, 0x20000
    s_mov_b32 s{rB}, s{sT2}
    s_and_b32 s{rB+1}, s{sT3}, 0xffff
    s_mov_b32 s{rB+2}, {D*D*2}
    s_mov_b32 s{rB+3}, 0x20000
    buffer_load_dwordx4 v[{vW1}:{vW1+3}], v{vTmp+2}, s[{rA}:{rA+3}], 0 offen
    buffer_load_dwordx4 v[{vW2}:{vW2+3}], v{vTmp+2}, s[{rB}:{rB+3}], 0 offen""")
srd(rX, sX, N*D*2)
srd(rC, sWC, D*2)
o(f"""    buffer_load_dwordx4 v[{vXf2}:{vXf2+3}], v{vTmp+4}, s[{rX}:{rX+3}], 0 offen
    buffer_load_dwordx4 v[{vXf2+4}:{vXf2+7}], v{vTmp+4}, s[{rX}:{rX+3}], 0 offen offset:64
    buffer_load_dwordx2 v[{vXe}:{vXe+1}], v{vTmp+6}, s[{rX}:{rX+3}], 0 offen
    buffer_load_ushort v{vWc}, v{vTmp+7}, s[{rC}:{rC+3}], 0 offen
    v_add_u32 v{vTmp+3}, s{sSPIN}, v{vTmp+3}""")
srd(rOFF, sWS, O_BYTES, off=WS_O)
srd(rCH, sWS, C_BYTES, off=WS_C)
srd(rTAB, sWS, T_BYTES, w3=0x00800000, stride=4, off=WS_T)
srd(rTABW, sWS, T_BYTES, off=WS_T)
srd(rOUT, sOUT, N*D*2)
o(f"""    s_waitcnt lgkmcnt(0)
    s_add_u32 s{sEP}, s{sEP}, 1
    s_addc_u32 s{sEP+1}, s{sEP+1}, 0
    s_and_b32 s{sTAGL}, s{sEP}, 0xff
    s_lshl_b32 s{sTAGL}, s{sTAGL}, 24
    s_lshr_b64 s[{sSAVE}:{sSAVE+1}], s[{sEP}:{sEP+1}], 8
    s_mov_b32 s{sTAGH}, s{sSAVE}
    s_barrier
    s_cmp_ge_u32 s3, 10
    s_cbranch_scc1 K_g_b1""")
o(f"""    s_mov_b64 exec, s[{sV625}:{sV625+1}]
    s_waitcnt vmcnt(8)""")
for i in range(4): o(f"    v_mul_u32_u24 v{44+i}, {BMUL}, v{32+i}")
for i in range(4): o(f"    v_lshrrev_b32 v{44+i}, 18, v{44+i}")
for i in range(4): o(f"    v_and_b32 v{44+i}, 0x3fc, v{44+i}")
for i in range(4): o(f"    ds_add_rtn_u32 v{48+i}, v{44+i}, v{vOne} offset:{LDS_CNT1}")
for i in range(4): o(f"    v_and_b32 v{32+i}, 63, v{32+i}")
o("    s_waitcnt vmcnt(6)")
for i in range(4): o(f"    v_lshl_or_b32 v{52+2*i}, v{36+i}, 8, v{32+i}")
o(f"""    v_lshlrev_b32 v53, 16, v40
    v_and_b32 v55, 0xffff0000, v40
    v_lshlrev_b32 v57, 16, v41
    v_and_b32 v59, 0xffff0000, v41
    s_mov_b64 exec, -1
K_g_b1:
    s_waitcnt vmcnt(4)
    v_add_u32 v{vTmp+1}, {LDS_W2}, v{vTmp+3}
    ds_write_b128 v{vTmp+3}, v[{vW1}:{vW1+3}] offset:{LDS_W1}
    ds_write_b128 v{vTmp+1}, v[{vW2}:{vW2+3}]""")
stamp(1)
o(f"""    s_waitcnt lgkmcnt(0)
    s_barrier
    v_bfe_u32 v{vTmp+7}, v{vLane}, 2, 2
    v_lshl_add_u32 v{vTmp+7}, v{vTmp+5}, 3, v{vTmp+7}
    v_mul_u32_u24 v{vTmp+7}, {WROW}, v{vTmp+7}
    v_and_b32 v{vTmp+1}, 3, v{vLane}
    v_lshl_add_u32 v{vTmp+7}, v{vTmp+1}, 3, v{vTmp+7}
    s_cmp_ge_u32 s3, 10
    s_cbranch_scc1 K_g_tab
    s_cmp_lg_u32 s3, 0
    s_cbranch_scc1 K_noscan
    ds_read_b128 v[72:75], v{vT16} offset:{LDS_CNT1}
    s_waitcnt lgkmcnt(0)
    v_add_u32 v76, v72, v73
    v_add_u32 v77, v76, v74
    v_add_u32 v78, v77, v75
    v_mov_b32 v79, v78""")
wave_scan(79)
o(f"""    v_sub_u32 v80, v79, v78
    v_add_u32 v81, v80, v72
    v_add_u32 v82, v80, v76
    v_add_u32 v83, v80, v77
    ds_write_b128 v{vT16}, v[80:83] offset:{LDS_BASE1}
    v_lshl_or_b32 v84, v72, 12, v80
    v_lshl_or_b32 v86, v73, 12, v81
    v_lshl_or_b32 v88, v74, 12, v82
    v_lshl_or_b32 v90, v75, 12, v83
    v_or_b32 v84, s{sTAGL}, v84
    v_or_b32 v86, s{sTAGL}, v86
    v_or_b32 v88, s{sTAGL}, v88
    v_or_b32 v90, s{sTAGL}, v90
    v_mov_b32 v85, s{sTAGH}
    v_mov_b32 v87, s{sTAGH}
    v_mov_b32 v89, s{sTAGH}
    v_mov_b32 v91, s{sTAGH}
K_noscan:
    s_waitcnt lgkmcnt(0)
    s_barrier
    s_mov_b64 exec, s[{sV625}:{sV625+1}]""")
for i in range(4): o(f"    ds_read_b32 v{40+i}, v{44+i} offset:{LDS_BASE1}")
o("    s_waitcnt lgkmcnt(0)")
for i in range(4): o(f"    v_add_lshl_u32 v{40+i}, v{40+i}, v{48+i}, 3")
for i in range(4): o(f"    ds_write_b64 v{40+i}, v[{52+2*i}:{53+2*i}] offset:{LDS_SORT}")
o(f"""    s_mov_b64 exec, -1
    s_waitcnt lgkmcnt(0)
    s_barrier
    s_branch K_copyout""")
o(f"""K_g_tab:
    s_sub_u32 s{sT0}, s3, 10
    s_and_b32 s{sT1}, s{sT0}, 1               ; half
    s_lshl_b32 s{sT2}, s{sT1}, 6
    v_add_u32 v8, s{sT2}, v{vTmp+7}""")
for m in range(2):
    for jj in range(2):
        for s_ in range(2):
            f = 40 + ((m*2+jj)*2+s_)*4
            if f >= 60: f += 12
            off = LDS_W1 + m*64*WROW + s_*32*WROW + jj*32
            o(f"    ds_read_b64_tr_b16 v[{f}:{f+1}], v8 offset:{off}")
            o(f"    ds_read_b64_tr_b16 v[{f+2}:{f+3}], v8 offset:{off+4*WROW}")
def frag(k, s_):
    f = 40 + (k*2+s_)*4
    return f + 12 if f >= 60 else f
for k in range(4):
    a = 100 + k*4
    o(f"    s_waitcnt lgkmcnt({12-4*k})")
    o(f"    v_mfma_f32_16x16x32_bf16 v[{a}:{a+3}], v[{frag(k,0)}:{frag(k,0)+3}], v[32:35], 0")
    o(f"    v_mfma_f32_16x16x32_bf16 v[{a}:{a+3}], v[{frag(k,1)}:{frag(k,1)+3}], v[36:39], v[{a}:{a+3}]")
o(f"""    s_barrier                                  ; B2
    s_mov_b32 s{sT0}, {NLOG2E:#x}
    s_mov_b32 s{sT2}, 0xffff0000
    s_mov_b32 s{sT3}, 0x80000000
    s_mov_b32 s{sSPIN}, 0x7fffffff
    v_lshlrev_b32 v10, 8, v9
    v_lshl_add_u32 v10, v{vTmp+5}, 4, v10
    s_lshl_b32 s{sT1}, s{sT1}, 7
    v_add_u32 v10, s{sT1}, v10
    s_mul_i32 s{sT1}, s2, 40
    v_subrev_u32 v11, s{sT1}, v9
    v_cmp_gt_u32 vcc, 40, v11
    s_mov_b64 s[{sSAVE}:{sSAVE+1}], vcc
    s_cmp_ge_u32 s2, 250
    s_cselect_b64 s[{sSAVE}:{sSAVE+1}], 0, s[{sSAVE}:{sSAVE+1}]
    s_nop 4""")
for jj in range(2):
    B = 100 + jj*4; Vv = 108 + jj*4
    t = 40
    for i in range(4): o(f"    v_mul_f32 v{B+i}, s{sT0}, v{B+i}")
    o(f"    v_cvt_pk_bf16_f32 v{t}, v{B}, v{B+1}")
    o(f"    v_cvt_pk_bf16_f32 v{t+1}, v{B+2}, v{B+3}")
    o(f"    v_and_b32 v{B}, 0xffff, v{t}")
    o(f"    v_lshrrev_b32 v{B+1}, 16, v{t}")
    o(f"    v_and_b32 v{B+2}, 0xffff, v{t+1}")
    o(f"    v_lshrrev_b32 v{B+3}, 16, v{t+1}")
    T = 44 + jj*4
    for i in range(4): o(f"    v_and_b32 v{T+i}, s{sSPIN}, v{Vv+i}")
    for i in range(4): o(f"    v_add_u32 v{T+i}, 0x8000, v{T+i}")
    for i in range(4): o(f"    v_sub_u32_e64 v{T+i}, v{T+i}, v{B+i} clamp")
    for i in range(4): o(f"    v_and_or_b32 v{T+i}, v{T+i}, s{sT2}, v{B+i}")
    for i in range(4): o(f"    v_and_or_b32 v{T+i}, v{Vv+i}, s{sT3}, v{T+i}")
    if jj == 0: o("    s_barrier                                  ; B3")
o(f"""    s_mov_b64 exec, s[{sSAVE}:{sSAVE+1}]
    s_cbranch_execz K_g_nostore
    buffer_store_dwordx4 v[44:47], v10, s[{rTABW}:{rTABW+3}], 0 offen{SC}
    buffer_store_dwordx4 v[48:51], v10, s[{rTABW}:{rTABW+3}], 0 offen offset:64{SC}
K_g_nostore:
    s_mov_b64 exec, -1
    s_cmp_lg_u32 s2, 250
    s_cbranch_scc1 K_copyout
    s_cmp_lg_u32 s3, 10
    s_cbranch_scc1 K_copyout
    v_mov_b32 v44, 0x7f00
    s_mov_b32 s{sT0}, {N*256}
    buffer_store_dword v44, v{vLane4}, s[{rTABW}:{rTABW+3}], s{sT0} offen{SC}
K_copyout:
    ds_read_b128 v[32:35], v{vT16} offset:{LDS_SORT}
    v_cmp_gt_u32 vcc, {CH*8//16 - 1024}, v0
    v_add_u32 v8, {1024*16}, v{vT16}
    s_mul_i32 s{sT0}, s2, {CH*8}
    s_and_saveexec_b64 s[{sSAVE}:{sSAVE+1}], vcc
    s_cbranch_execz K_co1
    ds_read_b128 v[36:39], v8 offset:{LDS_SORT}
K_co1:
    s_mov_b64 exec, s[{sSAVE}:{sSAVE+1}]
    s_waitcnt lgkmcnt(0)
    buffer_store_dwordx4 v[32:35], v{vT16}, s[{rCH}:{rCH+3}], s{sT0} offen{SC}
    s_and_b64 exec, exec, vcc
    s_cbranch_execz K_co2
    buffer_store_dwordx4 v[36:39], v8, s[{rCH}:{rCH+3}], s{sT0} offen{SC}
K_co2:
    s_mov_b64 exec, -1""")
stamp(2)
o(f"""    v_mov_b32 v32, {N*256}
    v_mov_b32 v33, {N*256}
    v_mov_b32 v34, {N*256}
    v_mov_b32 v35, {N*256}
    v_mov_b32 v36, 0
    v_mov_b32 v37, 0
    v_mov_b32 v38, 0
    v_mov_b32 v39, 0
    v_cmp_gt_u32 vcc, 800, v0
    s_and_saveexec_b64 s[{sSAVE}:{sSAVE+1}], vcc
    s_cbranch_execz K_nofill
    ds_write_b128 v{vT16}, v[32:35] offset:{LDS_O}
    ds_write_b128 v{vT16}, v[36:39] offset:{LDS_E}
K_nofill:
    s_mov_b64 exec, s[{sSAVE}:{sSAVE+1}]
    v_lshlrev_b32 v{vWc}, 16, v{vWc}
    v_mul_f32 v{vWc}, {NLOG2E:#x}, v{vWc}
    s_cmp_ge_u32 s3, 12
    s_cbranch_scc1 K_nogemm
    s_and_b32 s{sT0}, s3, 3
    s_lshl_b32 s{sT1}, s{sT0}, 5
    s_add_u32 s{sT1}, s{sT1}, {LDS_W2}
    v_add_u32 v8, s{sT1}, v{vTmp+7}""")
vFr, vAcc = 100, 116
for m in range(2):
    for s_ in range(2):
        f = vFr + (m*2+s_)*4
        off = m*64*WROW + s_*32*WROW
        o(f"    ds_read_b64_tr_b16 v[{f}:{f+1}], v8 offset:{off}")
        o(f"    ds_read_b64_tr_b16 v[{f+2}:{f+3}], v8 offset:{off+4*WROW}")
o(f"""    ; LDS dest: (16*tau + (lane&15))*272 + (16*j' + 4*g)*4
    s_lshr_b32 s{sT1}, s3, 2
    s_lshl_b32 s{sT1}, s{sT1}, 4
    v_add_u32 v9, s{sT1}, v{vJ}
    v_mul_u32_u24 v9, 272, v9
    v_lshl_add_u32 v9, v{vTmp+5}, 4, v9
    s_lshl_b32 s{sT0}, s{sT0}, 6
    v_add_u32 v9, s{sT0}, v9
    s_waitcnt lgkmcnt(4)
    v_mfma_f32_16x16x32_bf16 v[{vAcc}:{vAcc+3}], v[{vFr}:{vFr+3}], v[{vXf2}:{vXf2+3}], 0
    v_mfma_f32_16x16x32_bf16 v[{vAcc}:{vAcc+3}], v[{vFr+4}:{vFr+7}], v[{vXf2+4}:{vXf2+7}], v[{vAcc}:{vAcc+3}]
    s_waitcnt lgkmcnt(0)
    v_mfma_f32_16x16x32_bf16 v[{vAcc+4}:{vAcc+7}], v[{vFr+8}:{vFr+11}], v[{vXf2}:{vXf2+3}], 0
    v_mfma_f32_16x16x32_bf16 v[{vAcc+4}:{vAcc+7}], v[{vFr+12}:{vFr+15}], v[{vXf2+4}:{vXf2+7}], v[{vAcc+4}:{vAcc+7}]
    s_mov_b32 s{sT0}, {NLOG2E:#x}
    v_mov_b32 v10, 0xc27c0000                  ; -63
    s_nop 7""")
for i in range(4): o(f"    v_fma_f32 v{vAcc+i}, v{vAcc+i}, s{sT0}, v10")
o(f"""    ds_write_b128 v9, v[{vAcc}:{vAcc+3}] offset:{LDS_A}
    v_add_u32 v9, {LDS_U}, v9
    ds_write_b128 v9, v[{vAcc+4}:{vAcc+7}]
K_nogemm:
    s_waitcnt vmcnt(0) lgkmcnt(0)""")
stamp(3)
o(f"""    s_barrier
    s_cmp_lg_u32 s3, 0
    s_cbranch_scc1 K_nopub
    v_lshlrev_b32 v8, 5, v{vLane}
    s_lshl_b32 s{sT0}, s2, 11
    buffer_store_dwordx4 v[84:87], v8, s[{rOFF}:{rOFF+3}], s{sT0} offen{SC}
    buffer_store_dwordx4 v[88:91], v8, s[{rOFF}:{rOFF+3}], s{sT0} offen offset:16{SC}
K_nopub:""")
vG = 72
vEnt, vIdx, vRank = 28, 44, 52
vInc, vBase = 70, 71
o(f"""    v_lshrrev_b32 v8, 4, v0
    v_lshlrev_b32 v8, 11, v8                   ; (wave*4+g)*2048
    s_lshl_b32 s{sSO}, s2, 3
    s_add_u32 s{sSO+1}, s{sSO}, {64*2048}
    s_add_u32 s{sSO+2}, s{sSO}, {128*2048}
    s_add_u32 s{sSO+3}, s{sSO}, {192*2048}
    s_mov_b32 s{sSPIN}, 0
    v_mov_b32 v9, 0xff000000
K_poll:""")
for r in range(4):
    o(f"    buffer_load_dwordx2 v[{vG+2*r}:{vG+2*r+1}], v8, s[{rOFF}:{rOFF+3}], s{sSO+r} offen{SC}")
o(f"    s_add_u32 s{sSPIN}, s{sSPIN}, 1")
o(f"    s_waitcnt vmcnt(0)")
for r in range(4):
    o(f"    v_and_b32 v{vTmp}, v9, v{vG+2*r}")
    o(f"    v_cmp_ne_u32 vcc, s{sTAGL}, v{vTmp}")
    o(f"    v_cmp_ne_u32 s[{sSAVE}:{sSAVE+1}], s{sTAGH}, v{vG+2*r+1}")
    if r == 0:
        o(f"    s_or_b64 s[{sBIG}:{sBIG+1}], vcc, s[{sSAVE}:{sSAVE+1}]")
    else:
        o(f"    s_or_b64 s[{sBIG}:{sBIG+1}], s[{sBIG}:{sBIG+1}], vcc")
        o(f"    s_or_b64 s[{sBIG}:{sBIG+1}], s[{sBIG}:{sBIG+1}], s[{sSAVE}:{sSAVE+1}]")
o(f"""    s_cmp_eq_u64 s[{sBIG}:{sBIG+1}], 0
    s_cbranch_scc1 K_poll_ok
    s_cmp_ge_u32 s{sSPIN}, {SPIN_MAX}
    s_cbranch_scc1 K_poll_fail
    s_sleep 2
    s_branch K_poll
K_poll_fail:""")
for r in range(4): o(f"    v_mov_b32 v{vG+2*r}, 0")
o("K_poll_ok:")
stamp(4)
o(f"""    s_mov_b32 s{sSO}, 0
    s_mov_b32 s{sSO+1}, {64*CH*8}
    s_mov_b32 s{sSO+2}, {128*CH*8}
    s_mov_b32 s{sSO+3}, {192*CH*8}
    s_mov_b64 s[{sBIG}:{sBIG+1}], 0""")
for r in range(4):
    T = vG + 2*r
    o(f"""    v_bfe_u32 v{vTmp}, v{T}, 12, 12            ; count
    v_and_b32 v{vTmp+1}, 0xfff, v{T}
    v_add_u32 v{vTmp+1}, v{vTmp+1}, v{vJ}
    v_cmp_gt_u32 s[{sM+4*r}:{sM+4*r+1}], v{vTmp}, v{vJ}
    v_cmp_gt_u32 s[{sM+4*r+2}:{sM+4*r+3}], v{vTmp}, v{vJ16}
    v_cmp_lt_u32 vcc, 32, v{vTmp}
    v_lshl_add_u32 v{vTmp+1}, v{vTmp+1}, 3, v{vSeg}
    s_or_b64 s[{sBIG}:{sBIG+1}], s[{sBIG}:{sBIG+1}], vcc
    s_mov_b64 exec, s[{sM+4*r}:{sM+4*r+1}]
    s_cbranch_execz K_nok0_{r}
    buffer_load_dwordx2 v[{vEnt+4*r}:{vEnt+4*r+1}], v{vTmp+1}, s[{rCH}:{rCH+3}], s{sSO+r} offen{SC}
K_nok0_{r}:
    s_mov_b64 exec, s[{sM+4*r+2}:{sM+4*r+3}]
    s_cbranch_execz K_nok1_{r}
    buffer_load_dwordx2 v[{vEnt+4*r+2}:{vEnt+4*r+3}], v{vTmp+1}, s[{rCH}:{rCH+3}], s{sSO+r} offen offset:128{SC}
K_nok1_{r}:
    s_mov_b64 exec, -1""")
o(f"""    s_cmp_eq_u64 s[{sBIG}:{sBIG+1}], 0
    s_cbranch_scc1 K_nobig
    v_mov_b32 v{vTmp}, 0
    ds_write_b32 v{vTmp}, v{vOne} offset:{LDS_FLG}
K_nobig:
    s_waitcnt vmcnt(0)""")
stamp(5)
for e in range(8):
    d0 = vEnt + 2*e
    o(f"    v_lshlrev_b32 v{vIdx+e}, 2, v{d0}")
    o(f"    v_subrev_u32 v{vIdx+e}, s{sSB4}, v{vIdx+e}")
    o(f"    v_and_b32 v{vIdx+e}, 0xfc, v{vIdx+e}")
    o(f"    s_mov_b64 exec, s[{sM+2*e}:{sM+2*e+1}]")
    o(f"    s_cbranch_execz K_noat_{e}")
    o(f"    ds_add_rtn_u32 v{vRank+e}, v{vIdx+e}, v{vOne} offset:{LDS_CNT2}")
    o(f"K_noat_{e}:")
    o(f"    s_mov_b64 exec, -1")
o(f"""    s_waitcnt lgkmcnt(0)
    s_barrier""")
stamp(6)
o(f"""    ds_read_b32 v{vInc}, v{vLane4} offset:{LDS_CNT2}
    v_mov_b32 v{vTmp}, 0
    ds_read_b32 v{vTmp+1}, v{vTmp} offset:{LDS_FLG}
    s_or_b32 s{sT0}, s2, s3
    s_cmp_lg_u32 s{sT0}, 0
    s_cbranch_scc1 K_noep
    s_add_u32 s{rA}, s{sWS}, {WS_EP:#x}
    s_addc_u32 s{rA+1}, s{sWS+1}, 0
    s_and_b32 s{rA+1}, s{rA+1}, 0xffff
    s_mov_b32 s{rA+2}, 8
    s_mov_b32 s{rA+3}, 0x20000
    v_mov_b32 v8, s{sEP}
    v_mov_b32 v9, s{sEP+1}
    s_mov_b64 exec, 1
    buffer_store_dwordx2 v[8:9], v{vTmp}, s[{rA}:{rA+3}], 0 offen
    s_mov_b64 exec, -1
K_noep:
    s_waitcnt lgkmcnt(0)
    v_readfirstlane_b32 s{sT0}, v{vTmp+1}
    v_add_u32 v{vInc}, 3, v{vInc}
    v_lshrrev_b32 v{vInc}, 2, v{vInc}
    v_mov_b32 v{vBase}, v{vInc}""")
wave_scan(vInc)
o(f"""    v_sub_u32 v{vBase}, v{vInc}, v{vBase}
    v_lshlrev_b32 v{vBase}, 2, v{vBase}
    v_readlane_b32 s{sT1}, v{vInc}, 63
    s_cmp_lg_u32 s{sT0}, 0
    s_cbranch_scc1 K_slow
    s_cmp_gt_u32 s{sT1}, {CAPQ}
    s_cbranch_scc1 K_slow""")
vPos = 80
for e in range(8):
    o(f"    ds_bpermute_b32 v{vPos+e}, v{vIdx+e}, v{vBase}")
    o(f"    v_and_b32 v{vEnt+2*e}, 0xffffff00, v{vEnt+2*e}")
o("    s_waitcnt lgkmcnt(0)")
for e in range(8):
    d0 = vEnt + 2*e
    o(f"    v_add_lshl_u32 v{vPos+e}, v{vPos+e}, v{vRank+e}, 2")
    o(f"    s_mov_b64 exec, s[{sM+2*e}:{sM+2*e+1}]")
    o(f"    s_cbranch_execz K_nowr_{e}")
    o(f"    ds_write_b32 v{vPos+e}, v{d0} offset:{LDS_O}")
    o(f"    ds_write_b32 v{vPos+e}, v{d0+1} offset:{LDS_E}")
    o(f"K_nowr_{e}:")
    o(f"    s_mov_b64 exec, -1")
o(f"""    s_mov_b32 s{sQ}, s{sT1}
    s_waitcnt lgkmcnt(0)
    s_barrier""")
stamp(7)

vA, vDen, vNum, vAA, vLA = 8, 10, 12, 14, 15
vO = 16
vE = [20, 28]
vDr = [32, 36, 40, 44]
vU, vAa, vP, vS_, vQ, vR = 48, 52, 56, 58, 62, 64
vF = 66
RING = 4
o(f"""    s_mul_i32 s{sQ0}, s{sQ}, s3
    s_lshr_b32 s{sQ0}, s{sQ0}, 4
    s_add_u32 s{sT0}, s3, 1
    s_mul_i32 s{sQ1}, s{sQ}, s{sT0}
    s_lshr_b32 s{sQ1}, s{sQ1}, 4
    s_cmp_ge_u32 s{sQ0}, s{sQ1}
    s_cbranch_scc1 K_main_done
    v_cmp_ge_u32 vcc, s{sQ0}, v{vInc}
    s_lshl_b32 s{sT0}, s{sQ0}, 4
    v_mov_b32 v{vLA}, s{sT0}
    ds_read_b128 v[{vO}:{vO+3}], v{vLA} offset:{LDS_O}
    s_mov_b32 s{sC63}, 0x5f000000                ; 2^63
    s_mov_b32 s{sC63+1}, 0x5f000000
    s_mov_b32 s{sSEL}, 0x00003f80
    s_bcnt1_i32_b64 s{sNODE}, vcc
    s_mov_b32 s{sIT}, 0
    v_mov_b32 v{vDen}, 0
    v_mov_b32 v{vDen+1}, 0
    v_readlane_b32 s{sBND}, v{vInc}, s{sNODE}
    v_mov_b32 v{vNum}, 0
    v_mov_b32 v{vNum+1}, 0
    s_mul_i32 s{sT0}, s{sNODE}, 272
    v_add_u32 v{vAA}, s{sT0}, v{vLane4}
    ds_read_b32 v{vA}, v{vAA} offset:{LDS_A}
    s_add_u32 s{sT1}, s{sNODE}, s3
    s_lshl_b32 s{sSLOT}, s{sT1}, 9
    s_min_u32 s{sSTOP}, s{sBND}, s{sQ1}
    s_sub_u32 s{sREM}, s{sSTOP}, s{sQ0}
    s_setprio 3""")
for j in range(RING-1):
    o(f"    s_waitcnt lgkmcnt({1 if j == 0 else 0})")
    for i in range(4):
        o(f"    buffer_load_dword v{vDr[j]+i}, v{vO+i}, s[{rTAB}:{rTAB+3}], 0 offen{SC}")
    o(f"    ds_read_b128 v[{vO}:{vO+3}], v{vLA} offset:{LDS_O+16*(j+1)}")
o(f"    ds_read_b128 v[{vE[0]}:{vE[0]+3}], v{vLA} offset:{LDS_E}")
o(".p2align 3")
o("K_loop:")
for k in range(RING):
    e = vE[k%2]; en = vE[(k+1)%2]; Dk = vDr[k]; Dn = vDr[(k+RING-1)%RING]
    o(f"    s_waitcnt lgkmcnt(0)")
    o(f"    s_sub_u32 s{sREM}, s{sREM}, 1")
    for i in range(4):
        o(f"    buffer_load_dword v{Dn+i}, v{vO+i}, s[{rTAB}:{rTAB+3}], 0 offen{SC}")
    o(f"    ds_read_b128 v[{vO}:{vO+3}], v{vLA} offset:{LDS_O+16*(k+RING)}")
    o(f"    ds_read_b128 v[{en}:{en+3}], v{vLA} offset:{LDS_E+16*(k+1)}")
    o(f"    s_cbranch_scc1 K_h{k}")
    o(f"K_r{k}:")
    o(f"    s_waitcnt vmcnt({4*(RING-1)})")
    o(f"    v_pk_fma_f32 v[{vU}:{vU+1}], v[{e}:{e+1}], v[{vWc}:{vWc+1}], v[{vA}:{vA+1}] op_sel_hi:[1,0,0]")
    o(f"    v_pk_fma_f32 v[{vU+2}:{vU+3}], v[{e+2}:{e+3}], v[{vWc}:{vWc+1}], v[{vA}:{vA+1}] op_sel_hi:[1,0,0]")
    for i in range(4): o(f"    v_dot2c_f32_bf16 v{vU+i}, s{sSEL}, v{Dk+i}")
    for i in range(4): o(f"    v_exp_f32_e64 v{vU+i}, v{vU+i} clamp")
    o(f"    v_pk_fma_f32 v[{vAa}:{vAa+1}], v[{vU}:{vU+1}], s[{sC63}:{sC63+1}], 1.0 op_sel_hi:[1,0,0]")
    o(f"    v_pk_fma_f32 v[{vAa+2}:{vAa+3}], v[{vU+2}:{vU+3}], s[{sC63}:{sC63+1}], 1.0 op_sel_hi:[1,0,0]")
    o(f"    v_pk_mul_f32 v[{vP}:{vP+1}], v[{vAa}:{vAa+1}], v[{vAa+2}:{vAa+3}]")
    o(f"    v_pk_add_f32 v[{vS_}:{vS_+1}], v[{vAa}:{vAa+1}], v[{vAa+2}:{vAa+3}]")
    o(f"    v_rcp_f32 v{vR}, v{vP}")
    o(f"    v_rcp_f32 v{vR+1}, v{vP+1}")
    o(f"    v_pk_mul_f32 v[{vQ}:{vQ+1}], v[{vAa+2}:{vAa+3}], v[{Dk}:{Dk+1}]")
    o(f"    v_pk_fma_f32 v[{vQ}:{vQ+1}], v[{vAa}:{vAa+1}], v[{Dk+2}:{Dk+3}], v[{vQ}:{vQ+1}]")
    o(f"    v_pk_fma_f32 v[{vDen}:{vDen+1}], v[{vS_}:{vS_+1}], v[{vR}:{vR+1}], v[{vDen}:{vDen+1}]")
    o(f"    v_pk_fma_f32 v[{vNum}:{vNum+1}], v[{vQ}:{vQ+1}], v[{vR}:{vR+1}], v[{vNum}:{vNum+1}]")
o(f"""    v_add_u32 v{vLA}, {16*RING}, v{vLA}
    s_add_u32 s{sIT}, s{sIT}, 1
    s_cmp_eq_u32 s{sIT}, 4
    s_cbranch_scc1 K_p2
    s_cmp_eq_u32 s{sIT}, 7
    s_cbranch_scc1 K_p1
    s_cmp_eq_u32 s{sIT}, 9
    s_cbranch_scc0 K_loop
    s_setprio 0
    s_branch K_loop
K_p2:
    s_setprio 2
    s_branch K_loop
K_p1:
    s_setprio 1
    s_branch K_loop""")
for k in range(RING):
    o(f"""K_h{k}:
    v_add_f32 v{vF}, v{vDen}, v{vDen+1}
    v_add_f32 v{vF+1}, v{vNum}, v{vNum+1}
    v_add_u32 v{vF+2}, s{sSLOT}, v{vLane4}
    s_lshl_b32 s{sT0}, 1, s3
    v_mov_b32 v{vF+3}, s{sT0}
    s_lshl_b32 s{sT1}, s{sNODE}, 2
    v_mov_b32 v{vDen}, s{sT1}
    ds_write_b32 v{vF+2}, v{vF} offset:{LDS_SL}
    ds_write_b32 v{vF+2}, v{vF+1} offset:{LDS_SL+256}
    s_mov_b64 exec, 1
    ds_or_b32 v{vDen}, v{vF+3} offset:{LDS_MSK}
    s_mov_b64 exec, -1
    s_cmp_ge_u32 s{sSTOP}, s{sQ1}
    s_cbranch_scc1 K_main_done
    v_mov_b32 v{vDen}, 0
    v_mov_b32 v{vDen+1}, 0
    v_mov_b32 v{vNum}, 0
    v_mov_b32 v{vNum+1}, 0
K_hn{k}:
    s_add_u32 s{sNODE}, s{sNODE}, 1
    v_readlane_b32 s{sBND}, v{vInc}, s{sNODE}
    v_add_u32 v{vAA}, 272, v{vAA}
    s_add_u32 s{sSLOT}, s{sSLOT}, 512
    s_nop 1
    s_cmp_eq_u32 s{sBND}, s{sSTOP}
    s_cbranch_scc1 K_hn{k}
    ds_read_b32 v{vA}, v{vAA} offset:{LDS_A}
    s_mov_b32 s{sT0}, s{sSTOP}
    s_min_u32 s{sSTOP}, s{sBND}, s{sQ1}
    s_sub_u32 s{sREM}, s{sSTOP}, s{sT0}
    s_sub_u32 s{sREM}, s{sREM}, 1
    s_waitcnt lgkmcnt(0)
    s_branch K_r{k}""")

sP, sCNT, sPOS, sN, sEN = 72, 73, 74, 75, 76
o(f"""K_slow:
    s_mov_b32 s{sC63}, 0x5f000000
    s_mov_b32 s{sSEL}, 0x00003f80
    s_mov_b32 s{sN}, s3
    v_mov_b32 v{vTmp}, 0
K_s_node:
    s_cmp_ge_u32 s{sN}, s{sNB}
    s_cbranch_scc1 K_main_done
    s_mul_i32 s{sT0}, s{sN}, 272
    v_add_u32 v{vAA}, s{sT0}, v{vLane4}
    ds_read_b32 v{vA}, v{vAA} offset:{LDS_A}
    v_mov_b32 v{vDen}, 0
    v_mov_b32 v{vNum}, 0
    s_mov_b32 s{sP}, 0
    s_waitcnt lgkmcnt(0)
K_s_prod:
    s_lshl_b32 s{sT0}, s{sP}, 11
    s_lshl_b32 s{sT1}, s2, 3
    s_add_u32 s{sT0}, s{sT0}, s{sT1}
    buffer_load_dword v{vU}, v{vTmp}, s[{rOFF}:{rOFF+3}], s{sT0} offen{SC}
    s_waitcnt vmcnt(0)
    v_readfirstlane_b32 s{sCNT}, v{vU}
    s_nop 3
    s_and_b32 s{sPOS}, s{sCNT}, 0xfff
    s_bfe_u32 s{sCNT}, s{sCNT}, 0xc000c
    s_mul_i32 s{sT0}, s{sP}, {CH}
    s_add_u32 s{sPOS}, s{sPOS}, s{sT0}
    s_lshl_b32 s{sPOS}, s{sPOS}, 3
K_s_ent:
    s_cmp_eq_u32 s{sCNT}, 0
    s_cbranch_scc1 K_s_prod_next
    buffer_load_dwordx2 v[{vU}:{vU+1}], v{vTmp}, s[{rCH}:{rCH+3}], s{sPOS} offen{SC}
    s_waitcnt vmcnt(0)
    v_readfirstlane_b32 s{sEN}, v{vU}
    s_nop 3
    s_sub_u32 s{sT0}, s{sEN}, s{sSB}
    s_and_b32 s{sT0}, s{sT0}, 63
    s_cmp_lg_u32 s{sT0}, s{sN}
    s_cbranch_scc1 K_s_ent_next
    s_and_b32 s{sT0}, s{sEN}, 0xffffff00
    buffer_load_dword v{vU+2}, off, s[{rTAB}:{rTAB+3}], s{sT0}{SC}
    v_fma_f32 v{vU}, v{vU+1}, v{vWc}, v{vA}
    s_waitcnt vmcnt(0) lgkmcnt(0)
    v_dot2c_f32_bf16 v{vU}, s{sSEL}, v{vU+2}
    s_nop 2
    v_exp_f32_e64 v{vU}, v{vU} clamp
    s_nop 0
    v_fma_f32 v{vU}, v{vU}, s{sC63}, 1.0
    v_rcp_f32 v{vU}, v{vU}
    s_nop 0
    v_add_f32 v{vDen}, v{vDen}, v{vU}
    v_fmac_f32 v{vNum}, v{vU}, v{vU+2}
K_s_ent_next:
    s_add_u32 s{sPOS}, s{sPOS}, 8
    s_sub_u32 s{sCNT}, s{sCNT}, 1
    s_branch K_s_ent
K_s_prod_next:
    s_add_u32 s{sP}, s{sP}, 1
    s_cmp_lt_u32 s{sP}, {NB}
    s_cbranch_scc1 K_s_prod
    s_lshl_b32 s{sT0}, s{sN}, 9
    v_add_u32 v{vF+2}, s{sT0}, v{vLane4}
    s_waitcnt lgkmcnt(0)
    ds_write_b32 v{vF+2}, v{vDen} offset:{LDS_SL}
    ds_write_b32 v{vF+2}, v{vNum} offset:{LDS_SL+256}
    s_lshl_b32 s{sT0}, s{sN}, 2
    v_mov_b32 v{vF+3}, s{sT0}
    s_mov_b64 exec, 1
    ds_write_b32 v{vF+3}, v{vOne} offset:{LDS_MSK}
    s_mov_b64 exec, -1
    s_add_u32 s{sN}, s{sN}, 16
    s_branch K_s_node""")

eN, eC, eM, eW, eAd = 8, 9, 10, 11, 12
eDen, eNum, eT0, eT1, eU = 16, 20, 28, 32, 36
o(f"""K_main_done:
    s_setprio 0
    s_waitcnt vmcnt(0) lgkmcnt(0)""")
stamp(8)
o(f"""    s_barrier
    s_cmp_ge_u32 s3, 10
    s_cbranch_scc1 K_exit
    v_lshrrev_b32 v{eN}, 4, v0                   ; node
    v_and_b32 v{eC}, 15, v0
    v_lshlrev_b32 v{eAd}, 2, v{eN}
    ds_read_b32 v{eM}, v{eAd} offset:{LDS_MSK}
    v_mul_u32_u24 v{eAd}, 272, v{eN}
    v_lshl_add_u32 v{eAd}, v{eC}, 4, v{eAd}
    v_add_u32 v{eAd}, {LDS_U}, v{eAd}
    ds_read_b128 v[{eU}:{eU+3}], v{eAd}""")
for i in range(4):
    o(f"    v_mov_b32 v{eDen+i}, 0")
    o(f"    v_mov_b32 v{eNum+i}, 0")
o(f"""    s_waitcnt lgkmcnt(0)
K_e_loop:
    v_cmp_ne_u32 vcc, 0, v{eM}
    s_and_saveexec_b64 s[{sSAVE}:{sSAVE+1}], vcc
    s_cbranch_execz K_e_end
    v_ffbl_b32 v{eW}, v{eM}
    v_add_u32 v{eW}, v{eW}, v{eN}
    v_lshlrev_b32 v{eW}, 9, v{eW}
    v_lshl_add_u32 v{eW}, v{eC}, 4, v{eW}
    ds_read_b128 v[{eT0}:{eT0+3}], v{eW} offset:{LDS_SL}
    ds_read_b128 v[{eT1}:{eT1+3}], v{eW} offset:{LDS_SL+256}
    v_add_u32 v{eW}, -1, v{eM}
    v_and_b32 v{eM}, v{eM}, v{eW}
    s_waitcnt lgkmcnt(0)""")
for i in range(4):
    o(f"    v_add_f32 v{eDen+i}, v{eDen+i}, v{eT0+i}")
    o(f"    v_add_f32 v{eNum+i}, v{eNum+i}, v{eT1+i}")
o(f"""    s_mov_b64 exec, s[{sSAVE}:{sSAVE+1}]
    s_branch K_e_loop
K_e_end:
    s_mov_b64 exec, s[{sSAVE}:{sSAVE+1}]""")
for i in range(4): o(f"    v_add_f32 v{eDen+i}, 0x358637bd, v{eDen+i}")
for i in range(4): o(f"    v_rcp_f32 v{eDen+i}, v{eDen+i}")
o(f"""    v_lshlrev_b32 v{eT0}, 16, v{vXe}
    v_and_b32 v{eT0+1}, 0xffff0000, v{vXe}
    v_lshlrev_b32 v{eT0+2}, 16, v{vXe+1}
    v_and_b32 v{eT0+3}, 0xffff0000, v{vXe+1}""")
for i in range(4): o(f"    v_fma_f32 v{eU+i}, v{eNum+i}, v{eDen+i}, v{eU+i}")
for i in range(4): o(f"    v_max_f32 v{eU+i}, 0, v{eU+i}")
for i in range(4): o(f"    v_add_f32 v{eU+i}, v{eU+i}, v{eT0+i}")
o(f"""    v_cvt_pk_bf16_f32 v{eT1}, v{eU}, v{eU+1}
    v_cvt_pk_bf16_f32 v{eT1+1}, v{eU+2}, v{eU+3}
    v_add_u32 v{eAd}, s{sSB}, v{eN}
    v_lshlrev_b32 v{eAd}, 7, v{eAd}
    v_lshl_add_u32 v{eAd}, v{eC}, 3, v{eAd}
    v_cmp_gt_u32 vcc, s{sNB}, v{eN}
    s_and_saveexec_b64 s[{sSAVE}:{sSAVE+1}], vcc
    s_cbranch_execz K_exit
    buffer_store_dwordx2 v[{eT1}:{eT1+1}], v{eAd}, s[{rOUT}:{rOUT+3}], 0 offen
K_exit:""")
if STAMP:
    o("    s_mov_b64 exec, -1\n    s_waitcnt vmcnt(0)")
    stamp(9)
    stamp_flush()
o("K_done:\n    s_endpgm")
o(f""".section .rodata,"a"
.p2align 6
.amdhsa_kernel {NAME}
  .amdhsa_next_free_vgpr 128
  .amdhsa_next_free_sgpr 102
  .amdhsa_accum_offset 128
  .amdhsa_group_segment_fixed_size 0
  .amdhsa_kernarg_size 96
  .amdhsa_user_sgpr_count 2
  .amdhsa_user_sgpr_kernarg_segment_ptr 1
  .amdhsa_system_sgpr_workgroup_id_x 1
  .amdhsa_dx10_clamp 0
.end_amdhsa_kernel""")
print("\n".join(L))
```

```python
import sys
FL = set(sys.argv[1].split(',')) if len(sys.argv) > 1 else set()
STAMP = "stamp" in FL
NAME = "standalone__edge_featured_mpnn_gatedgcn__graph_kernel"

L = []
def o(s=""): L.append(s)

N, D, E = 10000, 64, 640000
NB = 256
CH = E // NB
BMUL = 26843
WS_T = 0
T_BYTES = (N+1)*256
WS_O = 0x280000
O_BYTES = NB*NB*8
WS_C = 0x300000
C_BYTES = NB*CH*8
WS_EP = 0x7F0000
WS_STAMP = 0x800000
NLOG2E = 0xBFB8AA3B
WROW = 144
SPIN_MAX = 400000
SC = " sc1"

LDS_CNT2, LDS_MSK, LDS_FLG = 0, 256, 512
LDS_CNT1, LDS_BASE1 = 768, 1792
LDS_O = 2816
LDS_E = LDS_O + 12800
LDS_A = LDS_E + 12800
LDS_SL = LDS_A + 48*272
LDS_U = LDS_SL + 56*512
LDS_W2 = LDS_U + 48*272
LDS_TOT = LDS_W2 + 2*64*WROW
LDS_W1 = LDS_O
LDS_SORT = LDS_SL
CAPQ = 768
assert LDS_SORT + CH*8 + 16 < 65536 and LDS_W1 + 2*64*WROW <= LDS_A

def srd(dst, base, nrec, w3=0x20000, stride=0, off=0):
    if off:
        o(f"    s_add_u32 s{dst}, s{base}, {off:#x}")
        o(f"    s_addc_u32 s{dst+1}, s{base+1}, 0")
        o(f"    s_and_b32 s{dst+1}, s{dst+1}, 0xffff")
    else:
        o(f"    s_mov_b32 s{dst}, s{base}")
        o(f"    s_and_b32 s{dst+1}, s{base+1}, 0xffff")
    if stride: o(f"    s_or_b32 s{dst+1}, s{dst+1}, {stride<<16:#x}")
    o(f"    s_mov_b32 s{dst+2}, {nrec:#x}")
    o(f"    s_mov_b32 s{dst+3}, {w3:#x}")

def wave_scan(v):
    for ctl in ("row_shr:1 row_mask:0xf bank_mask:0xf bound_ctrl:1", "row_shr:2 row_mask:0xf bank_mask:0xf bound_ctrl:1",
                "row_shr:4 row_mask:0xf bank_mask:0xf bound_ctrl:1", "row_shr:8 row_mask:0xf bank_mask:0xf bound_ctrl:1",
                "row_bcast:15 row_mask:0xa bank_mask:0xf", "row_bcast:31 row_mask:0xc bank_mask:0xf"):
        o("    s_nop 1")
        o(f"    v_add_u32_dpp v{v}, v{v}, v{v} {ctl}")

sX, sEA, sSRC, sDST = 4, 6, 8, 10
sWA, sWB, sWC, sWU = 12, 14, 16, 18
sWV, sOUT = 20, 22
sWS = 24
sEP = 26
rA, rB, rC = 28, 32, 36
rX, rOFF, rCH, rTAB, rTABW, rOUT = 40, 44, 48, 52, 56, 60
sSB, sNB, sSB4 = 64, 65, 66
sT0, sT1, sT2, sT3 = 67, 68, 69, 70
sM = 72
sV625 = 72
sBIG = 88
sSO = 90
sTAGL, sTAGH = 94, 95
sSAVE = 96
sSPIN = 98
sGOFF = 99
sSTMP = 100
sQ, sQ0, sQ1, sNODE, sBND, sSTOP, sREM = 72, 73, 74, 75, 76, 77, 78
sC63, sSEL, sSLOT, sIT = 80, 82, 83, 84

vLane, vWv, vT16, vLane4, vJ, vJ16, vSeg = 1, 2, 3, 4, 5, 6, 7
vW2, vXf2, vXe, vWc, vW1 = 12, 16, 24, 26, 28
vOne = 60
vTmp = 62
vST = 127

def stamp(idx, pre=False):
    if not STAMP: return
    if not pre:
        o(f"    s_memrealtime s[{sSTMP}:{sSTMP+1}]")
        o(f"    s_waitcnt lgkmcnt(0)")
    o(f"    v_writelane_b32 v{vST}, s{sSTMP}, {idx}")
def stampc(idx):
    if not STAMP: return
    o(f"    s_memtime s[{sSTMP}:{sSTMP+1}]")
    o(f"    s_waitcnt lgkmcnt(0)")
    o(f"    v_writelane_b32 v{vST}, s{sSTMP}, {idx}")
def stamp_flush():
    if not STAMP: return
    o(f"""    s_mov_b64 exec, -1
    s_lshl_b32 s{sT0}, s2, 4
    s_add_u32 s{sT0}, s{sT0}, s3
    s_lshl_b32 s{sT0}, s{sT0}, 6
    s_add_u32 s{rA}, s{sWS}, {WS_STAMP:#x}
    s_addc_u32 s{rA+1}, s{sWS+1}, 0
    s_and_b32 s{rA+1}, s{rA+1}, 0xffff
    s_mov_b32 s{rA+2}, 0x100000
    s_mov_b32 s{rA+3}, 0x20000
    s_lshl_b32 s{sT0}, s{sT0}, 1
    s_mov_b32 exec_lo, -1
    s_mov_b32 exec_hi, 0
    buffer_store_dword v{vST}, v{vLane4}, s[{rA}:{rA+3}], s{sT0} offen
    s_mov_b64 exec, -1""")

o(f"; @launch grid=({NB},1,1) block=(1024,1,1) lds={LDS_TOT}")
o('.amdgcn_target "amdgcn-amd-amdhsa--gfx950"')
o(".text")
o(f".globl {NAME}\n.p2align 8\n.type {NAME},@function\n{NAME}:")
if STAMP: o(f"    s_memrealtime s[{sSTMP}:{sSTMP+1}]")
LDS_TIMG = LDS_U
o(f"""    s_cmp_ge_u32 s2, {NB}
    s_cbranch_scc1 K_done
    s_load_dwordx8 s[4:11], s[0:1], 0
    s_load_dwordx8 s[12:19], s[0:1], 32        ; w_a, w_b, w_c, w_u
    s_load_dwordx4 s[20:23], s[0:1], 64        ; w_v, out
    s_load_dwordx2 s[{sWS}:{sWS+1}], s[0:1], 88
    v_and_b32 v{vLane}, 63, v0
    v_lshrrev_b32 v{vWv}, 6, v0
    v_lshlrev_b32 v{vT16}, 4, v0
    v_readfirstlane_b32 s3, v{vWv}
    v_lshlrev_b32 v{vLane4}, 2, v{vLane}
    v_mov_b32 v{vOne}, 1
    v_mov_b32 v{vTmp}, 0
    v_lshlrev_b32 v{vTmp+1}, 2, v0
    v_lshlrev_b32 v8, 3, v0                   ; t*8
    v_cmp_gt_u32 vcc, {CH//4}, v0
    s_mul_i32 s{sSO}, s2, {CH*4}
    s_mul_i32 s{sSO+1}, s2, {CH*2}
    s_mov_b64 s[{sV625}:{sV625+1}], vcc
    s_cmp_ge_u32 s3, 7
    s_cbranch_scc1 K_nozero
    ds_write_b32 v{vTmp+1}, v{vTmp}
K_nozero:
    v_and_b32 v{vTmp+1}, 511, v0
    v_lshlrev_b32 v{vTmp+2}, 4, v{vTmp+1}
    v_and_b32 v{vJ}, 15, v{vLane}
    v_lshrrev_b32 v{vTmp+5}, 4, v{vLane}
    s_cmp_ge_u32 s3, 10
    s_cbranch_scc1 K_g_loads
    s_waitcnt lgkmcnt(0)""")
stamp(0, pre=True)
srd(rA, sDST, E*4); srd(rB, sSRC, E*4); srd(rC, sEA, E*2)
o(f"""    s_mov_b64 exec, s[{sV625}:{sV625+1}]
    buffer_load_dwordx4 v[32:35], v{vT16}, s[{rA}:{rA+3}], s{sSO} offen       ; dst
    buffer_load_dwordx4 v[36:39], v{vT16}, s[{rB}:{rB+3}], s{sSO} offen       ; src
    buffer_load_dwordx2 v[40:41], v8, s[{rC}:{rC+3}], s{sSO+1} offen          ; e
    s_mov_b64 exec, -1
    s_branch K_common_loads
K_g_loads:
    s_sub_u32 s{sT0}, s3, 10
    s_lshr_b32 s{sT0}, s{sT0}, 1
    s_lshl_b32 s{sT0}, s{sT0}, 4              ; 16*tau
    s_mul_i32 s{sT1}, s2, 40
    s_add_u32 s{sT1}, s{sT1}, s{sT0}
    v_add_u32 v9, s{sT1}, v{vJ}               ; node
    v_lshlrev_b32 v10, 7, v9
    v_lshl_add_u32 v10, v{vTmp+5}, 4, v10
    s_waitcnt lgkmcnt(0)""")
stamp(0, pre=True)
srd(rA, sX, N*D*2)
o(f"""    buffer_load_dwordx4 v[32:35], v10, s[{rA}:{rA+3}], 0 offen
    buffer_load_dwordx4 v[36:39], v10, s[{rA}:{rA+3}], 0 offen offset:64
    buffer_load_ushort v40, v{vLane4}, s[{rA}:{rA+3}], 0 offen
K_common_loads:
    s_cmp_ge_u32 s3, 8
    s_cselect_b32 s{sT0}, s{sWV}, s{sWB}
    s_cselect_b32 s{sT1}, s{sWV+1}, s{sWB+1}
    s_cselect_b32 s{sT2}, {64*WROW}, 0
    s_mov_b32 s{rA}, s{sT0}
    s_and_b32 s{rA+1}, s{sT1}, 0xffff
    s_mov_b32 s{rA+2}, {D*D*2}
    s_mov_b32 s{rA+3}, 0x20000
    buffer_load_dwordx4 v[{vW1}:{vW1+3}], v{vTmp+2}, s[{rA}:{rA+3}], 0 offen
    s_add_u32 s{sSAVE}, s{sWS}, {WS_EP:#x}
    s_addc_u32 s{sSAVE+1}, s{sWS+1}, 0
    s_load_dwordx2 s[{sEP}:{sEP+1}], s[{sSAVE}:{sSAVE+1}], 0
    s_barrier
    v_and_b32 v{vTmp+1}, 511, v0
    v_lshrrev_b32 v{vTmp+3}, 3, v{vTmp+1}
    v_mul_u32_u24 v{vTmp+3}, {WROW}, v{vTmp+3}
    v_and_b32 v{vTmp+1}, 7, v0
    v_lshl_add_u32 v{vTmp+3}, v{vTmp+1}, 4, v{vTmp+3}
    v_add_u32 v{vTmp+3}, s{sT2}, v{vTmp+3}
    s_mul_i32 s{sSB}, s2, 40000
    s_lshr_b32 s{sSB}, s{sSB}, 10
K_sb:
    s_mul_i32 s{sT0}, s{sSB}, {BMUL}
    s_lshr_b32 s{sT0}, s{sT0}, 20
    s_cmp_ge_u32 s{sT0}, s2
    s_cbranch_scc1 K_sb_ok
    s_add_u32 s{sSB}, s{sSB}, 1
    s_branch K_sb
K_sb_ok:
    s_add_u32 s{sT1}, s2, 1
    s_mul_i32 s{sNB}, s{sT1}, 40000
    s_lshr_b32 s{sNB}, s{sNB}, 10
K_se:
    s_mul_i32 s{sT0}, s{sNB}, {BMUL}
    s_lshr_b32 s{sT0}, s{sT0}, 20
    s_cmp_ge_u32 s{sT0}, s{sT1}
    s_cbranch_scc1 K_se_ok
    s_add_u32 s{sNB}, s{sNB}, 1
    s_branch K_se
K_se_ok:
    s_min_u32 s{sNB}, s{sNB}, {N}
    s_sub_u32 s{sNB}, s{sNB}, s{sSB}
    s_lshl_b32 s{sSB4}, s{sSB}, 2
    v_add_u32 v{vJ16}, 16, v{vJ}
    v_lshrrev_b32 v{vTmp}, 4, v0              ; t>>4
    v_mul_u32_u24 v{vSeg}, {4*CH*8}, v{vTmp}
    s_lshr_b32 s{sT0}, s3, 2
    s_lshl_b32 s{sT0}, s{sT0}, 4
    s_add_u32 s{sT0}, s{sT0}, s{sSB}
    v_add_u32 v{vTmp+4}, s{sT0}, v{vJ}
    v_lshlrev_b32 v{vTmp+4}, 7, v{vTmp+4}
    v_lshl_add_u32 v{vTmp+4}, v{vTmp+5}, 4, v{vTmp+4}
    v_add_u32 v{vTmp+6}, s{sSB}, v{vTmp}
    v_lshlrev_b32 v{vTmp+6}, 7, v{vTmp+6}
    v_lshl_add_u32 v{vTmp+6}, v{vJ}, 3, v{vTmp+6}
    v_lshlrev_b32 v{vTmp+7}, 1, v{vLane}""")
srd(rX, sX, N*D*2)
srd(rC, sWC, D*2)
o(f"""    s_cmp_ge_u32 s3, 8
    s_cselect_b32 s{sT2}, s{sWU}, s{sWA}
    s_cselect_b32 s{sT3}, s{sWU+1}, s{sWA+1}
    s_mov_b32 s{rB}, s{sT2}
    s_and_b32 s{rB+1}, s{sT3}, 0xffff
    s_mov_b32 s{rB+2}, {D*D*2}
    s_mov_b32 s{rB+3}, 0x20000""")
srd(rOFF, sWS, O_BYTES, off=WS_O)
srd(rCH, sWS, C_BYTES, off=WS_C)
srd(rTAB, sWS, T_BYTES, w3=0x00800000, stride=4, off=WS_T)
srd(rTABW, sWS, T_BYTES, off=WS_T)
srd(rOUT, sOUT, N*D*2)
o(f"""    s_cmp_ge_u32 s3, 10
    s_cbranch_scc1 K_g_b1""")
o(f"""    s_mov_b64 exec, s[{sV625}:{sV625+1}]
    s_waitcnt vmcnt(3)""")
for i in range(4): o(f"    v_mul_u32_u24 v{44+i}, {BMUL}, v{32+i}")
for i in range(4): o(f"    v_lshrrev_b32 v{44+i}, 18, v{44+i}")
for i in range(4): o(f"    v_and_b32 v{44+i}, 0x3fc, v{44+i}")
for i in range(4): o(f"    ds_add_rtn_u32 v{48+i}, v{44+i}, v{vOne} offset:{LDS_CNT1}")
for i in range(4): o(f"    v_and_b32 v{32+i}, 63, v{32+i}")
o("    s_waitcnt vmcnt(1)")
for i in range(4): o(f"    v_lshl_or_b32 v{52+2*i}, v{36+i}, 8, v{32+i}")
o(f"""    v_lshlrev_b32 v53, 16, v40
    v_and_b32 v55, 0xffff0000, v40
    v_lshlrev_b32 v57, 16, v41
    v_and_b32 v59, 0xffff0000, v41
    s_mov_b64 exec, -1
K_g_b1:
    s_waitcnt vmcnt(0)
    ds_write_b128 v{vTmp+3}, v[{vW1}:{vW1+3}] offset:{LDS_W1}
    buffer_load_dwordx4 v[{vW2}:{vW2+3}], v{vTmp+2}, s[{rB}:{rB+3}], 0 offen
    buffer_load_dwordx4 v[{vXf2}:{vXf2+3}], v{vTmp+4}, s[{rX}:{rX+3}], 0 offen
    buffer_load_dwordx4 v[{vXf2+4}:{vXf2+7}], v{vTmp+4}, s[{rX}:{rX+3}], 0 offen offset:64
    buffer_load_dwordx2 v[{vXe}:{vXe+1}], v{vTmp+6}, s[{rX}:{rX+3}], 0 offen
    buffer_load_ushort v{vWc}, v{vTmp+7}, s[{rC}:{rC+3}], 0 offen""")
stamp(1)
stampc(16)
o(f"""    s_waitcnt lgkmcnt(0)
    s_barrier""")
stamp(2)
o(f"""    ; transposing-read address (no tile offset): (8g + r)*WROW + c*8  -> v69
    v_bfe_u32 v{vTmp+7}, v{vLane}, 2, 2
    v_lshl_add_u32 v{vTmp+7}, v{vTmp+5}, 3, v{vTmp+7}
    v_mul_u32_u24 v{vTmp+7}, {WROW}, v{vTmp+7}
    v_and_b32 v{vTmp+1}, 3, v{vLane}
    v_lshl_add_u32 v{vTmp+7}, v{vTmp+1}, 3, v{vTmp+7}
    s_cmp_ge_u32 s3, 10
    s_cbranch_scc1 K_g_tab
    s_cmp_lg_u32 s3, 0
    s_cbranch_scc1 K_noscan
    ds_read_b128 v[72:75], v{vT16} offset:{LDS_CNT1}
    s_waitcnt lgkmcnt(0)
    v_add_u32 v76, v72, v73
    v_add_u32 v77, v76, v74
    v_add_u32 v78, v77, v75
    v_mov_b32 v79, v78""")
wave_scan(79)
o(f"""    v_sub_u32 v80, v79, v78
    v_add_u32 v81, v80, v72
    v_add_u32 v82, v80, v76
    v_add_u32 v83, v80, v77
    ds_write_b128 v{vT16}, v[80:83] offset:{LDS_BASE1}
K_noscan:
    s_waitcnt lgkmcnt(0)
    s_barrier""")
stamp(3)
o(f"    s_mov_b64 exec, s[{sV625}:{sV625+1}]")
for i in range(4): o(f"    ds_read_b32 v{40+i}, v{44+i} offset:{LDS_BASE1}")
o("    s_waitcnt lgkmcnt(0)")
for i in range(4): o(f"    v_add_lshl_u32 v{40+i}, v{40+i}, v{48+i}, 3")
for i in range(4): o(f"    ds_write_b64 v{40+i}, v[{52+2*i}:{53+2*i}] offset:{LDS_SORT}")
o(f"""    s_mov_b64 exec, -1
    s_branch K_b3""")
o(f"""K_g_tab:
    s_sub_u32 s{sT0}, s3, 10
    s_and_b32 s{sT1}, s{sT0}, 1               ; half
    s_lshl_b32 s{sT2}, s{sT1}, 6
    v_add_u32 v8, s{sT2}, v{vTmp+7}""")
def frag(k, s_):
    f = 40 + (k*2+s_)*4
    return f + 12 if f >= 60 else f
for m in range(2):
    for jj in range(2):
        for s_ in range(2):
            f = frag(m*2+jj, s_)
            off = LDS_W1 + m*64*WROW + s_*32*WROW + jj*32
            o(f"    ds_read_b64_tr_b16 v[{f}:{f+1}], v8 offset:{off}")
            o(f"    ds_read_b64_tr_b16 v[{f+2}:{f+3}], v8 offset:{off+4*WROW}")
o(f"""    ; image address: (16*tau + (lane&15))*272 + (32*half + 4*g)*4
    s_lshr_b32 s{sT0}, s{sT0}, 1
    s_lshl_b32 s{sT0}, s{sT0}, 4
    v_add_u32 v10, s{sT0}, v{vJ}
    v_mul_u32_u24 v10, 272, v10
    v_lshl_add_u32 v10, v{vTmp+5}, 4, v10
    s_lshl_b32 s{sT1}, s{sT1}, 7
    s_add_u32 s{sT1}, s{sT1}, {LDS_TIMG}
    v_add_u32 v10, s{sT1}, v10""")
for k in range(4):
    a = 100 + k*4
    o(f"    s_waitcnt lgkmcnt({12-4*k})")
    o(f"    v_mfma_f32_16x16x32_bf16 v[{a}:{a+3}], v[{frag(k,0)}:{frag(k,0)+3}], v[32:35], 0")
    o(f"    v_mfma_f32_16x16x32_bf16 v[{a}:{a+3}], v[{frag(k,1)}:{frag(k,1)+3}], v[36:39], v[{a}:{a+3}]")
o(f"""    s_barrier                                  ; B2""")
stamp(3)
o(f"""    s_mov_b32 s{sT0}, {NLOG2E:#x}
    s_mov_b32 s{sT2}, 0xffff0000
    s_mov_b32 s{sT3}, 0x80000000
    s_mov_b32 s{sSPIN}, 0x7fffffff
    s_nop 4""")
for jj in range(2):
    B = 100 + jj*4; Vv = 108 + jj*4
    t = 40
    for i in range(4): o(f"    v_mul_f32 v{B+i}, s{sT0}, v{B+i}")
    o(f"    v_cvt_pk_bf16_f32 v{t}, v{B}, v{B+1}")
    o(f"    v_cvt_pk_bf16_f32 v{t+1}, v{B+2}, v{B+3}")
    o(f"    v_and_b32 v{B}, 0xffff, v{t}")
    o(f"    v_lshrrev_b32 v{B+1}, 16, v{t}")
    o(f"    v_and_b32 v{B+2}, 0xffff, v{t+1}")
    o(f"    v_lshrrev_b32 v{B+3}, 16, v{t+1}")
    T = 44 + jj*4
    for i in range(4): o(f"    v_and_b32 v{T+i}, s{sSPIN}, v{Vv+i}")
    for i in range(4): o(f"    v_add_u32 v{T+i}, 0x8000, v{T+i}")
    for i in range(4): o(f"    v_sub_u32_e64 v{T+i}, v{T+i}, v{B+i} clamp")
    for i in range(4): o(f"    v_and_or_b32 v{T+i}, v{T+i}, s{sT2}, v{B+i}")
    for i in range(4): o(f"    v_and_or_b32 v{T+i}, v{Vv+i}, s{sT3}, v{T+i}")
    o(f"    ds_write_b128 v10, v[{T}:{T+3}] offset:{jj*64}")
o(f"""K_b3:
    s_waitcnt vmcnt(0) lgkmcnt(0)
    v_add_u32 v{vTmp+1}, {LDS_W2}, v{vTmp+3}
    s_barrier""")
stamp(4)
stampc(17)
o(f"""    ds_read_b128 v[32:35], v{vT16} offset:{LDS_SORT}
    ds_write_b128 v{vTmp+1}, v[{vW2}:{vW2+3}]   ; stage w_a|w_u
    s_mul_i32 s{sT0}, s2, {CH*8}
    v_add_u32 v8, {1024*16}, v{vT16}
    s_cmp_lt_u32 s3, 4
    s_cbranch_scc1 K_co_a
    s_cmp_lt_u32 s3, 6
    s_cbranch_scc1 K_co_one
    s_cmp_ge_u32 s2, 250
    s_cbranch_scc1 K_co_one
    v_subrev_u32 v9, 384, v0                   ; piece = t - 384
    v_lshrrev_b32 v10, 4, v9
    v_mul_u32_u24 v10, 272, v10
    v_lshl_add_u32 v10, v{vJ}, 4, v10
    v_add_u32 v10, {LDS_TIMG}, v10
    ds_read_b128 v[36:39], v10
    v_lshlrev_b32 v9, 4, v9
    s_mul_i32 s{sT1}, s2, {40*256}
    s_waitcnt lgkmcnt(0)
    buffer_store_dwordx4 v[32:35], v{vT16}, s[{rCH}:{rCH+3}], s{sT0} offen{SC}
    buffer_store_dwordx4 v[36:39], v9, s[{rTABW}:{rTABW+3}], s{sT1} offen{SC}
    s_branch K_co_done
K_co_a:
    v_cmp_gt_u32 vcc, {CH*8//16 - 1024}, v0
    s_and_saveexec_b64 s[{sSAVE}:{sSAVE+1}], vcc
    ds_read_b128 v[36:39], v8 offset:{LDS_SORT}
    s_mov_b64 exec, s[{sSAVE}:{sSAVE+1}]
    s_waitcnt lgkmcnt(0)
    buffer_store_dwordx4 v[32:35], v{vT16}, s[{rCH}:{rCH+3}], s{sT0} offen{SC}
    s_and_b64 exec, exec, vcc
    s_cbranch_execz K_co_done
    buffer_store_dwordx4 v[36:39], v8, s[{rCH}:{rCH+3}], s{sT0} offen{SC}
    s_branch K_co_done
K_co_one:
    s_waitcnt lgkmcnt(0)
    buffer_store_dwordx4 v[32:35], v{vT16}, s[{rCH}:{rCH+3}], s{sT0} offen{SC}
    s_cmp_lg_u32 s2, 250
    s_cbranch_scc1 K_co_done
    s_cmp_lg_u32 s3, 4
    s_cbranch_scc1 K_co_done
    v_mov_b32 v36, 0x7f00
    s_mov_b32 s{sT1}, {N*256}
    buffer_store_dword v36, v{vLane4}, s[{rTABW}:{rTABW+3}], s{sT1} offen{SC}
K_co_done:
    s_mov_b64 exec, -1""")
stamp(5)
o(f"""    v_mov_b32 v40, {N*256}
    v_mov_b32 v41, {N*256}
    v_mov_b32 v42, {N*256}
    v_mov_b32 v43, {N*256}
    v_mov_b32 v44, 0
    v_mov_b32 v45, 0
    v_mov_b32 v46, 0
    v_mov_b32 v47, 0
    v_cmp_gt_u32 vcc, 800, v0
    s_and_saveexec_b64 s[{sSAVE}:{sSAVE+1}], vcc
    s_cbranch_execz K_nofill
    ds_write_b128 v{vT16}, v[40:43] offset:{LDS_O}
    ds_write_b128 v{vT16}, v[44:47] offset:{LDS_E}
K_nofill:
    s_mov_b64 exec, s[{sSAVE}:{sSAVE+1}]
    v_lshlrev_b32 v{vWc}, 16, v{vWc}
    v_mul_f32 v{vWc}, {NLOG2E:#x}, v{vWc}
    s_add_u32 s{sEP}, s{sEP}, 1
    s_addc_u32 s{sEP+1}, s{sEP+1}, 0
    s_and_b32 s{sTAGL}, s{sEP}, 0xff
    s_lshl_b32 s{sTAGL}, s{sTAGL}, 24
    s_lshr_b64 s[{sSAVE}:{sSAVE+1}], s[{sEP}:{sEP+1}], 8
    s_mov_b32 s{sTAGH}, s{sSAVE}
    v_lshrrev_b32 v8, 4, v0                    ; G
    v_lshlrev_b32 v86, 15, v8                  ; G*32768
    v_lshl_add_u32 v86, v{vJ}, 3, v86          ; + i*8
    s_cmp_ge_u32 s3, 4
    s_cbranch_scc1 K_nogran
    v_lshrrev_b32 v9, 3, v8
    v_lshl_add_u32 v9, v9, 4, v{vJ}            ; i + 16*(G>>3)
    v_and_b32 v10, 7, v8
    v_lshl_add_u32 v9, v9, 3, v10              ; bucket
    v_lshlrev_b32 v9, 2, v9
    ds_read_b32 v84, v9 offset:{LDS_BASE1}
    ds_read_b32 v85, v9 offset:{LDS_CNT1}
    s_waitcnt lgkmcnt(0)
    v_lshl_or_b32 v84, v85, 12, v84
    v_or_b32 v84, s{sTAGL}, v84
    v_mov_b32 v85, s{sTAGH}
K_nogran:
    s_waitcnt lgkmcnt(0)
    s_barrier
    s_cmp_ge_u32 s3, 12
    s_cbranch_scc1 K_nogemm
    s_and_b32 s{sT0}, s3, 3
    s_lshl_b32 s{sT1}, s{sT0}, 5
    s_add_u32 s{sT1}, s{sT1}, {LDS_W2}
    v_add_u32 v8, s{sT1}, v{vTmp+7}""")
vFr, vAcc = 100, 116
for m in range(2):
    for s_ in range(2):
        f = vFr + (m*2+s_)*4
        off = m*64*WROW + s_*32*WROW
        o(f"    ds_read_b64_tr_b16 v[{f}:{f+1}], v8 offset:{off}")
        o(f"    ds_read_b64_tr_b16 v[{f+2}:{f+3}], v8 offset:{off+4*WROW}")
o(f"""    ; LDS dest: (16*tau + (lane&15))*272 + (16*j' + 4*g)*4
    s_lshr_b32 s{sT1}, s3, 2
    s_lshl_b32 s{sT1}, s{sT1}, 4
    v_add_u32 v9, s{sT1}, v{vJ}
    v_mul_u32_u24 v9, 272, v9
    v_lshl_add_u32 v9, v{vTmp+5}, 4, v9
    s_lshl_b32 s{sT0}, s{sT0}, 6
    v_add_u32 v9, s{sT0}, v9
    s_waitcnt lgkmcnt(4)
    v_mfma_f32_16x16x32_bf16 v[{vAcc}:{vAcc+3}], v[{vFr}:{vFr+3}], v[{vXf2}:{vXf2+3}], 0
    v_mfma_f32_16x16x32_bf16 v[{vAcc}:{vAcc+3}], v[{vFr+4}:{vFr+7}], v[{vXf2+4}:{vXf2+7}], v[{vAcc}:{vAcc+3}]
    s_waitcnt lgkmcnt(0)
    v_mfma_f32_16x16x32_bf16 v[{vAcc+4}:{vAcc+7}], v[{vFr+8}:{vFr+11}], v[{vXf2}:{vXf2+3}], 0
    v_mfma_f32_16x16x32_bf16 v[{vAcc+4}:{vAcc+7}], v[{vFr+12}:{vFr+15}], v[{vXf2+4}:{vXf2+7}], v[{vAcc+4}:{vAcc+7}]
    s_mov_b32 s{sT0}, {NLOG2E:#x}
    v_mov_b32 v10, 0xc27c0000                  ; -63
    s_nop 7""")
for i in range(4): o(f"    v_fma_f32 v{vAcc+i}, v{vAcc+i}, s{sT0}, v10")
o(f"""    ds_write_b128 v9, v[{vAcc}:{vAcc+3}] offset:{LDS_A}
    v_add_u32 v9, {LDS_U}, v9
    ds_write_b128 v9, v[{vAcc+4}:{vAcc+7}]
K_nogemm:
    s_waitcnt vmcnt(0) lgkmcnt(0)""")
stamp(6)
o(f"""    s_barrier""")
stamp(7)
o(f"""    s_cmp_ge_u32 s3, 4
    s_cbranch_scc1 K_nopub
    s_lshl_b32 s{sT0}, s2, 7                   ; p*128
    buffer_store_dwordx2 v[84:85], v86, s[{rOFF}:{rOFF+3}], s{sT0} offen{SC}""")
o("K_nopub:")
vG = 72
vEnt, vIdx, vRank = 28, 44, 52
vInc, vBase = 70, 71
o(f"""    ; consumer b: group G = (b&7) | ((b>>7)<<3), index i = (b>>3)&15 ; producer p = 4*(t>>4) + r
    v_lshrrev_b32 v8, 4, v0
    v_lshlrev_b32 v8, 9, v8                    ; 4*(t>>4)*128
    s_and_b32 s{sT0}, s2, 7
    s_lshr_b32 s{sT1}, s2, 7
    s_lshl_b32 s{sT1}, s{sT1}, 3
    s_or_b32 s{sT0}, s{sT0}, s{sT1}
    s_lshl_b32 s{sT0}, s{sT0}, 15
    s_bfe_u32 s{sT1}, s2, 0x40003
    s_lshl_b32 s{sT1}, s{sT1}, 3
    s_add_u32 s{sSO}, s{sT0}, s{sT1}
    s_mov_b32 s{sGOFF}, s{sSO}
    s_mov_b32 s{sSPIN}, 0
    v_mov_b32 v9, 0xff000000
K_poll:
    buffer_load_dwordx2 v[{vG}:{vG+1}], v8, s[{rOFF}:{rOFF+3}], s{sSO} offen{SC}
    buffer_load_dwordx2 v[{vG+2}:{vG+3}], v8, s[{rOFF}:{rOFF+3}], s{sSO} offen offset:128{SC}
    buffer_load_dwordx2 v[{vG+4}:{vG+5}], v8, s[{rOFF}:{rOFF+3}], s{sSO} offen offset:256{SC}
    buffer_load_dwordx2 v[{vG+6}:{vG+7}], v8, s[{rOFF}:{rOFF+3}], s{sSO} offen offset:384{SC}
    s_add_u32 s{sSPIN}, s{sSPIN}, 1
    s_waitcnt vmcnt(0)""")
o(f"""    v_xor_b32 v{vTmp}, s{sTAGL}, v{vG}
    v_xor_b32 v{vTmp+1}, s{sTAGL}, v{vG+2}
    v_xor_b32 v{vTmp+2}, s{sTAGL}, v{vG+4}
    v_xor_b32 v{vTmp+3}, s{sTAGL}, v{vG+6}
    v_or3_b32 v{vTmp}, v{vTmp}, v{vTmp+1}, v{vTmp+2}
    v_or_b32 v{vTmp}, v{vTmp}, v{vTmp+3}
    v_and_b32 v{vTmp}, v9, v{vTmp}
    v_xor_b32 v{vTmp+1}, s{sTAGH}, v{vG+1}
    v_xor_b32 v{vTmp+2}, s{sTAGH}, v{vG+3}
    v_xor_b32 v{vTmp+3}, s{sTAGH}, v{vG+5}
    v_xor_b32 v{vTmp+4}, s{sTAGH}, v{vG+7}
    v_or3_b32 v{vTmp}, v{vTmp}, v{vTmp+1}, v{vTmp+2}
    v_or3_b32 v{vTmp}, v{vTmp}, v{vTmp+3}, v{vTmp+4}
    v_cmp_ne_u32 vcc, 0, v{vTmp}
    s_cbranch_vccz K_poll_ok
    s_cmp_ge_u32 s{sSPIN}, {SPIN_MAX}
    s_cbranch_scc1 K_poll_fail
    s_sleep 1
    s_branch K_poll
K_poll_fail:""")
for r in range(4): o(f"    v_mov_b32 v{vG+2*r}, 0")
o("K_poll_ok:")
stamp(8)
stampc(18)
vCnt = 80
o(f"""    s_mov_b32 s{sSO}, 0
    s_mov_b32 s{sSO+1}, {CH*8}
    s_mov_b32 s{sSO+2}, {2*CH*8}
    s_mov_b32 s{sSO+3}, {3*CH*8}""")
for r in range(4):
    T = vG + 2*r
    o(f"""    v_bfe_u32 v{vCnt+r}, v{T}, 12, 12          ; count
    v_and_b32 v{vCnt+4+r}, 0xfff, v{T}
    v_add_u32 v{vCnt+4+r}, v{vCnt+4+r}, v{vJ}
    v_cmp_gt_u32 s[{sM+4*r}:{sM+4*r+1}], v{vCnt+r}, v{vJ}
    v_lshl_add_u32 v{vCnt+4+r}, v{vCnt+4+r}, 3, v{vSeg}""")
for r in range(4):
    o(f"""    s_mov_b64 exec, s[{sM+4*r}:{sM+4*r+1}]
    buffer_load_dwordx2 v[{vEnt+4*r}:{vEnt+4*r+1}], v{vCnt+4+r}, s[{rCH}:{rCH+3}], s{sSO+r} offen{SC}""")
o(f"""    s_mov_b64 exec, -1
    v_max3_u32 v{vTmp}, v{vCnt}, v{vCnt+1}, v{vCnt+2}
    v_max_u32 v{vTmp}, v{vTmp}, v{vCnt+3}
    v_cmp_lt_u32 vcc, 16, v{vTmp}
    s_mov_b64 s[{sBIG}:{sBIG+1}], vcc
    s_cbranch_vccz K_nok1""")
for r in range(4):
    o(f"""    v_cmp_gt_u32 s[{sM+4*r+2}:{sM+4*r+3}], v{vCnt+r}, v{vJ16}""")
o("    s_nop 1")
for r in range(4):
    o(f"""    s_mov_b64 exec, s[{sM+4*r+2}:{sM+4*r+3}]
    s_cbranch_execz K_nok1_{r}
    buffer_load_dwordx2 v[{vEnt+4*r+2}:{vEnt+4*r+3}], v{vCnt+4+r}, s[{rCH}:{rCH+3}], s{sSO+r} offen offset:128{SC}
K_nok1_{r}:""")
o(f"""    s_mov_b64 exec, -1
    v_cmp_lt_u32 vcc, 32, v{vTmp}
    s_cbranch_vccz K_nok1
    v_mov_b32 v{vTmp}, 0
    ds_write_b32 v{vTmp}, v{vOne} offset:{LDS_FLG}
K_nok1:
    s_waitcnt vmcnt(0)""")
stamp(9)
def slots(ks):
    return [r*2+k for r in range(4) for k in ks]
def hist(es):
    for e in es:
        d0 = vEnt + 2*e
        o(f"    v_lshlrev_b32 v{vIdx+e}, 2, v{d0}")
        o(f"    v_subrev_u32 v{vIdx+e}, s{sSB4}, v{vIdx+e}")
        o(f"    v_and_b32 v{vIdx+e}, 0xfc, v{vIdx+e}")
    for e in es:
        o(f"    s_mov_b64 exec, s[{sM+2*e}:{sM+2*e+1}]")
        o(f"    ds_add_rtn_u32 v{vRank+e}, v{vIdx+e}, v{vOne} offset:{LDS_CNT2}")
    o(f"    s_mov_b64 exec, -1")
hist(slots([0]))
o(f"    s_cmp_eq_u64 s[{sBIG}:{sBIG+1}], 0\n    s_cbranch_scc1 K_noh1")
hist(slots([1]))
o(f"""K_noh1:
    s_waitcnt lgkmcnt(0)
    s_barrier""")
stamp(10)
o(f"""    ds_read_b32 v{vInc}, v{vLane4} offset:{LDS_CNT2}
    v_mov_b32 v{vTmp}, 0
    ds_read_b32 v{vTmp+1}, v{vTmp} offset:{LDS_FLG}
    s_or_b32 s{sT0}, s2, s3
    s_cmp_lg_u32 s{sT0}, 0
    s_cbranch_scc1 K_noep
    s_add_u32 s{rA}, s{sWS}, {WS_EP:#x}
    s_addc_u32 s{rA+1}, s{sWS+1}, 0
    s_and_b32 s{rA+1}, s{rA+1}, 0xffff
    s_mov_b32 s{rA+2}, 8
    s_mov_b32 s{rA+3}, 0x20000
    v_mov_b32 v8, s{sEP}
    v_mov_b32 v9, s{sEP+1}
    s_mov_b64 exec, 1
    buffer_store_dwordx2 v[8:9], v{vTmp}, s[{rA}:{rA+3}], 0 offen
    s_mov_b64 exec, -1
K_noep:
    s_waitcnt lgkmcnt(0)
    v_readfirstlane_b32 s{sT0}, v{vTmp+1}
    v_add_u32 v{vInc}, 3, v{vInc}
    v_lshrrev_b32 v{vInc}, 2, v{vInc}
    v_mov_b32 v{vBase}, v{vInc}""")
wave_scan(vInc)
o(f"""    v_sub_u32 v{vBase}, v{vInc}, v{vBase}
    v_lshlrev_b32 v{vBase}, 2, v{vBase}
    v_readlane_b32 s{sT1}, v{vInc}, 63
    s_cmp_lg_u32 s{sT0}, 0
    s_cbranch_scc1 K_slow
    s_cmp_gt_u32 s{sT1}, {CAPQ}
    s_cbranch_scc1 K_slow""")
vPos = 80
def place(es):
    for e in es:
        o(f"    ds_bpermute_b32 v{vPos+e}, v{vIdx+e}, v{vBase}")
        o(f"    v_and_b32 v{vEnt+2*e}, 0xffffff00, v{vEnt+2*e}")
    o("    s_waitcnt lgkmcnt(0)")
    for e in es:
        o(f"    v_add_lshl_u32 v{vPos+e}, v{vPos+e}, v{vRank+e}, 2")
    for e in es:
        d0 = vEnt + 2*e
        o(f"    s_mov_b64 exec, s[{sM+2*e}:{sM+2*e+1}]")
        o(f"    ds_write_b32 v{vPos+e}, v{d0} offset:{LDS_O}")
        o(f"    ds_write_b32 v{vPos+e}, v{d0+1} offset:{LDS_E}")
    o(f"    s_mov_b64 exec, -1")
place(slots([0]))
o(f"    s_cmp_eq_u64 s[{sBIG}:{sBIG+1}], 0\n    s_cbranch_scc1 K_nop1")
place(slots([1]))
o(f"""K_nop1:
    s_mov_b32 s{sQ}, s{sT1}
    s_waitcnt lgkmcnt(0)
    s_barrier""")
stamp(11)
stampc(14)

vA, vDen, vNum, vAA, vLA = 8, 10, 12, 14, 15
vO = 16
vE = [20, 28]
vDr = [32, 36, 40, 44]
vU, vAa, vP, vS_, vQ, vR = 48, 52, 56, 58, 62, 64
vF = 66
RING = 4
o(f"""    s_mul_i32 s{sQ0}, s{sQ}, s3
    s_lshr_b32 s{sQ0}, s{sQ0}, 4
    s_add_u32 s{sT0}, s3, 1
    s_mul_i32 s{sQ1}, s{sQ}, s{sT0}
    s_lshr_b32 s{sQ1}, s{sQ1}, 4
    s_cmp_ge_u32 s{sQ0}, s{sQ1}
    s_cbranch_scc1 K_main_done
    v_cmp_ge_u32 vcc, s{sQ0}, v{vInc}
    s_lshl_b32 s{sT0}, s{sQ0}, 4
    v_mov_b32 v{vLA}, s{sT0}
    ds_read_b128 v[{vO}:{vO+3}], v{vLA} offset:{LDS_O}
    s_mov_b32 s{sC63}, 0x5f000000                ; 2^63
    s_mov_b32 s{sC63+1}, 0x5f000000
    s_mov_b32 s{sSEL}, 0x00003f80
    s_bcnt1_i32_b64 s{sNODE}, vcc
    s_mov_b32 s{sIT}, 0
    v_mov_b32 v{vDen}, 0
    v_mov_b32 v{vDen+1}, 0
    v_readlane_b32 s{sBND}, v{vInc}, s{sNODE}
    v_mov_b32 v{vNum}, 0
    v_mov_b32 v{vNum+1}, 0
    s_mul_i32 s{sT0}, s{sNODE}, 272
    v_add_u32 v{vAA}, s{sT0}, v{vLane4}
    ds_read_b32 v{vA}, v{vAA} offset:{LDS_A}
    s_add_u32 s{sT1}, s{sNODE}, s3
    s_lshl_b32 s{sSLOT}, s{sT1}, 9
    s_min_u32 s{sSTOP}, s{sBND}, s{sQ1}
    s_sub_u32 s{sREM}, s{sSTOP}, s{sQ0}
    s_setprio 3""")
for j in range(RING-1):
    o(f"    s_waitcnt lgkmcnt({1 if j == 0 else 0})")
    for i in range(4):
        o(f"    buffer_load_dword v{vDr[j]+i}, v{vO+i}, s[{rTAB}:{rTAB+3}], 0 offen{SC}")
    o(f"    ds_read_b128 v[{vO}:{vO+3}], v{vLA} offset:{LDS_O+16*(j+1)}")
o(f"    ds_read_b128 v[{vE[0]}:{vE[0]+3}], v{vLA} offset:{LDS_E}")
o(".p2align 3")
o("K_loop:")
for k in range(RING):
    e = vE[k%2]; en = vE[(k+1)%2]; Dk = vDr[k]; Dn = vDr[(k+RING-1)%RING]
    o(f"    s_waitcnt lgkmcnt(0)")
    o(f"    s_sub_u32 s{sREM}, s{sREM}, 1")
    for i in range(4):
        o(f"    buffer_load_dword v{Dn+i}, v{vO+i}, s[{rTAB}:{rTAB+3}], 0 offen{SC}")
    o(f"    ds_read_b128 v[{vO}:{vO+3}], v{vLA} offset:{LDS_O+16*(k+RING)}")
    o(f"    ds_read_b128 v[{en}:{en+3}], v{vLA} offset:{LDS_E+16*(k+1)}")
    o(f"    s_cbranch_scc1 K_h{k}")
    o(f"K_r{k}:")
    o(f"    s_waitcnt vmcnt({4*(RING-1)})")
    o(f"    v_pk_fma_f32 v[{vU}:{vU+1}], v[{e}:{e+1}], v[{vWc}:{vWc+1}], v[{vA}:{vA+1}] op_sel_hi:[1,0,0]")
    o(f"    v_pk_fma_f32 v[{vU+2}:{vU+3}], v[{e+2}:{e+3}], v[{vWc}:{vWc+1}], v[{vA}:{vA+1}] op_sel_hi:[1,0,0]")
    for i in range(4): o(f"    v_dot2c_f32_bf16 v{vU+i}, s{sSEL}, v{Dk+i}")
    for i in range(4): o(f"    v_exp_f32_e64 v{vU+i}, v{vU+i} clamp")
    o(f"    v_pk_fma_f32 v[{vAa}:{vAa+1}], v[{vU}:{vU+1}], s[{sC63}:{sC63+1}], 1.0 op_sel_hi:[1,0,0]")
    o(f"    v_pk_fma_f32 v[{vAa+2}:{vAa+3}], v[{vU+2}:{vU+3}], s[{sC63}:{sC63+1}], 1.0 op_sel_hi:[1,0,0]")
    o(f"    v_pk_mul_f32 v[{vP}:{vP+1}], v[{vAa}:{vAa+1}], v[{vAa+2}:{vAa+3}]")
    o(f"    v_pk_add_f32 v[{vS_}:{vS_+1}], v[{vAa}:{vAa+1}], v[{vAa+2}:{vAa+3}]")
    o(f"    v_rcp_f32 v{vR}, v{vP}")
    o(f"    v_rcp_f32 v{vR+1}, v{vP+1}")
    o(f"    v_pk_mul_f32 v[{vQ}:{vQ+1}], v[{vAa+2}:{vAa+3}], v[{Dk}:{Dk+1}]")
    o(f"    v_pk_fma_f32 v[{vQ}:{vQ+1}], v[{vAa}:{vAa+1}], v[{Dk+2}:{Dk+3}], v[{vQ}:{vQ+1}]")
    o(f"    v_pk_fma_f32 v[{vDen}:{vDen+1}], v[{vS_}:{vS_+1}], v[{vR}:{vR+1}], v[{vDen}:{vDen+1}]")
    o(f"    v_pk_fma_f32 v[{vNum}:{vNum+1}], v[{vQ}:{vQ+1}], v[{vR}:{vR+1}], v[{vNum}:{vNum+1}]")
o(f"""    v_add_u32 v{vLA}, {16*RING}, v{vLA}
    s_add_u32 s{sIT}, s{sIT}, 1
    s_cmp_eq_u32 s{sIT}, 4
    s_cbranch_scc1 K_p2
    s_cmp_eq_u32 s{sIT}, 7
    s_cbranch_scc1 K_p1
    s_cmp_eq_u32 s{sIT}, 9
    s_cbranch_scc0 K_loop
    s_setprio 0
    s_branch K_loop
K_p2:
    s_setprio 2
    s_branch K_loop
K_p1:
    s_setprio 1
    s_branch K_loop""")
for k in range(RING):
    o(f"""K_h{k}:
    v_add_f32 v{vF}, v{vDen}, v{vDen+1}
    v_add_f32 v{vF+1}, v{vNum}, v{vNum+1}
    v_add_u32 v{vF+2}, s{sSLOT}, v{vLane4}
    s_lshl_b32 s{sT0}, 1, s3
    v_mov_b32 v{vF+3}, s{sT0}
    s_lshl_b32 s{sT1}, s{sNODE}, 2
    v_mov_b32 v{vDen}, s{sT1}
    ds_write_b32 v{vF+2}, v{vF} offset:{LDS_SL}
    ds_write_b32 v{vF+2}, v{vF+1} offset:{LDS_SL+256}
    s_mov_b64 exec, 1
    ds_or_b32 v{vDen}, v{vF+3} offset:{LDS_MSK}
    s_mov_b64 exec, -1
    s_cmp_ge_u32 s{sSTOP}, s{sQ1}
    s_cbranch_scc1 K_main_done
    v_mov_b32 v{vDen}, 0
    v_mov_b32 v{vDen+1}, 0
    v_mov_b32 v{vNum}, 0
    v_mov_b32 v{vNum+1}, 0
K_hn{k}:
    s_add_u32 s{sNODE}, s{sNODE}, 1
    v_readlane_b32 s{sBND}, v{vInc}, s{sNODE}
    v_add_u32 v{vAA}, 272, v{vAA}
    s_add_u32 s{sSLOT}, s{sSLOT}, 512
    s_nop 1
    s_cmp_eq_u32 s{sBND}, s{sSTOP}
    s_cbranch_scc1 K_hn{k}
    ds_read_b32 v{vA}, v{vAA} offset:{LDS_A}
    s_mov_b32 s{sT0}, s{sSTOP}
    s_min_u32 s{sSTOP}, s{sBND}, s{sQ1}
    s_sub_u32 s{sREM}, s{sSTOP}, s{sT0}
    s_sub_u32 s{sREM}, s{sREM}, 1
    s_waitcnt lgkmcnt(0)
    s_branch K_r{k}""")

sP, sCNT, sPOS, sN, sEN = 72, 73, 74, 75, 76
o(f"""K_slow:
    s_mov_b32 s{sC63}, 0x5f000000
    s_mov_b32 s{sSEL}, 0x00003f80
    s_mov_b32 s{sN}, s3
    v_mov_b32 v{vTmp}, 0
K_s_node:
    s_cmp_ge_u32 s{sN}, s{sNB}
    s_cbranch_scc1 K_main_done
    s_mul_i32 s{sT0}, s{sN}, 272
    v_add_u32 v{vAA}, s{sT0}, v{vLane4}
    ds_read_b32 v{vA}, v{vAA} offset:{LDS_A}
    v_mov_b32 v{vDen}, 0
    v_mov_b32 v{vNum}, 0
    s_mov_b32 s{sP}, 0
    s_waitcnt lgkmcnt(0)
K_s_prod:
    s_lshl_b32 s{sT0}, s{sP}, 7
    s_add_u32 s{sT0}, s{sT0}, s{sGOFF}
    buffer_load_dword v{vU}, v{vTmp}, s[{rOFF}:{rOFF+3}], s{sT0} offen{SC}
    s_waitcnt vmcnt(0)
    v_readfirstlane_b32 s{sCNT}, v{vU}
    s_nop 3
    s_and_b32 s{sPOS}, s{sCNT}, 0xfff
    s_bfe_u32 s{sCNT}, s{sCNT}, 0xc000c
    s_mul_i32 s{sT0}, s{sP}, {CH}
    s_add_u32 s{sPOS}, s{sPOS}, s{sT0}
    s_lshl_b32 s{sPOS}, s{sPOS}, 3
K_s_ent:
    s_cmp_eq_u32 s{sCNT}, 0
    s_cbranch_scc1 K_s_prod_next
    buffer_load_dwordx2 v[{vU}:{vU+1}], v{vTmp}, s[{rCH}:{rCH+3}], s{sPOS} offen{SC}
    s_waitcnt vmcnt(0)
    v_readfirstlane_b32 s{sEN}, v{vU}
    s_nop 3
    s_sub_u32 s{sT0}, s{sEN}, s{sSB}
    s_and_b32 s{sT0}, s{sT0}, 63
    s_cmp_lg_u32 s{sT0}, s{sN}
    s_cbranch_scc1 K_s_ent_next
    s_and_b32 s{sT0}, s{sEN}, 0xffffff00
    buffer_load_dword v{vU+2}, off, s[{rTAB}:{rTAB+3}], s{sT0}{SC}
    v_fma_f32 v{vU}, v{vU+1}, v{vWc}, v{vA}
    s_waitcnt vmcnt(0) lgkmcnt(0)
    v_dot2c_f32_bf16 v{vU}, s{sSEL}, v{vU+2}
    s_nop 2
    v_exp_f32_e64 v{vU}, v{vU} clamp
    s_nop 0
    v_fma_f32 v{vU}, v{vU}, s{sC63}, 1.0
    v_rcp_f32 v{vU}, v{vU}
    s_nop 0
    v_add_f32 v{vDen}, v{vDen}, v{vU}
    v_fmac_f32 v{vNum}, v{vU}, v{vU+2}
K_s_ent_next:
    s_add_u32 s{sPOS}, s{sPOS}, 8
    s_sub_u32 s{sCNT}, s{sCNT}, 1
    s_branch K_s_ent
K_s_prod_next:
    s_add_u32 s{sP}, s{sP}, 1
    s_cmp_lt_u32 s{sP}, {NB}
    s_cbranch_scc1 K_s_prod
    s_lshl_b32 s{sT0}, s{sN}, 9
    v_add_u32 v{vF+2}, s{sT0}, v{vLane4}
    s_waitcnt lgkmcnt(0)
    ds_write_b32 v{vF+2}, v{vDen} offset:{LDS_SL}
    ds_write_b32 v{vF+2}, v{vNum} offset:{LDS_SL+256}
    s_lshl_b32 s{sT0}, s{sN}, 2
    v_mov_b32 v{vF+3}, s{sT0}
    s_mov_b64 exec, 1
    ds_write_b32 v{vF+3}, v{vOne} offset:{LDS_MSK}
    s_mov_b64 exec, -1
    s_add_u32 s{sN}, s{sN}, 16
    s_branch K_s_node""")

eN, eC, eM, eW, eAd = 8, 9, 10, 11, 12
eDen, eNum, eT0, eT1, eU = 16, 20, 28, 32, 36
o(f"""K_main_done:
    s_setprio 0
    s_waitcnt vmcnt(0) lgkmcnt(0)""")
stamp(12)
stampc(15)
o(f"""    s_barrier
    s_cmp_ge_u32 s3, 10
    s_cbranch_scc1 K_exit
    v_lshrrev_b32 v{eN}, 4, v0                   ; node
    v_and_b32 v{eC}, 15, v0
    v_lshlrev_b32 v{eAd}, 2, v{eN}
    ds_read_b32 v{eM}, v{eAd} offset:{LDS_MSK}
    v_mul_u32_u24 v{eAd}, 272, v{eN}
    v_lshl_add_u32 v{eAd}, v{eC}, 4, v{eAd}
    v_add_u32 v{eAd}, {LDS_U}, v{eAd}
    ds_read_b128 v[{eU}:{eU+3}], v{eAd}""")
for i in range(4):
    o(f"    v_mov_b32 v{eDen+i}, 0")
    o(f"    v_mov_b32 v{eNum+i}, 0")
o(f"""    s_waitcnt lgkmcnt(0)
K_e_loop:
    v_cmp_ne_u32 vcc, 0, v{eM}
    s_and_saveexec_b64 s[{sSAVE}:{sSAVE+1}], vcc
    s_cbranch_execz K_e_end
    v_ffbl_b32 v{eW}, v{eM}
    v_add_u32 v{eW}, v{eW}, v{eN}
    v_lshlrev_b32 v{eW}, 9, v{eW}
    v_lshl_add_u32 v{eW}, v{eC}, 4, v{eW}
    ds_read_b128 v[{eT0}:{eT0+3}], v{eW} offset:{LDS_SL}
    ds_read_b128 v[{eT1}:{eT1+3}], v{eW} offset:{LDS_SL+256}
    v_add_u32 v{eW}, -1, v{eM}
    v_and_b32 v{eM}, v{eM}, v{eW}
    s_waitcnt lgkmcnt(0)""")
for i in range(4):
    o(f"    v_add_f32 v{eDen+i}, v{eDen+i}, v{eT0+i}")
    o(f"    v_add_f32 v{eNum+i}, v{eNum+i}, v{eT1+i}")
o(f"""    s_mov_b64 exec, s[{sSAVE}:{sSAVE+1}]
    s_branch K_e_loop
K_e_end:
    s_mov_b64 exec, s[{sSAVE}:{sSAVE+1}]""")
for i in range(4): o(f"    v_add_f32 v{eDen+i}, 0x358637bd, v{eDen+i}")
for i in range(4): o(f"    v_rcp_f32 v{eDen+i}, v{eDen+i}")
o(f"""    v_lshlrev_b32 v{eT0}, 16, v{vXe}
    v_and_b32 v{eT0+1}, 0xffff0000, v{vXe}
    v_lshlrev_b32 v{eT0+2}, 16, v{vXe+1}
    v_and_b32 v{eT0+3}, 0xffff0000, v{vXe+1}""")
for i in range(4): o(f"    v_fma_f32 v{eU+i}, v{eNum+i}, v{eDen+i}, v{eU+i}")
for i in range(4): o(f"    v_max_f32 v{eU+i}, 0, v{eU+i}")
for i in range(4): o(f"    v_add_f32 v{eU+i}, v{eU+i}, v{eT0+i}")
o(f"""    v_cvt_pk_bf16_f32 v{eT1}, v{eU}, v{eU+1}
    v_cvt_pk_bf16_f32 v{eT1+1}, v{eU+2}, v{eU+3}
    v_add_u32 v{eAd}, s{sSB}, v{eN}
    v_lshlrev_b32 v{eAd}, 7, v{eAd}
    v_lshl_add_u32 v{eAd}, v{eC}, 3, v{eAd}
    v_cmp_gt_u32 vcc, s{sNB}, v{eN}
    s_and_saveexec_b64 s[{sSAVE}:{sSAVE+1}], vcc
    s_cbranch_execz K_exit
    buffer_store_dwordx2 v[{eT1}:{eT1+1}], v{eAd}, s[{rOUT}:{rOUT+3}], 0 offen
K_exit:""")
if STAMP:
    o("    s_mov_b64 exec, -1\n    s_waitcnt vmcnt(0)")
    stamp(13)
    stamp_flush()
o("K_done:\n    s_endpgm")
o(f""".section .rodata,"a"
.p2align 6
.amdhsa_kernel {NAME}
  .amdhsa_next_free_vgpr 128
  .amdhsa_next_free_sgpr 102
  .amdhsa_accum_offset 128
  .amdhsa_group_segment_fixed_size 0
  .amdhsa_kernarg_size 96
  .amdhsa_user_sgpr_count 2
  .amdhsa_user_sgpr_kernarg_segment_ptr 1
  .amdhsa_system_sgpr_workgroup_id_x 1
  .amdhsa_dx10_clamp 0
.end_amdhsa_kernel""")
print("\n".join(L))
```

```python
import sys
FL = set(sys.argv[1].split(',')) if len(sys.argv) > 1 else set()
STAMP = "stamp" in FL
PREF = "nopref" not in FL
NAME = "standalone__edge_featured_mpnn_gatedgcn__graph_kernel"

L = []
def o(s=""): L.append(s)

N, D, E = 10000, 64, 640000
NB = 256
CH = E // NB
BMUL = 26843
WS_T = 0
T_BYTES = (N+1)*256
WS_O = 0x280000
O_BYTES = NB*NB*8
WS_C = 0x300000
C_BYTES = NB*CH*8
WS_EP = 0x7F0000
WS_TF = 0x7F1000
WS_STAMP = 0x800000
NLOG2E = 0xBFB8AA3B
WROW = 144
SPIN_MAX = 400000
SC = " sc1"
def opt(name, default):
    for f in FL:
        if f.startswith(name + "="): return f.split("=")[1]
    return default
SLEEP = int(opt("sleep", 1))
SCW = " " + opt("stf", "sc1").replace("+", " ")
SCE = " " + opt("ldf", "sc1").replace("+", " ")

LDS_CNT2, LDS_MSK, LDS_FLG = 0, 256, 512
LDS_CNT1, LDS_BASE1 = 768, 1792
LDS_O = 2816
LDS_E = LDS_O + 12800
LDS_A = LDS_E + 12800
LDS_SL = LDS_A + 48*272
LDS_U = LDS_SL + 56*512
LDS_W2 = LDS_U + 48*272
LDS_W1 = LDS_W2 + 2*64*WROW
LDS_TOT = LDS_W1 + 2*64*WROW
LDS_SORT = LDS_SL
CAPQ = 768
assert LDS_SORT + CH*8 + 16 < 65536

def srd(dst, base, nrec, w3=0x20000, stride=0, off=0):
    if off:
        o(f"    s_add_u32 s{dst}, s{base}, {off:#x}")
        o(f"    s_addc_u32 s{dst+1}, s{base+1}, 0")
        o(f"    s_and_b32 s{dst+1}, s{dst+1}, 0xffff")
    else:
        o(f"    s_mov_b32 s{dst}, s{base}")
        o(f"    s_and_b32 s{dst+1}, s{base+1}, 0xffff")
    if stride: o(f"    s_or_b32 s{dst+1}, s{dst+1}, {stride<<16:#x}")
    o(f"    s_mov_b32 s{dst+2}, {nrec:#x}")
    o(f"    s_mov_b32 s{dst+3}, {w3:#x}")

SCAN = ("row_shr:1 row_mask:0xf bank_mask:0xf bound_ctrl:1", "row_shr:2 row_mask:0xf bank_mask:0xf bound_ctrl:1",
        "row_shr:4 row_mask:0xf bank_mask:0xf bound_ctrl:1", "row_shr:8 row_mask:0xf bank_mask:0xf bound_ctrl:1",
        "row_bcast:15 row_mask:0xa bank_mask:0xf", "row_bcast:31 row_mask:0xc bank_mask:0xf")
def wave_scan(v, fill=()):
    fill = list(fill)
    for ctl in SCAN:
        if len(fill) >= 2:
            o("    " + fill.pop(0)); o("    " + fill.pop(0))
        else:
            o("    s_nop 1")
        o(f"    v_add_u32_dpp v{v}, v{v}, v{v} {ctl}")
    for f in fill: o("    " + f)

sX, sEA, sSRC, sDST = 4, 6, 8, 10
sWA, sWB, sWC, sWU = 12, 14, 16, 18
sWV, sOUT = 20, 22
sWS = 24
sEP = 26
rA, rB, rC = 28, 32, 36
rX, rOFF, rCH, rTAB, rTABW, rOUT = 40, 44, 48, 52, 56, 60
sSB, sNB, sSB4 = 64, 65, 66
sT0, sT1, sT2, sT3 = 67, 68, 69, 70
sM = 72
sV625 = 72
sBIG = 88
sSO = 90
sTAGL, sTAGH = 94, 95
sSAVE = 96
sSPIN = 98
sGOFF = 99
sBETA = 71
sSTMP = 100
sQ, sQ0, sQ1, sNODE, sBND, sSTOP, sREM = 4, 5, 6, 7, 8, 9, 10
sC63, sSEL, sIT = 12, 14, 15

vLane, vT16, vLane4, vJ, vJ16, vSeg, vG4 = 1, 3, 4, 5, 6, 7, 2
vXe, vWc = 24, 26
vOne = 60
vTmp = 62
vInc, vBase = 70, 71
vST = 127

def stamp(idx, pre=False):
    if not STAMP: return
    if not pre:
        o(f"    s_memrealtime s[{sSTMP}:{sSTMP+1}]")
        o(f"    s_waitcnt lgkmcnt(0)")
    o(f"    v_writelane_b32 v{vST}, s{sSTMP}, {idx}")
def stampc(idx):
    if not STAMP: return
    o(f"    s_memtime s[{sSTMP}:{sSTMP+1}]")
    o(f"    s_waitcnt lgkmcnt(0)")
    o(f"    v_writelane_b32 v{vST}, s{sSTMP}, {idx}")
def stamp_flush():
    if not STAMP: return
    o(f"""    s_mov_b64 exec, -1
    s_lshl_b32 s{sT0}, s2, 4
    s_add_u32 s{sT0}, s{sT0}, s3
    s_lshl_b32 s{sT0}, s{sT0}, 7
    s_add_u32 s{rA}, s{sWS}, {WS_STAMP:#x}
    s_addc_u32 s{rA+1}, s{sWS+1}, 0
    s_and_b32 s{rA+1}, s{rA+1}, 0xffff
    s_mov_b32 s{rA+2}, 0x100000
    s_mov_b32 s{rA+3}, 0x20000
    s_mov_b32 exec_lo, -1
    s_mov_b32 exec_hi, 0
    buffer_store_dword v{vST}, v{vLane4}, s[{rA}:{rA+3}], s{sT0} offen
    s_mov_b64 exec, -1""")

o(f"; @launch grid=({NB},1,1) block=(1024,1,1) lds={LDS_TOT}")
o('.amdgcn_target "amdgcn-amd-amdhsa--gfx950"')
o(".text")
o(f".globl {NAME}\n.p2align 8\n.type {NAME},@function\n{NAME}:")
if STAMP: o(f"    s_memrealtime s[{sSTMP}:{sSTMP+1}]")
o(f"""    s_cmp_ge_u32 s2, {NB}
    s_cbranch_scc1 K_done
    s_load_dwordx8 s[4:11], s[0:1], 0
    s_load_dwordx2 s[{sWS}:{sWS+1}], s[0:1], 88
    s_load_dwordx8 s[12:19], s[0:1], 32        ; w_a, w_b, w_c, w_u
    s_load_dwordx4 s[20:23], s[0:1], 64        ; w_v, out
    v_and_b32 v{vLane}, 63, v0
    v_lshrrev_b32 v{vG4}, 6, v0
    v_lshlrev_b32 v{vT16}, 4, v0
    v_readfirstlane_b32 s3, v{vG4}
    v_lshlrev_b32 v{vLane4}, 2, v{vLane}
    v_mov_b32 v{vOne}, 1
    v_mov_b32 v{vTmp}, 0
    v_lshlrev_b32 v{vTmp+1}, 2, v0
    v_lshlrev_b32 v8, 3, v0                   ; t*8
    v_cmp_gt_u32 vcc, {CH//4}, v0
    s_mul_i32 s{sSO}, s2, {CH*4}
    s_mul_i32 s{sSO+1}, s2, {CH*2}
    s_mov_b64 s[{sV625}:{sV625+1}], vcc
    s_cmp_ge_u32 s3, 7
    s_cbranch_scc1 K_nozero
    ds_write_b32 v{vTmp+1}, v{vTmp}
K_nozero:
    v_mov_b32 v40, {N*256}
    v_mov_b32 v41, {N*256}
    v_mov_b32 v42, {N*256}
    v_mov_b32 v43, {N*256}
    v_mov_b32 v44, 0
    v_mov_b32 v45, 0
    v_mov_b32 v46, 0
    v_mov_b32 v47, 0
    s_cmp_ge_u32 s3, 13
    s_cbranch_scc1 K_nofill
    v_cmp_gt_u32 vcc, 800, v0
    s_and_saveexec_b64 s[{sSAVE}:{sSAVE+1}], vcc
    ds_write_b128 v{vT16}, v[40:43] offset:{LDS_O}
    ds_write_b128 v{vT16}, v[44:47] offset:{LDS_E}
    s_mov_b64 exec, s[{sSAVE}:{sSAVE+1}]
K_nofill:
    v_and_b32 v{vJ}, 15, v{vLane}
    v_lshrrev_b32 v{vG4}, 4, v{vLane}         ; g
    s_cmp_ge_u32 s3, 10
    s_cbranch_scc1 K_tab_start
    s_waitcnt lgkmcnt(0)""")
stamp(0, pre=True)
srd(rA, sDST, E*4); srd(rB, sSRC, E*4); srd(rC, sEA, E*2)
o(f"""    s_mov_b64 exec, s[{sV625}:{sV625+1}]
    buffer_load_dwordx4 v[32:35], v{vT16}, s[{rA}:{rA+3}], s{sSO} offen       ; dst
    buffer_load_dwordx4 v[36:39], v{vT16}, s[{rB}:{rB+3}], s{sSO} offen       ; src
    buffer_load_dwordx2 v[40:41], v8, s[{rC}:{rC+3}], s{sSO+1} offen          ; e
    s_mov_b64 exec, -1
    s_add_u32 s{sSAVE}, s{sWS}, {WS_EP:#x}
    s_addc_u32 s{sSAVE+1}, s{sWS+1}, 0
    s_load_dwordx2 s[{sEP}:{sEP+1}], s[{sSAVE}:{sSAVE+1}], 0
    s_barrier""")
def common_consts():
    o(f"""    ; bucket of this workgroup: consecutive buckets on one die (speed only); node range [start(b), start(b+1))
    s_and_b32 s{sBETA}, s2, 7
    s_lshl_b32 s{sBETA}, s{sBETA}, 5
    s_lshr_b32 s{sT0}, s2, 3
    s_or_b32 s{sBETA}, s{sBETA}, s{sT0}
    s_mul_i32 s{sSB}, s{sBETA}, 40000
    s_lshr_b32 s{sSB}, s{sSB}, 10
1:
    s_mul_i32 s{sT0}, s{sSB}, {BMUL}
    s_lshr_b32 s{sT0}, s{sT0}, 20
    s_cmp_ge_u32 s{sT0}, s{sBETA}
    s_cbranch_scc1 2f
    s_add_u32 s{sSB}, s{sSB}, 1
    s_branch 1b
2:
    s_add_u32 s{sT1}, s{sBETA}, 1
    s_mul_i32 s{sNB}, s{sT1}, 40000
    s_lshr_b32 s{sNB}, s{sNB}, 10
3:
    s_mul_i32 s{sT0}, s{sNB}, {BMUL}
    s_lshr_b32 s{sT0}, s{sT0}, 20
    s_cmp_ge_u32 s{sT0}, s{sT1}
    s_cbranch_scc1 4f
    s_add_u32 s{sNB}, s{sNB}, 1
    s_branch 3b
4:
    s_min_u32 s{sNB}, s{sNB}, {N}
    s_sub_u32 s{sNB}, s{sNB}, s{sSB}
    s_lshl_b32 s{sSB4}, s{sSB}, 2
    v_add_u32 v{vJ16}, 16, v{vJ}
    v_lshrrev_b32 v{vTmp}, 4, v0              ; t>>4
    v_mul_u32_u24 v{vSeg}, {4*CH*8}, v{vTmp}
    v_lshlrev_b32 v{vTmp+7}, 1, v{vLane}""")
    srd(rX, sX, N*D*2)
    srd(rC, sWC, D*2)
    srd(rOFF, sWS, O_BYTES, off=WS_O)
    srd(rCH, sWS, C_BYTES, off=WS_C)
    srd(rTAB, sWS, T_BYTES, w3=0x00800000, stride=4, off=WS_T)
    srd(rTABW, sWS, T_BYTES, off=WS_T)
    srd(rOUT, sOUT, N*D*2)
common_consts()
o(f"""    ; epilogue x address
    v_add_u32 v{vTmp+6}, s{sSB}, v{vTmp}
    v_lshlrev_b32 v{vTmp+6}, 7, v{vTmp+6}
    v_lshl_add_u32 v{vTmp+6}, v{vJ}, 3, v{vTmp+6}
    s_mov_b64 exec, s[{sV625}:{sV625+1}]
    s_waitcnt vmcnt(2)""")
for i in range(4): o(f"    v_mul_u32_u24 v{44+i}, {BMUL}, v{32+i}")
for i in range(4): o(f"    v_lshrrev_b32 v{44+i}, 18, v{44+i}")
for i in range(4): o(f"    v_and_b32 v{44+i}, 0x3fc, v{44+i}")
for i in range(4): o(f"    ds_add_rtn_u32 v{48+i}, v{44+i}, v{vOne} offset:{LDS_CNT1}")
for i in range(4): o(f"    v_and_b32 v{32+i}, 63, v{32+i}")
o("    s_waitcnt vmcnt(0)")
for i in range(4): o(f"    v_lshl_or_b32 v{52+2*i}, v{36+i}, 8, v{32+i}")
o(f"""    v_lshlrev_b32 v53, 16, v40
    v_and_b32 v55, 0xffff0000, v40
    v_lshlrev_b32 v57, 16, v41
    v_and_b32 v59, 0xffff0000, v41
    s_mov_b64 exec, -1
    buffer_load_dwordx2 v[{vXe}:{vXe+1}], v{vTmp+6}, s[{rX}:{rX+3}], 0 offen
    buffer_load_ushort v{vWc}, v{vTmp+7}, s[{rC}:{rC+3}], 0 offen""")
stamp(1)
o(f"""    s_waitcnt lgkmcnt(0)
    s_barrier""")
stamp(2)
o(f"""    s_cmp_lg_u32 s3, 0
    s_cbranch_scc1 K_noscan
    ds_read_b128 v[72:75], v{vT16} offset:{LDS_CNT1}
    s_waitcnt lgkmcnt(0)
    v_add_u32 v76, v72, v73
    v_add_u32 v77, v76, v74
    v_add_u32 v78, v77, v75
    v_mov_b32 v79, v78""")
wave_scan(79)
o(f"""    v_sub_u32 v80, v79, v78
    v_add_u32 v81, v80, v72
    v_add_u32 v82, v80, v76
    v_add_u32 v83, v80, v77
    ds_write_b128 v{vT16}, v[80:83] offset:{LDS_BASE1}
K_noscan:
    s_waitcnt lgkmcnt(0)
    s_barrier""")
stamp(3)
o(f"    s_mov_b64 exec, s[{sV625}:{sV625+1}]")
for i in range(4): o(f"    ds_read_b32 v{40+i}, v{44+i} offset:{LDS_BASE1}")
o("    s_waitcnt lgkmcnt(0)")
for i in range(4): o(f"    v_add_lshl_u32 v{40+i}, v{40+i}, v{48+i}, 3")
for i in range(4): o(f"    ds_write_b64 v{40+i}, v[{52+2*i}:{53+2*i}] offset:{LDS_SORT}")
o(f"""    s_mov_b64 exec, -1
    v_add_u32 v8, {640*16}, v{vT16}
    v_cmp_gt_u32 vcc, {CH*8//16 - 640}, v0
    s_mul_i32 s{sT0}, s2, {CH*8}
    s_mov_b64 s[{sSAVE}:{sSAVE+1}], vcc
    s_waitcnt lgkmcnt(0)
    s_barrier""")
stamp(4)
o(f"""    ds_read_b128 v[32:35], v{vT16} offset:{LDS_SORT}
    s_mov_b64 exec, s[{sSAVE}:{sSAVE+1}]
    ds_read_b128 v[36:39], v8 offset:{LDS_SORT}
    s_mov_b64 exec, -1
    s_waitcnt lgkmcnt(0)
    buffer_store_dwordx4 v[32:35], v{vT16}, s[{rCH}:{rCH+3}], s{sT0} offen{SCW}
    s_mov_b64 exec, s[{sSAVE}:{sSAVE+1}]
    buffer_store_dwordx4 v[36:39], v8, s[{rCH}:{rCH+3}], s{sT0} offen{SCW}
    s_mov_b64 exec, -1""")
stamp(5)
def tags():
    o(f"""    ; this launch's tag
    s_add_u32 s{sEP}, s{sEP}, 1
    s_addc_u32 s{sEP+1}, s{sEP+1}, 0
    s_and_b32 s{sTAGL}, s{sEP}, 0xff
    s_lshl_b32 s{sTAGL}, s{sTAGL}, 24
    s_lshr_b64 s[{sSAVE}:{sSAVE+1}], s[{sEP}:{sEP+1}], 8
    s_mov_b32 s{sTAGH}, s{sSAVE}""")
tags()
o(f"""    ; granule of bucket j (thread j < 256) lives at (j>>4)*32768 + p*128 + (j&15)*8
    v_lshrrev_b32 v8, 4, v0
    v_lshlrev_b32 v86, 15, v8
    v_lshl_add_u32 v86, v{vJ}, 3, v86
    v_and_b32 v9, 255, v0
    v_lshlrev_b32 v9, 2, v9
    ds_read_b32 v84, v9 offset:{LDS_BASE1}
    ds_read_b32 v85, v9 offset:{LDS_CNT1}
    s_waitcnt vmcnt(2) lgkmcnt(0)
    v_lshlrev_b32 v{vWc}, 16, v{vWc}
    v_lshl_or_b32 v84, v85, 12, v84
    v_mul_f32 v{vWc}, {NLOG2E:#x}, v{vWc}
    v_or_b32 v84, s{sTAGL}, v84
    v_mov_b32 v85, s{sTAGH}
    s_lshl_b32 s{sT0}, s2, 7                   ; p*128
    s_waitcnt vmcnt(0)""")
stamp(6)
o(f"""    s_barrier""")
stamp(7)
o(f"""    s_cmp_ge_u32 s3, 4
    s_cbranch_scc1 K_poll_setup
    buffer_store_dwordx2 v[84:85], v86, s[{rOFF}:{rOFF+3}], s{sT0} offen{SC}
    s_branch K_poll_setup""")

vX1, vW1r, vW2r, vXf2 = 32, 72, 88, 16
o(f"""K_tab_start:
    s_sub_u32 s{sT0}, s3, 10
    s_lshr_b32 s{sT2}, s{sT0}, 1              ; tau
    s_and_b32 s{sT3}, s{sT0}, 1               ; half
    s_lshl_b32 s{sT0}, s{sT2}, 4              ; 16*tau
    s_mul_i32 s{sT1}, s2, 40
    s_add_u32 s{sT1}, s{sT1}, s{sT0}
    v_add_u32 v9, s{sT1}, v{vJ}
    v_lshlrev_b32 v10, 7, v9
    v_lshl_add_u32 v10, v{vG4}, 4, v10
    v_subrev_u32 v11, 640, v0                 ; u = t - 640
    v_lshlrev_b32 v12, 4, v11
    v_add_u32 v13, {384*16}, v12
    s_waitcnt lgkmcnt(0)""")
stamp(0, pre=True)
o(f"""    s_add_u32 s{sSAVE}, s{sWS}, {WS_EP:#x}
    s_addc_u32 s{sSAVE+1}, s{sWS+1}, 0
    s_load_dwordx2 s[{sEP}:{sEP+1}], s[{sSAVE}:{sSAVE+1}], 0
    s_barrier                                  ; B0""")
srd(rA, sX, N*D*2); srd(rB, sWB, D*D*2); srd(rC, sWV, D*D*2)
o(f"""    buffer_load_dwordx4 v[{vW1r}:{vW1r+3}], v12, s[{rB}:{rB+3}], 0 offen
    buffer_load_dwordx4 v[{vW1r+4}:{vW1r+7}], v12, s[{rC}:{rC+3}], 0 offen
    buffer_load_dwordx4 v[{vW1r+8}:{vW1r+11}], v13, s[{rB}:{rB+3}], 0 offen
    buffer_load_dwordx4 v[{vW1r+12}:{vW1r+15}], v13, s[{rC}:{rC+3}], 0 offen
    buffer_load_dwordx4 v[{vX1}:{vX1+3}], v10, s[{rA}:{rA+3}], 0 offen
    buffer_load_dwordx4 v[{vX1+4}:{vX1+7}], v10, s[{rA}:{rA+3}], 0 offen offset:64""")
srd(rA, sWA, D*D*2); srd(rB, sWU, D*D*2)
o(f"""    buffer_load_dwordx4 v[{vW2r}:{vW2r+3}], v12, s[{rA}:{rA+3}], 0 offen
    buffer_load_dwordx4 v[{vW2r+4}:{vW2r+7}], v12, s[{rB}:{rB+3}], 0 offen
    buffer_load_dwordx4 v[{vW2r+8}:{vW2r+11}], v13, s[{rA}:{rA+3}], 0 offen
    buffer_load_dwordx4 v[{vW2r+12}:{vW2r+15}], v13, s[{rB}:{rB+3}], 0 offen""")
common_consts()
o(f"""    ; x fragments of the A/U tile tau
    s_lshl_b32 s{sT0}, s{sT2}, 4
    s_add_u32 s{sT0}, s{sT0}, s{sSB}
    v_add_u32 v9, s{sT0}, v{vJ}
    v_lshlrev_b32 v9, 7, v9
    v_lshl_add_u32 v9, v{vG4}, 4, v9
    buffer_load_dwordx4 v[{vXf2}:{vXf2+3}], v9, s[{rX}:{rX+3}], 0 offen
    buffer_load_dwordx4 v[{vXf2+4}:{vXf2+7}], v9, s[{rX}:{rX+3}], 0 offen offset:64
    buffer_load_ushort v{vWc}, v{vTmp+7}, s[{rC}:{rC+3}], 0 offen
    v_lshrrev_b32 v14, 3, v11
    v_mul_u32_u24 v14, {WROW}, v14
    v_and_b32 v15, 7, v11
    v_lshl_add_u32 v14, v15, 4, v14
    v_add_u32 v14, {LDS_W2}, v14
    v_add_u32 v15, {48*WROW}, v14              ; chunk u+384
    v_bfe_u32 v{vTmp+5}, v{vLane}, 2, 2
    v_lshl_add_u32 v{vTmp+5}, v{vG4}, 3, v{vTmp+5}
    v_mul_u32_u24 v{vTmp+5}, {WROW}, v{vTmp+5}
    v_and_b32 v{vTmp+1}, 3, v{vLane}
    v_lshl_add_u32 v{vTmp+5}, v{vTmp+1}, 3, v{vTmp+5}
    s_lshl_b32 s{sT0}, s{sT3}, 6
    s_add_u32 s{sT0}, s{sT0}, {LDS_W2}
    v_add_u32 v{vTmp+5}, s{sT0}, v{vTmp+5}
    s_sub_u32 s{sT0}, s3, 10
    s_mov_b32 s{sT1}, {LDS_U - 3*2304}
    s_cmp_ge_u32 s{sT0}, 3
    s_cselect_b32 s{sT1}, s{sT1}, {LDS_A}
    s_mul_i32 s{sT0}, s{sT0}, 2304
    s_add_u32 s{sT0}, s{sT0}, s{sT1}
    v_mul_u32_u24 v10, 144, v{vJ}
    v_lshl_add_u32 v10, v{vG4}, 4, v10
    v_add_u32 v10, s{sT0}, v10
    v_lshrrev_b32 v11, 3, v{vLane}
    v_mul_u32_u24 v12, 144, v11
    v_and_b32 v13, 7, v{vLane}
    v_lshl_add_u32 v12, v13, 4, v12
    v_add_u32 v12, s{sT0}, v12
    s_lshl_b32 s{sT0}, s{sT2}, 4
    v_add_u32 v11, s{sT0}, v11
    v_lshlrev_b32 v9, 8, v11
    v_lshl_add_u32 v9, v13, 4, v9
    v_mov_b32 v8, 0
    s_waitcnt lgkmcnt(0)
    s_barrier                                  ; B1
    s_barrier                                  ; B2
    s_barrier                                  ; B3
    s_waitcnt vmcnt(0)""")
stamp(1)
o(f"""    ds_write_b128 v14, v[{vW1r}:{vW1r+3}] offset:{128*WROW}
    ds_write_b128 v14, v[{vW1r+4}:{vW1r+7}] offset:{192*WROW}
    ds_write_b128 v14, v[{vW2r}:{vW2r+3}]
    ds_write_b128 v14, v[{vW2r+4}:{vW2r+7}] offset:{64*WROW}
    s_cmp_ge_u32 s3, 12
    s_cbranch_scc1 K_tab_st1
    ds_write_b128 v15, v[{vW1r+8}:{vW1r+11}] offset:{128*WROW}
    ds_write_b128 v15, v[{vW1r+12}:{vW1r+15}] offset:{192*WROW}
    ds_write_b128 v15, v[{vW2r+8}:{vW2r+11}]
    ds_write_b128 v15, v[{vW2r+12}:{vW2r+15}] offset:{64*WROW}
K_tab_st1:
    v_lshlrev_b32 v{vWc}, 16, v{vWc}
    v_mul_f32 v{vWc}, {NLOG2E:#x}, v{vWc}
    s_waitcnt lgkmcnt(0)
    s_mov_b64 exec, 1
    ds_add_u32 v8, v{vOne} offset:{LDS_FLG+4}
    s_mov_b64 exec, -1
    s_mov_b32 s{sSPIN}, 0
K_tab_meet:
    ds_read_b32 v{vTmp}, v8 offset:{LDS_FLG+4}
    s_add_u32 s{sSPIN}, s{sSPIN}, 1
    s_waitcnt lgkmcnt(0)
    v_readfirstlane_b32 s{sT0}, v{vTmp}
    s_cmp_ge_u32 s{sSPIN}, {SPIN_MAX}
    s_cbranch_scc1 K_tab_met
    s_cmp_lt_u32 s{sT0}, 6
    s_cbranch_scc1 K_tab_meet
K_tab_met:""")
def frag(k, s_): return 72 + (k*2+s_)*4
for m in range(2):
    for jj in range(2):
        for s_ in range(2):
            f = frag(m*2+jj, s_)
            off = (2+m)*64*WROW + s_*32*WROW + jj*32
            o(f"    ds_read_b64_tr_b16 v[{f}:{f+1}], v{vTmp+5} offset:{off}")
            o(f"    ds_read_b64_tr_b16 v[{f+2}:{f+3}], v{vTmp+5} offset:{off+4*WROW}")
for k in range(4):
    a_ = 104 + k*4
    o(f"    s_waitcnt lgkmcnt({12-4*k})")
    o(f"    v_mfma_f32_16x16x32_bf16 v[{a_}:{a_+3}], v[{frag(k,0)}:{frag(k,0)+3}], v[{vX1}:{vX1+3}], 0")
    o(f"    v_mfma_f32_16x16x32_bf16 v[{a_}:{a_+3}], v[{frag(k,1)}:{frag(k,1)+3}], v[{vX1+4}:{vX1+7}], v[{a_}:{a_+3}]")
o(f"""    s_mov_b32 s{sT0}, {NLOG2E:#x}
    s_mov_b32 s{sT1}, 0xffff0000
    s_mov_b32 s{sSPIN}, 0x80000000
    s_mov_b32 s{sGOFF}, 0x7fffffff
    s_lshl_b32 s{sSO+1}, s{sT3}, 7
    s_mul_i32 s{sSO+2}, s2, {40*256}
    s_add_u32 s{sSO+2}, s{sSO+2}, s{sSO+1}
    s_nop 1""")
for jj in range(2):
    B = 104 + jj*4; Vv = 112 + jj*4
    t = 40
    for i in range(4): o(f"    v_mul_f32 v{B+i}, s{sT0}, v{B+i}")
    o(f"    v_cvt_pk_bf16_f32 v{t}, v{B}, v{B+1}")
    o(f"    v_cvt_pk_bf16_f32 v{t+1}, v{B+2}, v{B+3}")
    o(f"    v_and_b32 v{B}, 0xffff, v{t}")
    o(f"    v_lshrrev_b32 v{B+1}, 16, v{t}")
    o(f"    v_and_b32 v{B+2}, 0xffff, v{t+1}")
    o(f"    v_lshrrev_b32 v{B+3}, 16, v{t+1}")
    T = 44 + jj*4
    for i in range(4): o(f"    v_and_b32 v{T+i}, s{sGOFF}, v{Vv+i}")
    for i in range(4): o(f"    v_add_u32 v{T+i}, 0x8000, v{T+i}")
    for i in range(4): o(f"    v_sub_u32_e64 v{T+i}, v{T+i}, v{B+i} clamp")
    for i in range(4): o(f"    v_and_or_b32 v{T+i}, v{T+i}, s{sT1}, v{B+i}")
    for i in range(4): o(f"    v_and_or_b32 v{T+i}, v{Vv+i}, s{sSPIN}, v{T+i}")
    o(f"    ds_write_b128 v10, v[{T}:{T+3}] offset:{jj*64}")
o(f"""    s_waitcnt lgkmcnt(0)
    ds_read_b128 v[44:47], v12
    ds_read_b128 v[48:51], v12 offset:{8*144}
    v_cmp_gt_u32 vcc, 40, v11
    s_mov_b64 s[{sM}:{sM+1}], vcc
    v_cmp_gt_u32 vcc, 32, v11
    s_mov_b64 s[{sM+2}:{sM+3}], vcc
    s_waitcnt lgkmcnt(0)
    s_cmp_ge_u32 s2, 250
    s_cbranch_scc1 K_tab_norows
    s_mov_b64 exec, s[{sM}:{sM+1}]
    s_cbranch_execz K_tab_r1
    buffer_store_dwordx4 v[44:47], v9, s[{rTABW}:{rTABW+3}], s{sSO+2} offen{SCW}
K_tab_r1:
    s_mov_b64 exec, s[{sM+2}:{sM+3}]
    s_cbranch_execz K_tab_r2
    buffer_store_dwordx4 v[48:51], v9, s[{rTABW}:{rTABW+3}], s{sSO+2} offen offset:2048{SCW}
K_tab_r2:
    s_mov_b64 exec, -1
    s_branch K_tab_stored
K_tab_norows:
    s_cmp_lg_u32 s2, 250
    s_cbranch_scc1 K_tab_stored
    s_cmp_lg_u32 s3, 10
    s_cbranch_scc1 K_tab_stored
    v_mov_b32 v44, 0x7f00
    s_mov_b32 s{sT0}, {N*256}
    buffer_store_dword v44, v{vLane4}, s[{rTABW}:{rTABW+3}], s{sT0} offen{SCW}
K_tab_stored:""")
stamp(5)
o("    s_barrier")
stamp(7)
vFr, vAcc = 72, 104
for jj in range(2):
    for m in range(2):
        for s_ in range(2):
            f = vFr + ((jj*2+m)*2+s_)*4
            off = m*64*WROW + s_*32*WROW + jj*32
            o(f"    ds_read_b64_tr_b16 v[{f}:{f+1}], v{vTmp+5} offset:{off}")
            o(f"    ds_read_b64_tr_b16 v[{f+2}:{f+3}], v{vTmp+5} offset:{off+4*WROW}")
o(f"""    ; LDS dest: (16*tau + (lane&15))*272 + (32*half + 16*jj + 4*g)*4
    s_lshl_b32 s{sT1}, s{sT2}, 4
    v_add_u32 v9, s{sT1}, v{vJ}
    v_mul_u32_u24 v9, 272, v9
    v_lshl_add_u32 v9, v{vG4}, 4, v9
    s_lshl_b32 s{sT0}, s{sT3}, 7
    v_add_u32 v9, s{sT0}, v9
    v_add_u32 v11, {LDS_U}, v9""")
for k in range(4):
    a_ = vAcc + k*4; f = vFr + k*8
    o(f"    s_waitcnt lgkmcnt({12-4*k})")
    o(f"    v_mfma_f32_16x16x32_bf16 v[{a_}:{a_+3}], v[{f}:{f+3}], v[{vXf2}:{vXf2+3}], 0")
    o(f"    v_mfma_f32_16x16x32_bf16 v[{a_}:{a_+3}], v[{f+4}:{f+7}], v[{vXf2+4}:{vXf2+7}], v[{a_}:{a_+3}]")
o(f"""    s_mov_b32 s{sT0}, {NLOG2E:#x}
    v_mov_b32 v10, 0xc27c0000                  ; -63""")
tags()
o("    s_nop 2")
for jj in range(2):
    a_ = vAcc + jj*8
    for i in range(4): o(f"    v_fma_f32 v{a_+i}, v{a_+i}, s{sT0}, v10")
    o(f"    ds_write_b128 v9, v[{a_}:{a_+3}] offset:{LDS_A + jj*64}")
    o(f"    ds_write_b128 v11, v[{a_+4}:{a_+7}] offset:{jj*64}")
o(f"""    ; table-ready signal: the last table wave whose stores have completed publishes one granule per replica
    s_waitcnt vmcnt(0)""")
stamp(6)
o(f"""    s_mov_b64 exec, 1
    ds_add_rtn_u32 v9, v8, v{vOne} offset:{LDS_FLG+8}
    s_mov_b64 exec, -1
    s_waitcnt lgkmcnt(0)
    v_readfirstlane_b32 s{sT0}, v9
    s_nop 3
    s_cmp_lg_u32 s{sT0}, 5
    s_cbranch_scc1 K_poll_setup
    s_add_u32 s{rA}, s{sWS}, {WS_TF:#x}
    s_addc_u32 s{rA+1}, s{sWS+1}, 0
    s_and_b32 s{rA+1}, s{rA+1}, 0xffff
    s_mov_b32 s{rA+2}, {8*2048}
    s_mov_b32 s{rA+3}, 0x20000
    v_lshlrev_b32 v8, 11, v{vLane}
    v_mov_b32 v10, s{sTAGL}
    v_mov_b32 v11, s{sTAGH}
    s_lshl_b32 s{sT0}, s2, 3
    s_mov_b64 exec, 0xff
    buffer_store_dwordx2 v[10:11], v8, s[{rA}:{rA+3}], s{sT0} offen{SC}
    s_mov_b64 exec, -1""")

vG = 72
vEnt, vIdx, vRank = 28, 44, 52
o(f"""K_poll_setup:
    v_lshrrev_b32 v8, 4, v0
    v_lshlrev_b32 v8, 9, v8                    ; 4*(t>>4)*128
    s_lshr_b32 s{sT0}, s{sBETA}, 4
    s_lshl_b32 s{sT0}, s{sT0}, 15
    s_and_b32 s{sT1}, s{sBETA}, 15
    s_lshl_b32 s{sT1}, s{sT1}, 3
    s_add_u32 s{sGOFF}, s{sT0}, s{sT1}
    s_mov_b32 s{sSPIN}, 0
    v_mov_b32 v9, 0xff000000
K_poll:
    buffer_load_dwordx2 v[{vG}:{vG+1}], v8, s[{rOFF}:{rOFF+3}], s{sGOFF} offen{SC}
    buffer_load_dwordx2 v[{vG+2}:{vG+3}], v8, s[{rOFF}:{rOFF+3}], s{sGOFF} offen offset:128{SC}
    buffer_load_dwordx2 v[{vG+4}:{vG+5}], v8, s[{rOFF}:{rOFF+3}], s{sGOFF} offen offset:256{SC}
    buffer_load_dwordx2 v[{vG+6}:{vG+7}], v8, s[{rOFF}:{rOFF+3}], s{sGOFF} offen offset:384{SC}
    s_add_u32 s{sSPIN}, s{sSPIN}, 1
    s_waitcnt vmcnt(0)""")
def tagcheck(d0s, d1s, mask):
    o(f"    v_xor_b32 v{vTmp}, s{sTAGL}, v{d0s[0]}")
    o(f"    v_xor_b32 v{vTmp+1}, s{sTAGL}, v{d0s[1]}")
    o(f"    v_xor_b32 v{vTmp+2}, s{sTAGL}, v{d0s[2]}")
    o(f"    v_xor_b32 v{vTmp+3}, s{sTAGL}, v{d0s[3]}")
    o(f"    v_or3_b32 v{vTmp}, v{vTmp}, v{vTmp+1}, v{vTmp+2}")
    o(f"    v_or_b32 v{vTmp}, v{vTmp}, v{vTmp+3}")
    o(f"    v_and_b32 v{vTmp}, v{mask}, v{vTmp}")
    o(f"    v_xor_b32 v{vTmp+1}, s{sTAGH}, v{d1s[0]}")
    o(f"    v_xor_b32 v{vTmp+2}, s{sTAGH}, v{d1s[1]}")
    o(f"    v_xor_b32 v{vTmp+3}, s{sTAGH}, v{d1s[2]}")
    o(f"    v_xor_b32 v{vTmp+4}, s{sTAGH}, v{d1s[3]}")
    o(f"    v_or3_b32 v{vTmp}, v{vTmp}, v{vTmp+1}, v{vTmp+2}")
    o(f"    v_or3_b32 v{vTmp}, v{vTmp}, v{vTmp+3}, v{vTmp+4}")
    o(f"    v_cmp_ne_u32 vcc, 0, v{vTmp}")
tagcheck([vG, vG+2, vG+4, vG+6], [vG+1, vG+3, vG+5, vG+7], 9)
o(f"""    s_cbranch_vccz K_poll_ok
    s_cmp_ge_u32 s{sSPIN}, {SPIN_MAX}
    s_cbranch_scc1 K_poll_fail
    s_sleep {SLEEP}
    s_branch K_poll
K_poll_fail:""")
for r in range(4): o(f"    v_mov_b32 v{vG+2*r}, 0")
o("K_poll_ok:")
stamp(8)
stampc(18)
vCnt = 80
o(f"""    s_mov_b32 s{sSO}, 0
    s_mov_b32 s{sSO+1}, {CH*8}
    s_mov_b32 s{sSO+2}, {2*CH*8}
    s_mov_b32 s{sSO+3}, {3*CH*8}""")
for r in range(4):
    T = vG + 2*r
    o(f"""    v_bfe_u32 v{vCnt+r}, v{T}, 12, 12          ; count
    v_and_b32 v{vCnt+4+r}, 0xfff, v{T}
    v_add_u32 v{vCnt+4+r}, v{vCnt+4+r}, v{vJ}
    v_cmp_gt_u32 s[{sM+4*r}:{sM+4*r+1}], v{vCnt+r}, v{vJ}
    v_lshl_add_u32 v{vCnt+4+r}, v{vCnt+4+r}, 3, v{vSeg}""")
for r in range(4):
    o(f"""    s_mov_b64 exec, s[{sM+4*r}:{sM+4*r+1}]
    buffer_load_dwordx2 v[{vEnt+4*r}:{vEnt+4*r+1}], v{vCnt+4+r}, s[{rCH}:{rCH+3}], s{sSO+r} offen{SCE}""")
o(f"""    s_mov_b64 exec, -1
    v_max3_u32 v{vTmp}, v{vCnt}, v{vCnt+1}, v{vCnt+2}
    v_max_u32 v{vTmp}, v{vTmp}, v{vCnt+3}
    v_cmp_lt_u32 vcc, 16, v{vTmp}
    s_mov_b64 s[{sBIG}:{sBIG+1}], vcc
    s_cbranch_vccz K_nok1""")
for r in range(4):
    o(f"""    v_cmp_gt_u32 s[{sM+4*r+2}:{sM+4*r+3}], v{vCnt+r}, v{vJ16}""")
o("    s_nop 1")
for r in range(4):
    o(f"""    s_mov_b64 exec, s[{sM+4*r+2}:{sM+4*r+3}]
    s_cbranch_execz K_nok1_{r}
    buffer_load_dwordx2 v[{vEnt+4*r+2}:{vEnt+4*r+3}], v{vCnt+4+r}, s[{rCH}:{rCH+3}], s{sSO+r} offen offset:128{SCE}
K_nok1_{r}:""")
o(f"""    s_mov_b64 exec, -1
    v_cmp_lt_u32 vcc, 32, v{vTmp}
    s_cbranch_vccz K_nok1
    v_mov_b32 v{vTmp}, 0
    ds_write_b32 v{vTmp}, v{vOne} offset:{LDS_FLG}
K_nok1:
    s_waitcnt vmcnt(0)""")
stamp(9)
def slots(ks): return [r*2+k for r in range(4) for k in ks]
def hist(es):
    for e in es:
        d0 = vEnt + 2*e
        o(f"    v_lshlrev_b32 v{vIdx+e}, 2, v{d0}")
        o(f"    v_subrev_u32 v{vIdx+e}, s{sSB4}, v{vIdx+e}")
        o(f"    v_and_b32 v{vIdx+e}, 0xfc, v{vIdx+e}")
        o(f"    s_mov_b64 exec, s[{sM+2*e}:{sM+2*e+1}]")
        o(f"    ds_add_rtn_u32 v{vRank+e}, v{vIdx+e}, v{vOne} offset:{LDS_CNT2}")
        o(f"    s_mov_b64 exec, -1")
hist(slots([0]))
o(f"    s_cmp_eq_u64 s[{sBIG}:{sBIG+1}], 0\n    s_cbranch_scc1 K_noh1")
hist(slots([1]))
o(f"""K_noh1:
    s_waitcnt lgkmcnt(0)
    s_barrier""")
stamp(10)
o(f"""    ds_read_b32 v{vInc}, v{vLane4} offset:{LDS_CNT2}
    v_mov_b32 v{vTmp}, 0
    ds_read_b32 v{vTmp+1}, v{vTmp} offset:{LDS_FLG}
    v_lshlrev_b32 v100, 5, v{vLane}
    v_mov_b32 v101, 0xff000000
    s_cmp_lg_u32 s3, 15
    s_cbranch_scc1 K_notf0
    s_add_u32 s{rB}, s{sWS}, {WS_TF:#x}
    s_addc_u32 s{rB+1}, s{sWS+1}, 0
    s_and_b32 s{rB+1}, s{rB+1}, 0xffff
    s_mov_b32 s{rB+2}, {8*2048}
    s_mov_b32 s{rB+3}, 0x20000
    s_and_b32 s{sT3}, s2, 7
    s_lshl_b32 s{sT3}, s{sT3}, 11
    s_mov_b32 s{sSPIN}, 0
    buffer_load_dwordx4 v[88:91], v100, s[{rB}:{rB+3}], s{sT3} offen{SC}
    buffer_load_dwordx4 v[92:95], v100, s[{rB}:{rB+3}], s{sT3} offen offset:16{SC}
K_notf0:""")
if PREF:
    o(f"""    ; pull this workgroup's share of the table into the L2 of its die (speed only)
    s_lshr_b32 s{sT0}, s2, 3
    s_mul_i32 s{sT0}, s{sT0}, {16*5*1024}
    s_mul_i32 s{sT1}, s3, {5*1024}
    s_add_u32 s{sT0}, s{sT0}, s{sT1}
    v_lshlrev_b32 v8, 4, v{vLane}""")
    for i in range(5):
        o(f"    buffer_load_dwordx4 v[100:103], v8, s[{rTABW}:{rTABW+3}], s{sT0} offen offset:{(i%4)*1024}{SC}" if i < 4 else
          f"    s_add_u32 s{sT0}, s{sT0}, 4096\n    buffer_load_dwordx4 v[100:103], v8, s[{rTABW}:{rTABW+3}], s{sT0} offen{SC}")
o(f"""    ; workgroup 0 records this launch's epoch (all workgroups have read the old one by now)
    s_or_b32 s{sT0}, s2, s3
    s_cmp_lg_u32 s{sT0}, 0
    s_cbranch_scc1 K_noep
    s_add_u32 s{rA}, s{sWS}, {WS_EP:#x}
    s_addc_u32 s{rA+1}, s{sWS+1}, 0
    s_and_b32 s{rA+1}, s{rA+1}, 0xffff
    s_mov_b32 s{rA+2}, 8
    s_mov_b32 s{rA+3}, 0x20000
    v_mov_b32 v8, s{sEP}
    v_mov_b32 v9, s{sEP+1}
    s_mov_b64 exec, 1
    buffer_store_dwordx2 v[8:9], v{vTmp}, s[{rA}:{rA+3}], 0 offen
    s_mov_b64 exec, -1
K_noep:
    s_waitcnt lgkmcnt(0)
    v_add_u32 v{vInc}, 3, v{vInc}
    v_readfirstlane_b32 s{sT0}, v{vTmp+1}
    v_lshrrev_b32 v{vInc}, 2, v{vInc}
    v_mov_b32 v{vBase}, v{vInc}""")
fill = [f"v_and_b32 v{vEnt+2*e}, 0xffffff00, v{vEnt+2*e}" for e in range(8)] + \
       [f"s_lshl_b32 s{sT2}, 1, s3", f"v_mov_b32 v{vTmp+2}, s{sT2}"]
wave_scan(vInc, fill)
vPos = 80
o(f"""    v_sub_u32 v{vTmp+3}, v{vInc}, v{vBase}
    v_lshlrev_b32 v{vBase}, 2, v{vTmp+3}
    v_readlane_b32 s{sQ}, v{vInc}, 63
    s_cmp_lg_u32 s{sT0}, 0
    s_cbranch_scc1 K_slow""")
for e in slots([0]): o(f"    ds_bpermute_b32 v{vPos+e}, v{vIdx+e}, v{vBase}")
o(f"""    s_cmp_gt_u32 s{sQ}, {CAPQ}
    s_cbranch_scc1 K_slow
    s_mul_i32 s{sQ0}, s{sQ}, s3
    s_lshr_b32 s{sQ0}, s{sQ0}, 4
    s_add_u32 s{sT0}, s3, 1
    s_mul_i32 s{sQ1}, s{sQ}, s{sT0}
    s_lshr_b32 s{sQ1}, s{sQ1}, 4
    v_cmp_ge_u32 vcc, s{sQ0}, v{vInc}
    s_bcnt1_i32_b64 s{sNODE}, vcc
    v_cmp_lt_u32 s[{rA}:{rA+1}], s{sQ0}, v{vInc}
    v_cmp_gt_u32 s[{rA+2}:{rA+3}], s{sQ1}, v{vTmp+3}
    v_cmp_gt_u32 vcc, v{vInc}, v{vTmp+3}
    v_readlane_b32 s{sBND}, v{vInc}, s{sNODE}
    s_and_b64 s[{rA}:{rA+1}], s[{rA}:{rA+1}], s[{rA+2}:{rA+3}]
    s_and_b64 s[{rA}:{rA+1}], s[{rA}:{rA+1}], vcc
    s_cmp_lt_u32 s{sQ0}, s{sQ1}
    s_cselect_b64 exec, s[{rA}:{rA+1}], 0
    ds_or_b32 v{vLane4}, v{vTmp+2} offset:{LDS_MSK}
    s_mov_b64 exec, -1
    s_waitcnt lgkmcnt(0)""")
def place(es, bperm):
    if bperm:
        for e in es: o(f"    ds_bpermute_b32 v{vPos+e}, v{vIdx+e}, v{vBase}")
        o("    s_waitcnt lgkmcnt(0)")
    for e in es: o(f"    v_add_lshl_u32 v{vPos+e}, v{vPos+e}, v{vRank+e}, 2")
    for e in es:
        d0 = vEnt + 2*e
        o(f"    s_mov_b64 exec, s[{sM+2*e}:{sM+2*e+1}]")
        o(f"    ds_write_b32 v{vPos+e}, v{d0} offset:{LDS_O}")
        o(f"    ds_write_b32 v{vPos+e}, v{d0+1} offset:{LDS_E}")
    o(f"    s_mov_b64 exec, -1")
place(slots([0]), False)
o(f"    s_cmp_eq_u64 s[{sBIG}:{sBIG+1}], 0\n    s_cbranch_scc1 K_nop1")
place(slots([1]), True)
vA, vAn, vDen, vNum, vAA, vLA, vSL = 8, 9, 10, 12, 14, 15, 27
vO = 16
vE = [20, 28]
vDr = [32, 36, 40, 44]
vU, vAa, vP, vS_, vQ, vR = 48, 52, 56, 58, 62, 64
vF = 66
RING = 4
o(f"""K_nop1:
    s_mul_i32 s{sT0}, s{sNODE}, 272
    v_add_u32 v{vAA}, s{sT0}, v{vLane4}
    s_add_u32 s{sT1}, s{sNODE}, s3
    s_lshl_b32 s{sT1}, s{sT1}, 9
    v_add_u32 v{vSL}, s{sT1}, v{vLane4}
    s_lshl_b32 s{sT0}, s{sQ0}, 4
    v_mov_b32 v{vLA}, s{sT0}
    ds_read_b32 v{vA}, v{vAA} offset:{LDS_A}
    ds_read_b32 v{vAn}, v{vAA} offset:{LDS_A+272}
    s_min_u32 s{sSTOP}, s{sBND}, s{sQ1}
    s_sub_u32 s{sREM}, s{sSTOP}, s{sQ0}
    s_mov_b32 s{sC63}, 0x5f000000                ; 2^63
    s_mov_b32 s{sC63+1}, 0x5f000000
    s_mov_b32 s{sSEL}, 0x00003f80
    s_mov_b32 s{sIT}, 0
    v_mov_b64 v[{vDen}:{vDen+1}], 0
    v_mov_b64 v[{vNum}:{vNum+1}], 0
    s_cmp_lg_u32 s3, 15
    s_cbranch_scc1 K_notf
    s_branch K_tfchk
K_tfpoll:
    buffer_load_dwordx4 v[88:91], v100, s[{rB}:{rB+3}], s{sT3} offen{SC}
    buffer_load_dwordx4 v[92:95], v100, s[{rB}:{rB+3}], s{sT3} offen offset:16{SC}
K_tfchk:
    s_add_u32 s{sSPIN}, s{sSPIN}, 1
    s_waitcnt vmcnt(0)""")
tagcheck([88, 90, 92, 94], [89, 91, 93, 95], 101)
o(f"""    s_cbranch_vccz K_notf
    s_cmp_ge_u32 s{sSPIN}, {SPIN_MAX}
    s_cbranch_scc1 K_notf
    s_sleep 1
    s_branch K_tfpoll
K_notf:
    s_waitcnt lgkmcnt(0)
    s_barrier""")
stamp(11)
stampc(14)
o(f"""    s_cmp_ge_u32 s{sQ0}, s{sQ1}
    s_cbranch_scc1 K_main_done
    ds_read_b128 v[{vO}:{vO+3}], v{vLA} offset:{LDS_O}
    ds_read_b128 v[{vU}:{vU+3}], v{vLA} offset:{LDS_O+16}
    ds_read_b128 v[{vAa}:{vAa+3}], v{vLA} offset:{LDS_O+32}
    ds_read_b128 v[{vE[0]}:{vE[0]+3}], v{vLA} offset:{LDS_E}
    s_setprio 3
    s_waitcnt lgkmcnt(3)""")
for i in range(4): o(f"    buffer_load_dword v{vDr[0]+i}, v{vO+i}, s[{rTAB}:{rTAB+3}], 0 offen{SC}")
o(f"    ds_read_b128 v[{vO}:{vO+3}], v{vLA} offset:{LDS_O+48}")
o("    s_waitcnt lgkmcnt(3)")
for i in range(4): o(f"    buffer_load_dword v{vDr[1]+i}, v{vU+i}, s[{rTAB}:{rTAB+3}], 0 offen{SC}")
o("    s_waitcnt lgkmcnt(2)")
for i in range(4): o(f"    buffer_load_dword v{vDr[2]+i}, v{vAa+i}, s[{rTAB}:{rTAB+3}], 0 offen{SC}")
o(".p2align 3")
o("K_loop:")
for k in range(RING):
    e = vE[k%2]; en = vE[(k+1)%2]; Dk = vDr[k]; Dn = vDr[(k+RING-1)%RING]
    o(f"    s_waitcnt lgkmcnt(0)")
    o(f"    s_sub_u32 s{sREM}, s{sREM}, 1")
    for i in range(4):
        o(f"    buffer_load_dword v{Dn+i}, v{vO+i}, s[{rTAB}:{rTAB+3}], 0 offen{SC}")
    o(f"    ds_read_b128 v[{vO}:{vO+3}], v{vLA} offset:{LDS_O+16*(k+RING)}")
    o(f"    ds_read_b128 v[{en}:{en+3}], v{vLA} offset:{LDS_E+16*(k+1)}")
    o(f"    s_cbranch_scc1 K_h{k}")
    o(f"K_r{k}:")
    o(f"    s_waitcnt vmcnt({4*(RING-1)})")
    o(f"    v_pk_fma_f32 v[{vU}:{vU+1}], v[{e}:{e+1}], v[{vWc}:{vWc+1}], v[{vA}:{vA+1}] op_sel_hi:[1,0,0]")
    o(f"    v_pk_fma_f32 v[{vU+2}:{vU+3}], v[{e+2}:{e+3}], v[{vWc}:{vWc+1}], v[{vA}:{vA+1}] op_sel_hi:[1,0,0]")
    for i in range(4): o(f"    v_dot2c_f32_bf16 v{vU+i}, s{sSEL}, v{Dk+i}")
    for i in range(4): o(f"    v_exp_f32_e64 v{vU+i}, v{vU+i} clamp")
    o(f"    v_pk_fma_f32 v[{vAa}:{vAa+1}], v[{vU}:{vU+1}], s[{sC63}:{sC63+1}], 1.0 op_sel_hi:[1,0,0]")
    o(f"    v_pk_fma_f32 v[{vAa+2}:{vAa+3}], v[{vU+2}:{vU+3}], s[{sC63}:{sC63+1}], 1.0 op_sel_hi:[1,0,0]")
    o(f"    v_pk_mul_f32 v[{vP}:{vP+1}], v[{vAa}:{vAa+1}], v[{vAa+2}:{vAa+3}]")
    o(f"    v_pk_add_f32 v[{vS_}:{vS_+1}], v[{vAa}:{vAa+1}], v[{vAa+2}:{vAa+3}]")
    o(f"    v_rcp_f32 v{vR}, v{vP}")
    o(f"    v_rcp_f32 v{vR+1}, v{vP+1}")
    o(f"    v_pk_mul_f32 v[{vQ}:{vQ+1}], v[{vAa+2}:{vAa+3}], v[{Dk}:{Dk+1}]")
    o(f"    v_pk_fma_f32 v[{vQ}:{vQ+1}], v[{vAa}:{vAa+1}], v[{Dk+2}:{Dk+3}], v[{vQ}:{vQ+1}]")
    o(f"    v_pk_fma_f32 v[{vDen}:{vDen+1}], v[{vS_}:{vS_+1}], v[{vR}:{vR+1}], v[{vDen}:{vDen+1}]")
    o(f"    v_pk_fma_f32 v[{vNum}:{vNum+1}], v[{vQ}:{vQ+1}], v[{vR}:{vR+1}], v[{vNum}:{vNum+1}]")
o(f"""    v_add_u32 v{vLA}, {16*RING}, v{vLA}
    s_add_u32 s{sIT}, s{sIT}, 1
    s_cmp_eq_u32 s{sIT}, 4
    s_cbranch_scc1 K_p2
    s_cmp_eq_u32 s{sIT}, 7
    s_cbranch_scc1 K_p1
    s_cmp_eq_u32 s{sIT}, 9
    s_cbranch_scc0 K_loop
    s_setprio 0
    s_branch K_loop
K_p2:
    s_setprio 2
    s_branch K_loop
K_p1:
    s_setprio 1
    s_branch K_loop""")
for k in range(RING):
    o(f"""K_h{k}:
    v_add_f32 v{vF}, v{vDen}, v{vDen+1}
    v_add_f32 v{vF+1}, v{vNum}, v{vNum+1}
    s_add_u32 s{sNODE}, s{sNODE}, 1
    ds_write_b32 v{vSL}, v{vF} offset:{LDS_SL}
    ds_write_b32 v{vSL}, v{vF+1} offset:{LDS_SL+256}
    s_cmp_ge_u32 s{sSTOP}, s{sQ1}
    s_cbranch_scc1 K_main_done
    v_readlane_b32 s{sBND}, v{vInc}, s{sNODE}
    v_mov_b64 v[{vDen}:{vDen+1}], 0
    v_mov_b64 v[{vNum}:{vNum+1}], 0
    v_mov_b32 v{vA}, v{vAn}
    v_add_u32 v{vAA}, 272, v{vAA}
    v_add_u32 v{vSL}, 512, v{vSL}
    s_cmp_eq_u32 s{sBND}, s{sSTOP}
    s_cbranch_scc1 K_hs{k}
    ds_read_b32 v{vAn}, v{vAA} offset:{LDS_A+272}
K_hr{k}:
    s_mov_b32 s{sT0}, s{sSTOP}
    s_min_u32 s{sSTOP}, s{sBND}, s{sQ1}
    s_sub_u32 s{sREM}, s{sSTOP}, s{sT0}
    s_sub_u32 s{sREM}, s{sREM}, 1
    s_branch K_r{k}
K_hs{k}:
    s_add_u32 s{sNODE}, s{sNODE}, 1
    v_readlane_b32 s{sBND}, v{vInc}, s{sNODE}
    v_add_u32 v{vAA}, 272, v{vAA}
    v_add_u32 v{vSL}, 512, v{vSL}
    s_nop 1
    s_cmp_eq_u32 s{sBND}, s{sSTOP}
    s_cbranch_scc1 K_hs{k}
    ds_read_b32 v{vA}, v{vAA} offset:{LDS_A}
    ds_read_b32 v{vAn}, v{vAA} offset:{LDS_A+272}
    s_waitcnt lgkmcnt(0)
    s_branch K_hr{k}""")

sP, sCNT, sPOS, sN, sEN = 4, 5, 6, 7, 8
o(f"""K_slow:
    s_add_u32 s{rB}, s{sWS}, {WS_TF:#x}
    s_addc_u32 s{rB+1}, s{sWS+1}, 0
    s_and_b32 s{rB+1}, s{rB+1}, 0xffff
    s_mov_b32 s{rB+2}, {8*2048}
    s_mov_b32 s{rB+3}, 0x20000
    s_and_b32 s{sT3}, s2, 7
    s_lshl_b32 s{sT3}, s{sT3}, 11
    v_lshlrev_b32 v100, 5, v{vLane}
    v_mov_b32 v101, 0xff000000
    s_mov_b32 s{sSPIN}, 0
K_s_tf:
    buffer_load_dwordx4 v[88:91], v100, s[{rB}:{rB+3}], s{sT3} offen{SC}
    buffer_load_dwordx4 v[92:95], v100, s[{rB}:{rB+3}], s{sT3} offen offset:16{SC}
    s_add_u32 s{sSPIN}, s{sSPIN}, 1
    s_waitcnt vmcnt(0)""")
tagcheck([88, 90, 92, 94], [89, 91, 93, 95], 101)
o(f"""    s_cbranch_vccz K_s_go
    s_cmp_ge_u32 s{sSPIN}, {SPIN_MAX}
    s_cbranch_scc1 K_s_go
    s_sleep 4
    s_branch K_s_tf
K_s_go:
    s_mov_b32 s{sC63}, 0x5f000000
    s_mov_b32 s{sSEL}, 0x00003f80
    s_mov_b32 s{sN}, s3
    v_mov_b32 v{vTmp}, 0
K_s_node:
    s_cmp_ge_u32 s{sN}, s{sNB}
    s_cbranch_scc1 K_main_done
    s_mul_i32 s{sT0}, s{sN}, 272
    v_add_u32 v{vAA}, s{sT0}, v{vLane4}
    ds_read_b32 v{vA}, v{vAA} offset:{LDS_A}
    v_mov_b32 v{vDen}, 0
    v_mov_b32 v{vNum}, 0
    s_mov_b32 s{sP}, 0
    s_waitcnt lgkmcnt(0)
K_s_prod:
    s_lshl_b32 s{sT0}, s{sP}, 7
    s_add_u32 s{sT0}, s{sT0}, s{sGOFF}
    buffer_load_dword v{vU}, v{vTmp}, s[{rOFF}:{rOFF+3}], s{sT0} offen{SC}
    s_waitcnt vmcnt(0)
    v_readfirstlane_b32 s{sCNT}, v{vU}
    s_nop 3
    s_and_b32 s{sPOS}, s{sCNT}, 0xfff
    s_bfe_u32 s{sCNT}, s{sCNT}, 0xc000c
    s_mul_i32 s{sT0}, s{sP}, {CH}
    s_add_u32 s{sPOS}, s{sPOS}, s{sT0}
    s_lshl_b32 s{sPOS}, s{sPOS}, 3
K_s_ent:
    s_cmp_eq_u32 s{sCNT}, 0
    s_cbranch_scc1 K_s_prod_next
    buffer_load_dwordx2 v[{vU}:{vU+1}], v{vTmp}, s[{rCH}:{rCH+3}], s{sPOS} offen{SC}
    s_waitcnt vmcnt(0)
    v_readfirstlane_b32 s{sEN}, v{vU}
    s_nop 3
    s_sub_u32 s{sT0}, s{sEN}, s{sSB}
    s_and_b32 s{sT0}, s{sT0}, 63
    s_cmp_lg_u32 s{sT0}, s{sN}
    s_cbranch_scc1 K_s_ent_next
    s_and_b32 s{sT0}, s{sEN}, 0xffffff00
    buffer_load_dword v{vU+2}, off, s[{rTAB}:{rTAB+3}], s{sT0}{SC}
    v_fma_f32 v{vU}, v{vU+1}, v{vWc}, v{vA}
    s_waitcnt vmcnt(0)
    v_dot2c_f32_bf16 v{vU}, s{sSEL}, v{vU+2}
    s_nop 2
    v_exp_f32_e64 v{vU}, v{vU} clamp
    s_nop 0
    v_fma_f32 v{vU}, v{vU}, s{sC63}, 1.0
    v_rcp_f32 v{vU}, v{vU}
    s_nop 0
    v_add_f32 v{vDen}, v{vDen}, v{vU}
    v_fmac_f32 v{vNum}, v{vU}, v{vU+2}
K_s_ent_next:
    s_add_u32 s{sPOS}, s{sPOS}, 8
    s_sub_u32 s{sCNT}, s{sCNT}, 1
    s_branch K_s_ent
K_s_prod_next:
    s_add_u32 s{sP}, s{sP}, 1
    s_cmp_lt_u32 s{sP}, {NB}
    s_cbranch_scc1 K_s_prod
    s_lshl_b32 s{sT0}, s{sN}, 9
    v_add_u32 v{vF+2}, s{sT0}, v{vLane4}
    ds_write_b32 v{vF+2}, v{vDen} offset:{LDS_SL}
    ds_write_b32 v{vF+2}, v{vNum} offset:{LDS_SL+256}
    s_lshl_b32 s{sT0}, s{sN}, 2
    v_mov_b32 v{vF+3}, s{sT0}
    s_mov_b64 exec, 1
    ds_write_b32 v{vF+3}, v{vOne} offset:{LDS_MSK}
    s_mov_b64 exec, -1
    s_add_u32 s{sN}, s{sN}, 16
    s_branch K_s_node""")

eN, eC, eM, eW, eAd = 8, 9, 10, 11, 12
eDen, eNum, eT0, eT1, eU = 16, 20, 28, 32, 36
o(f"""K_main_done:
    s_setprio 0
    v_lshrrev_b32 v{eN}, 4, v0
    v_and_b32 v{eC}, 15, v0
    v_mul_u32_u24 v13, 272, v{eN}
    v_lshl_add_u32 v13, v{eC}, 4, v13
    v_add_u32 v13, {LDS_U}, v13
    v_lshlrev_b32 v{eAd}, 2, v{eN}
    s_waitcnt vmcnt(0) lgkmcnt(0)""")
stamp(12)
stampc(15)
o(f"""    s_barrier
    s_cmp_ge_u32 s3, 10
    s_cbranch_scc1 K_exit
    ds_read_b32 v{eM}, v{eAd} offset:{LDS_MSK}
    ds_read_b128 v[{eU}:{eU+3}], v13
    v_lshlrev_b32 v{eT0}, 16, v{vXe}
    v_and_b32 v{eT0+1}, 0xffff0000, v{vXe}
    v_lshlrev_b32 v{eT0+2}, 16, v{vXe+1}
    v_and_b32 v{eT0+3}, 0xffff0000, v{vXe+1}
    v_add_u32 v{eAd}, s{sSB}, v{eN}
    v_lshlrev_b32 v{eAd}, 7, v{eAd}
    v_lshl_add_u32 v{eAd}, v{eC}, 3, v{eAd}
    v_mov_b64 v[{eDen}:{eDen+1}], 0
    v_mov_b64 v[{eDen+2}:{eDen+3}], 0
    v_mov_b64 v[{eNum}:{eNum+1}], 0
    v_mov_b64 v[{eNum+2}:{eNum+3}], 0
    v_lshlrev_b32 v14, 4, v{eC}
    v_lshl_add_u32 v14, v{eN}, 9, v14            ; node*512 + c*16
    s_waitcnt lgkmcnt(1)
K_e_loop:
    v_cmp_ne_u32 vcc, 0, v{eM}
    s_and_saveexec_b64 s[{sSAVE}:{sSAVE+1}], vcc
    s_cbranch_execz K_e_end
    v_ffbl_b32 v{eW}, v{eM}
    v_lshl_add_u32 v{eW}, v{eW}, 9, v14
    ds_read_b128 v[40:43], v{eW} offset:{LDS_SL}
    ds_read_b128 v[44:47], v{eW} offset:{LDS_SL+256}
    v_add_u32 v{eW}, -1, v{eM}
    v_and_b32 v{eM}, v{eM}, v{eW}
    s_waitcnt lgkmcnt(0)
    v_pk_add_f32 v[{eDen}:{eDen+1}], v[{eDen}:{eDen+1}], v[40:41]
    v_pk_add_f32 v[{eDen+2}:{eDen+3}], v[{eDen+2}:{eDen+3}], v[42:43]
    v_pk_add_f32 v[{eNum}:{eNum+1}], v[{eNum}:{eNum+1}], v[44:45]
    v_pk_add_f32 v[{eNum+2}:{eNum+3}], v[{eNum+2}:{eNum+3}], v[46:47]
    s_mov_b64 exec, s[{sSAVE}:{sSAVE+1}]
    s_branch K_e_loop
K_e_end:
    s_mov_b64 exec, s[{sSAVE}:{sSAVE+1}]
    s_waitcnt lgkmcnt(0)""")
for i in range(4): o(f"    v_add_f32 v{eDen+i}, 0x358637bd, v{eDen+i}")
for i in range(4): o(f"    v_rcp_f32 v{eDen+i}, v{eDen+i}")
o(f"    v_cmp_gt_u32 vcc, s{sNB}, v{eN}")
for i in range(4): o(f"    v_fma_f32 v{eU+i}, v{eNum+i}, v{eDen+i}, v{eU+i}")
for i in range(4): o(f"    v_max_f32 v{eU+i}, 0, v{eU+i}")
for i in range(4): o(f"    v_add_f32 v{eU+i}, v{eU+i}, v{eT0+i}")
o(f"""    v_cvt_pk_bf16_f32 v{eT1}, v{eU}, v{eU+1}
    v_cvt_pk_bf16_f32 v{eT1+1}, v{eU+2}, v{eU+3}
    s_and_saveexec_b64 s[{sSAVE}:{sSAVE+1}], vcc
    s_cbranch_execz K_exit
    buffer_store_dwordx2 v[{eT1}:{eT1+1}], v{eAd}, s[{rOUT}:{rOUT+3}], 0 offen
K_exit:""")
if STAMP:
    o("    s_mov_b64 exec, -1\n    s_waitcnt vmcnt(0)")
    stamp(13)
    stamp_flush()
o("K_done:\n    s_endpgm")
o(f""".section .rodata,"a"
.p2align 6
.amdhsa_kernel {NAME}
  .amdhsa_next_free_vgpr 128
  .amdhsa_next_free_sgpr 102
  .amdhsa_accum_offset 128
  .amdhsa_group_segment_fixed_size 0
  .amdhsa_kernarg_size 96
  .amdhsa_user_sgpr_count 2
  .amdhsa_user_sgpr_kernarg_segment_ptr 1
  .amdhsa_system_sgpr_workgroup_id_x 1
  .amdhsa_dx10_clamp 0
.end_amdhsa_kernel""")
print("\n".join(L))
```

```python
import sys
FL = set(sys.argv[1].split(',')) if len(sys.argv) > 1 else set()
STAMP = "stamp" in FL
PREF = "nopref" not in FL
NAME = "standalone__edge_featured_mpnn_gatedgcn__graph_kernel"

L = []
def o(s=""): L.append(s)

N, D, E = 10000, 64, 640000
NB = 256
CH = E // NB
BMUL = 26843
WS_T = 0
T_BYTES = (N+1)*256
WS_O = 0x280000
O_BYTES = NB*NB*8
WS_C = 0x300000
C_BYTES = NB*CH*8
WS_EP = 0x7F0000
WS_TF = 0x7F1000
WS_STAMP = 0x800000
NLOG2E = 0xBFB8AA3B
WROW = 144
SPIN_MAX = 20000000
SC = " sc1"
def opt(name, default):
    for f in FL:
        if f.startswith(name + "="): return f.split("=")[1]
    return default
SLEEP = int(opt("sleep", 1))
SCW = " " + opt("stf", "sc1").replace("+", " ")
SCE = " " + opt("ldf", "sc1").replace("+", " ")

LDS_CNT2, LDS_MSK, LDS_FLG = 0, 256, 512
LDS_CNT1, LDS_BASE1 = 768, 1792
LDS_O = 2816
LDS_E = LDS_O + 12800
LDS_A = LDS_E + 12800
LDS_SL = LDS_A + 48*272
LDS_U = LDS_SL + 56*512
LDS_W2 = LDS_U + 48*272
LDS_W1 = LDS_W2 + 2*64*WROW
LDS_TOT = LDS_W1 + 2*64*WROW
LDS_SORT = LDS_SL
CAPQ = 768
assert LDS_SORT + CH*8 + 16 < 65536

def srd(dst, base, nrec, w3=0x20000, stride=0, off=0):
    if off:
        o(f"    s_add_u32 s{dst}, s{base}, {off:#x}")
        o(f"    s_addc_u32 s{dst+1}, s{base+1}, 0")
        o(f"    s_and_b32 s{dst+1}, s{dst+1}, 0xffff")
    else:
        o(f"    s_mov_b32 s{dst}, s{base}")
        o(f"    s_and_b32 s{dst+1}, s{base+1}, 0xffff")
    if stride: o(f"    s_or_b32 s{dst+1}, s{dst+1}, {stride<<16:#x}")
    o(f"    s_mov_b32 s{dst+2}, {nrec:#x}")
    o(f"    s_mov_b32 s{dst+3}, {w3:#x}")

SCAN = ("row_shr:1 row_mask:0xf bank_mask:0xf bound_ctrl:1", "row_shr:2 row_mask:0xf bank_mask:0xf bound_ctrl:1",
        "row_shr:4 row_mask:0xf bank_mask:0xf bound_ctrl:1", "row_shr:8 row_mask:0xf bank_mask:0xf bound_ctrl:1",
        "row_bcast:15 row_mask:0xa bank_mask:0xf", "row_bcast:31 row_mask:0xc bank_mask:0xf")
def wave_scan(v, fill=()):
    fill = list(fill)
    for ctl in SCAN:
        if len(fill) >= 2:
            o("    " + fill.pop(0)); o("    " + fill.pop(0))
        else:
            o("    s_nop 1")
        o(f"    v_add_u32_dpp v{v}, v{v}, v{v} {ctl}")
    for f in fill: o("    " + f)

sX, sEA, sSRC, sDST = 4, 6, 8, 10
sWA, sWB, sWC, sWU = 12, 14, 16, 18
sWV, sOUT = 20, 22
sWS = 24
sEP = 26
rA, rB, rC = 28, 32, 36
rX, rOFF, rCH, rTAB, rTABW, rOUT = 40, 44, 48, 52, 56, 60
sSB, sNB, sSB4 = 64, 65, 66
sT0, sT1, sT2, sT3 = 67, 68, 69, 70
sM = 72
sV625 = 72
sBIG = 88
sSO = 90
sTAGL, sTAGH = 94, 95
sSAVE = 96
sSPIN = 98
sGOFF = 99
sBETA = 71
sSTMP = 100
sQ, sQ0, sQ1, sNODE, sBND, sSTOP, sREM = 4, 5, 6, 7, 8, 9, 10
sC63, sSEL, sIT = 12, 14, 15

vLane, vT16, vLane4, vJ, vJ16, vSeg, vG4 = 1, 3, 4, 5, 6, 7, 2
vXe, vWc = 24, 26
vOne = 60
vTmp = 62
vInc, vBase = 70, 71
vST = 127

def stamp(idx, pre=False):
    if not STAMP: return
    if not pre:
        o(f"    s_memrealtime s[{sSTMP}:{sSTMP+1}]")
        o(f"    s_waitcnt lgkmcnt(0)")
    o(f"    v_writelane_b32 v{vST}, s{sSTMP}, {idx}")
def stampc(idx):
    if not STAMP: return
    o(f"    s_memtime s[{sSTMP}:{sSTMP+1}]")
    o(f"    s_waitcnt lgkmcnt(0)")
    o(f"    v_writelane_b32 v{vST}, s{sSTMP}, {idx}")
def stamp_flush():
    if not STAMP: return
    o(f"""    s_mov_b64 exec, -1
    s_lshl_b32 s{sT0}, s2, 4
    s_add_u32 s{sT0}, s{sT0}, s3
    s_lshl_b32 s{sT0}, s{sT0}, 7
    s_add_u32 s{rA}, s{sWS}, {WS_STAMP:#x}
    s_addc_u32 s{rA+1}, s{sWS+1}, 0
    s_and_b32 s{rA+1}, s{rA+1}, 0xffff
    s_mov_b32 s{rA+2}, 0x100000
    s_mov_b32 s{rA+3}, 0x20000
    s_mov_b32 exec_lo, -1
    s_mov_b32 exec_hi, 0
    buffer_store_dword v{vST}, v{vLane4}, s[{rA}:{rA+3}], s{sT0} offen
    s_mov_b64 exec, -1""")

o(f"; @launch grid=({NB},1,1) block=(1024,1,1) lds={LDS_TOT}")
o('.amdgcn_target "amdgcn-amd-amdhsa--gfx950"')
o(".text")
o(f".globl {NAME}\n.p2align 8\n.type {NAME},@function\n{NAME}:")
if STAMP: o(f"    s_memrealtime s[{sSTMP}:{sSTMP+1}]")
o(f"""    s_cmp_ge_u32 s2, {NB}
    s_cbranch_scc1 K_done
    s_load_dwordx8 s[4:11], s[0:1], 0
    s_load_dwordx2 s[{sWS}:{sWS+1}], s[0:1], 88
    s_load_dwordx8 s[12:19], s[0:1], 32        ; w_a, w_b, w_c, w_u
    s_load_dwordx4 s[20:23], s[0:1], 64        ; w_v, out
    v_and_b32 v{vLane}, 63, v0
    v_lshrrev_b32 v{vG4}, 6, v0
    v_lshlrev_b32 v{vT16}, 4, v0
    v_readfirstlane_b32 s3, v{vG4}
    v_lshlrev_b32 v{vLane4}, 2, v{vLane}
    v_mov_b32 v{vOne}, 1
    v_mov_b32 v{vTmp}, 0
    v_lshlrev_b32 v{vTmp+1}, 2, v0
    v_lshlrev_b32 v8, 3, v0                   ; t*8
    v_cmp_gt_u32 vcc, {CH//4}, v0
    s_mul_i32 s{sSO}, s2, {CH*4}
    s_mul_i32 s{sSO+1}, s2, {CH*2}
    s_mov_b64 s[{sV625}:{sV625+1}], vcc
    s_cmp_ge_u32 s3, 7
    s_cbranch_scc1 K_nozero
    ds_write_b32 v{vTmp+1}, v{vTmp}
K_nozero:
    v_mov_b32 v40, {N*256}
    v_mov_b32 v41, {N*256}
    v_mov_b32 v42, {N*256}
    v_mov_b32 v43, {N*256}
    v_mov_b32 v44, 0
    v_mov_b32 v45, 0
    v_mov_b32 v46, 0
    v_mov_b32 v47, 0
    s_cmp_ge_u32 s3, 13
    s_cbranch_scc1 K_nofill
    v_cmp_gt_u32 vcc, 800, v0
    s_and_saveexec_b64 s[{sSAVE}:{sSAVE+1}], vcc
    ds_write_b128 v{vT16}, v[40:43] offset:{LDS_O}
    ds_write_b128 v{vT16}, v[44:47] offset:{LDS_E}
    s_mov_b64 exec, s[{sSAVE}:{sSAVE+1}]
K_nofill:
    v_and_b32 v{vJ}, 15, v{vLane}
    v_lshrrev_b32 v{vG4}, 4, v{vLane}         ; g
    s_cmp_ge_u32 s3, 10
    s_cbranch_scc1 K_tab_start
    s_waitcnt lgkmcnt(0)""")
stamp(0, pre=True)
srd(rA, sDST, E*4)
o(f"""    s_mov_b64 exec, s[{sV625}:{sV625+1}]
    buffer_load_dwordx4 v[32:35], v{vT16}, s[{rA}:{rA+3}], s{sSO} offen
    s_mov_b64 exec, -1""")
srd(rB, sSRC, E*4); srd(rC, sEA, E*2)
o(f"""    s_add_u32 s{sSAVE}, s{sWS}, {WS_EP:#x}
    s_addc_u32 s{sSAVE+1}, s{sWS+1}, 0
    s_load_dwordx2 s[{sEP}:{sEP+1}], s[{sSAVE}:{sSAVE+1}], 0
    s_barrier
    s_mov_b64 exec, s[{sV625}:{sV625+1}]
    buffer_load_dwordx4 v[36:39], v{vT16}, s[{rB}:{rB+3}], s{sSO} offen       ; src
    buffer_load_dwordx2 v[40:41], v8, s[{rC}:{rC+3}], s{sSO+1} offen          ; e
    s_mov_b64 exec, -1""")
def common_consts():
    o(f"""    ; bucket of this workgroup: consecutive buckets on one die (speed only); node range [start(b), start(b+1))
    s_and_b32 s{sBETA}, s2, 7
    s_lshl_b32 s{sBETA}, s{sBETA}, 5
    s_lshr_b32 s{sT0}, s2, 3
    s_or_b32 s{sBETA}, s{sBETA}, s{sT0}
    s_mul_i32 s{sSB}, s{sBETA}, 40000
    s_lshr_b32 s{sSB}, s{sSB}, 10
1:
    s_mul_i32 s{sT0}, s{sSB}, {BMUL}
    s_lshr_b32 s{sT0}, s{sT0}, 20
    s_cmp_ge_u32 s{sT0}, s{sBETA}
    s_cbranch_scc1 2f
    s_add_u32 s{sSB}, s{sSB}, 1
    s_branch 1b
2:
    s_add_u32 s{sT1}, s{sBETA}, 1
    s_mul_i32 s{sNB}, s{sT1}, 40000
    s_lshr_b32 s{sNB}, s{sNB}, 10
3:
    s_mul_i32 s{sT0}, s{sNB}, {BMUL}
    s_lshr_b32 s{sT0}, s{sT0}, 20
    s_cmp_ge_u32 s{sT0}, s{sT1}
    s_cbranch_scc1 4f
    s_add_u32 s{sNB}, s{sNB}, 1
    s_branch 3b
4:
    s_min_u32 s{sNB}, s{sNB}, {N}
    s_sub_u32 s{sNB}, s{sNB}, s{sSB}
    s_lshl_b32 s{sSB4}, s{sSB}, 2
    v_add_u32 v{vJ16}, 16, v{vJ}
    v_lshrrev_b32 v{vTmp}, 4, v0              ; t>>4
    v_mul_u32_u24 v{vSeg}, {4*CH*8}, v{vTmp}
    v_lshlrev_b32 v{vTmp+7}, 1, v{vLane}""")
    srd(rX, sX, N*D*2)
    srd(rC, sWC, D*2)
    srd(rOFF, sWS, O_BYTES, off=WS_O)
    srd(rCH, sWS, C_BYTES, off=WS_C)
    srd(rTAB, sWS, T_BYTES, w3=0x00800000, stride=4, off=WS_T)
    srd(rTABW, sWS, T_BYTES, off=WS_T)
    srd(rOUT, sOUT, N*D*2)
common_consts()
o(f"""    ; epilogue x address
    v_add_u32 v{vTmp+6}, s{sSB}, v{vTmp}
    v_lshlrev_b32 v{vTmp+6}, 7, v{vTmp+6}
    v_lshl_add_u32 v{vTmp+6}, v{vJ}, 3, v{vTmp+6}
    s_mov_b64 exec, s[{sV625}:{sV625+1}]
    s_waitcnt vmcnt(2)""")
for i in range(4): o(f"    v_mul_u32_u24 v{44+i}, {BMUL}, v{32+i}")
for i in range(4): o(f"    v_lshrrev_b32 v{44+i}, 18, v{44+i}")
for i in range(4): o(f"    v_and_b32 v{44+i}, 0x3fc, v{44+i}")
for i in range(4): o(f"    ds_add_rtn_u32 v{48+i}, v{44+i}, v{vOne} offset:{LDS_CNT1}")
for i in range(4): o(f"    v_and_b32 v{32+i}, 63, v{32+i}")
o("    s_mov_b64 exec, -1")
stamp(1)
o(f"""    s_waitcnt lgkmcnt(0)
    s_barrier""")
stamp(2)
o(f"""    s_cmp_lg_u32 s3, 0
    s_cbranch_scc1 K_noscan
    ds_read_b128 v[72:75], v{vT16} offset:{LDS_CNT1}
    s_waitcnt lgkmcnt(0)
    v_add_u32 v76, v72, v73
    v_add_u32 v77, v76, v74
    v_add_u32 v78, v77, v75
    v_mov_b32 v79, v78""")
wave_scan(79)
o(f"""    v_sub_u32 v80, v79, v78
    v_add_u32 v81, v80, v72
    v_add_u32 v82, v80, v76
    v_add_u32 v83, v80, v77
    ds_write_b128 v{vT16}, v[80:83] offset:{LDS_BASE1}
K_noscan:
    s_waitcnt lgkmcnt(0)
    s_barrier""")
stamp(3)
o(f"    s_mov_b64 exec, s[{sV625}:{sV625+1}]")
for i in range(4): o(f"    ds_read_b32 v{12+i}, v{44+i} offset:{LDS_BASE1}")
o("    s_waitcnt vmcnt(0)")
for i in range(4): o(f"    v_lshl_or_b32 v{52+2*i}, v{36+i}, 8, v{32+i}")
o(f"""    v_lshlrev_b32 v53, 16, v40
    v_and_b32 v55, 0xffff0000, v40
    v_lshlrev_b32 v57, 16, v41
    v_and_b32 v59, 0xffff0000, v41
    s_waitcnt lgkmcnt(0)""")
for i in range(4): o(f"    v_add_lshl_u32 v{40+i}, v{12+i}, v{48+i}, 3")
for i in range(4): o(f"    ds_write_b64 v{40+i}, v[{52+2*i}:{53+2*i}] offset:{LDS_SORT}")
o(f"""    s_mov_b64 exec, -1
    v_add_u32 v8, {640*16}, v{vT16}
    v_cmp_gt_u32 vcc, {CH*8//16 - 640}, v0
    s_mul_i32 s{sT0}, s2, {CH*8}
    s_mov_b64 s[{sSAVE}:{sSAVE+1}], vcc
    s_waitcnt lgkmcnt(0)
    s_barrier""")
stamp(4)
o(f"""    ds_read_b128 v[32:35], v{vT16} offset:{LDS_SORT}
    s_mov_b64 exec, s[{sSAVE}:{sSAVE+1}]
    ds_read_b128 v[36:39], v8 offset:{LDS_SORT}
    s_mov_b64 exec, -1
    s_waitcnt lgkmcnt(0)
    buffer_store_dwordx4 v[32:35], v{vT16}, s[{rCH}:{rCH+3}], s{sT0} offen{SCW}
    s_mov_b64 exec, s[{sSAVE}:{sSAVE+1}]
    buffer_store_dwordx4 v[36:39], v8, s[{rCH}:{rCH+3}], s{sT0} offen{SCW}
    s_mov_b64 exec, -1
    buffer_load_dwordx2 v[{vXe}:{vXe+1}], v{vTmp+6}, s[{rX}:{rX+3}], 0 offen
    buffer_load_ushort v{vWc}, v{vTmp+7}, s[{rC}:{rC+3}], 0 offen""")
stamp(5)
def tags():
    o(f"""    ; this launch's tag
    s_add_u32 s{sEP}, s{sEP}, 1
    s_addc_u32 s{sEP+1}, s{sEP+1}, 0
    s_and_b32 s{sTAGL}, s{sEP}, 0xff
    s_lshl_b32 s{sTAGL}, s{sTAGL}, 24
    s_lshr_b64 s[{sSAVE}:{sSAVE+1}], s[{sEP}:{sEP+1}], 8
    s_mov_b32 s{sTAGH}, s{sSAVE}""")
tags()
o(f"""    ; granule of bucket j (thread j < 256) lives at (j>>4)*32768 + p*128 + (j&15)*8
    v_lshrrev_b32 v8, 4, v0
    v_lshlrev_b32 v86, 15, v8
    v_lshl_add_u32 v86, v{vJ}, 3, v86
    v_and_b32 v9, 255, v0
    v_lshlrev_b32 v9, 2, v9
    ds_read_b32 v84, v9 offset:{LDS_BASE1}
    ds_read_b32 v85, v9 offset:{LDS_CNT1}
    s_waitcnt lgkmcnt(0)
    v_lshl_or_b32 v84, v85, 12, v84
    v_or_b32 v84, s{sTAGL}, v84
    v_mov_b32 v85, s{sTAGH}
    s_lshl_b32 s{sT0}, s2, 7                   ; p*128
    s_waitcnt vmcnt(0)
    v_lshlrev_b32 v{vWc}, 16, v{vWc}
    v_mul_f32 v{vWc}, {NLOG2E:#x}, v{vWc}""")
stamp(6)
o(f"""    s_barrier""")
stamp(7)
o(f"""    s_cmp_ge_u32 s3, 4
    s_cbranch_scc1 K_poll_setup
    buffer_store_dwordx2 v[84:85], v86, s[{rOFF}:{rOFF+3}], s{sT0} offen{SC}
    s_branch K_poll_setup""")

vX1, vW1r, vW2r, vXf2 = 32, 72, 88, 16
o(f"""K_tab_start:
    s_sub_u32 s{sT0}, s3, 10
    s_lshr_b32 s{sT2}, s{sT0}, 1              ; tau
    s_and_b32 s{sT3}, s{sT0}, 1               ; half
    s_lshl_b32 s{sT0}, s{sT2}, 4              ; 16*tau
    s_mul_i32 s{sT1}, s2, 40
    s_add_u32 s{sT1}, s{sT1}, s{sT0}
    v_add_u32 v9, s{sT1}, v{vJ}
    v_lshlrev_b32 v10, 7, v9
    v_lshl_add_u32 v10, v{vG4}, 4, v10
    v_subrev_u32 v11, 640, v0                 ; u = t - 640
    v_lshlrev_b32 v12, 4, v11
    v_add_u32 v13, {384*16}, v12
    s_waitcnt lgkmcnt(0)""")
stamp(0, pre=True)
o(f"""    s_add_u32 s{sSAVE}, s{sWS}, {WS_EP:#x}
    s_addc_u32 s{sSAVE+1}, s{sWS+1}, 0
    s_load_dwordx2 s[{sEP}:{sEP+1}], s[{sSAVE}:{sSAVE+1}], 0
    s_barrier                                  ; B0""")
srd(rA, sX, N*D*2); srd(rB, sWB, D*D*2); srd(rC, sWV, D*D*2)
o(f"""    buffer_load_dwordx4 v[{vX1}:{vX1+3}], v10, s[{rA}:{rA+3}], 0 offen
    buffer_load_dwordx4 v[{vX1+4}:{vX1+7}], v10, s[{rA}:{rA+3}], 0 offen offset:64
    buffer_load_dwordx4 v[{vW1r}:{vW1r+3}], v12, s[{rB}:{rB+3}], 0 offen
    buffer_load_dwordx4 v[{vW1r+4}:{vW1r+7}], v12, s[{rC}:{rC+3}], 0 offen
    s_cmp_ge_u32 s3, 12
    s_cbranch_scc1 K_tab_ld1
    buffer_load_dwordx4 v[{vW1r+8}:{vW1r+11}], v13, s[{rB}:{rB+3}], 0 offen
    buffer_load_dwordx4 v[{vW1r+12}:{vW1r+15}], v13, s[{rC}:{rC+3}], 0 offen
K_tab_ld1:
    v_mov_b32 v16, v12
    v_mov_b32 v17, v13""")
common_consts()
o(f"""    ; staging addresses of chunks u and u+384: (c>>3)*WROW + (c&7)*16
    v_lshrrev_b32 v14, 3, v11
    v_mul_u32_u24 v14, {WROW}, v14
    v_and_b32 v15, 7, v11
    v_lshl_add_u32 v14, v15, 4, v14
    v_add_u32 v14, {LDS_W2}, v14
    v_add_u32 v15, {48*WROW}, v14              ; chunk u+384
    v_bfe_u32 v{vTmp+5}, v{vLane}, 2, 2
    v_lshl_add_u32 v{vTmp+5}, v{vG4}, 3, v{vTmp+5}
    v_mul_u32_u24 v{vTmp+5}, {WROW}, v{vTmp+5}
    v_and_b32 v{vTmp+1}, 3, v{vLane}
    v_lshl_add_u32 v{vTmp+5}, v{vTmp+1}, 3, v{vTmp+5}
    s_lshl_b32 s{sT0}, s{sT3}, 6
    s_add_u32 s{sT0}, s{sT0}, {LDS_W2}
    v_add_u32 v{vTmp+5}, s{sT0}, v{vTmp+5}
    s_sub_u32 s{sT0}, s3, 10
    s_mov_b32 s{sT1}, {LDS_U - 3*2304}
    s_cmp_ge_u32 s{sT0}, 3
    s_cselect_b32 s{sT1}, s{sT1}, {LDS_A}
    s_mul_i32 s{sT0}, s{sT0}, 2304
    s_add_u32 s{sT0}, s{sT0}, s{sT1}
    v_mul_u32_u24 v10, 144, v{vJ}
    v_lshl_add_u32 v10, v{vG4}, 4, v10
    v_add_u32 v10, s{sT0}, v10
    v_lshrrev_b32 v11, 3, v{vLane}
    v_mul_u32_u24 v12, 144, v11
    v_and_b32 v13, 7, v{vLane}
    v_lshl_add_u32 v12, v13, 4, v12
    v_add_u32 v12, s{sT0}, v12
    s_lshl_b32 s{sT0}, s{sT2}, 4
    v_add_u32 v11, s{sT0}, v11
    v_lshlrev_b32 v9, 8, v11
    v_lshl_add_u32 v9, v13, 4, v9
    v_mov_b32 v8, 0
    s_waitcnt lgkmcnt(0)
    s_barrier                                  ; B1
    s_barrier                                  ; B2
    ; second weight pair, x fragments of the A/U tile tau, w_c""")
srd(rA, sWA, D*D*2); srd(rB, sWU, D*D*2)
o(f"""    buffer_load_dwordx4 v[120:123], v16, s[{rA}:{rA+3}], 0 offen
    buffer_load_dwordx4 v[52:55], v16, s[{rB}:{rB+3}], 0 offen
    s_cmp_ge_u32 s3, 12
    s_cbranch_scc1 K_tab_ld2
    buffer_load_dwordx4 v[56:59], v17, s[{rA}:{rA+3}], 0 offen
    buffer_load_dwordx4 v[28:31], v17, s[{rB}:{rB+3}], 0 offen
K_tab_ld2:
    s_lshl_b32 s{sT0}, s{sT2}, 4
    s_add_u32 s{sT0}, s{sT0}, s{sSB}
    v_add_u32 v{vTmp}, s{sT0}, v{vJ}
    v_lshlrev_b32 v{vTmp}, 7, v{vTmp}
    v_lshl_add_u32 v{vTmp}, v{vG4}, 4, v{vTmp}
    buffer_load_dwordx4 v[{vXf2}:{vXf2+3}], v{vTmp}, s[{rX}:{rX+3}], 0 offen
    buffer_load_dwordx4 v[{vXf2+4}:{vXf2+7}], v{vTmp}, s[{rX}:{rX+3}], 0 offen offset:64
    buffer_load_ushort v{vWc}, v{vTmp+7}, s[{rC}:{rC+3}], 0 offen
    s_barrier                                  ; B3
    s_cmp_ge_u32 s3, 12
    s_cbranch_scc1 K_tab_w5
    s_waitcnt vmcnt(7)
    s_branch K_tab_w
K_tab_w5:
    s_waitcnt vmcnt(5)
K_tab_w:""")
stamp(1)
o(f"""    ds_write_b128 v14, v[{vW1r}:{vW1r+3}] offset:{128*WROW}
    ds_write_b128 v14, v[{vW1r+4}:{vW1r+7}] offset:{192*WROW}
    s_cmp_ge_u32 s3, 12
    s_cbranch_scc1 K_tab_st0
    ds_write_b128 v15, v[{vW1r+8}:{vW1r+11}] offset:{128*WROW}
    ds_write_b128 v15, v[{vW1r+12}:{vW1r+15}] offset:{192*WROW}
K_tab_st0:
    s_waitcnt lgkmcnt(0)
    s_mov_b64 exec, 1
    ds_add_u32 v8, v{vOne} offset:{LDS_FLG+4}
    s_mov_b64 exec, -1
    s_mov_b32 s{sSPIN}, 0
K_tab_meet:
    ds_read_b32 v{vTmp}, v8 offset:{LDS_FLG+4}
    s_add_u32 s{sSPIN}, s{sSPIN}, 1
    s_waitcnt lgkmcnt(0)
    v_readfirstlane_b32 s{sT0}, v{vTmp}
    s_cmp_ge_u32 s{sSPIN}, {SPIN_MAX}
    s_cbranch_scc1 K_tab_met
    s_cmp_lt_u32 s{sT0}, 6
    s_cbranch_scc1 K_tab_meet
K_tab_met:""")
def frag(k, s_): return 72 + (k*2+s_)*4
for m in range(2):
    for jj in range(2):
        for s_ in range(2):
            f = frag(m*2+jj, s_)
            off = (2+m)*64*WROW + s_*32*WROW + jj*32
            o(f"    ds_read_b64_tr_b16 v[{f}:{f+1}], v{vTmp+5} offset:{off}")
            o(f"    ds_read_b64_tr_b16 v[{f+2}:{f+3}], v{vTmp+5} offset:{off+4*WROW}")
for k in range(4):
    a_ = 104 + k*4
    o(f"    s_waitcnt lgkmcnt({12-4*k})")
    o(f"    v_mfma_f32_16x16x32_bf16 v[{a_}:{a_+3}], v[{frag(k,0)}:{frag(k,0)+3}], v[{vX1}:{vX1+3}], 0")
    o(f"    v_mfma_f32_16x16x32_bf16 v[{a_}:{a_+3}], v[{frag(k,1)}:{frag(k,1)+3}], v[{vX1+4}:{vX1+7}], v[{a_}:{a_+3}]")
o(f"""    s_mov_b32 s{sT0}, {NLOG2E:#x}
    s_mov_b32 s{sT1}, 0xffff0000
    s_mov_b32 s{sSPIN}, 0x80000000
    s_mov_b32 s{sGOFF}, 0x7fffffff
    s_lshl_b32 s{sSO+1}, s{sT3}, 7
    s_mul_i32 s{sSO+2}, s2, {40*256}
    s_add_u32 s{sSO+2}, s{sSO+2}, s{sSO+1}
    s_nop 1""")
for jj in range(2):
    B = 104 + jj*4; Vv = 112 + jj*4
    t = 40
    for i in range(4): o(f"    v_mul_f32 v{B+i}, s{sT0}, v{B+i}")
    o(f"    v_cvt_pk_bf16_f32 v{t}, v{B}, v{B+1}")
    o(f"    v_cvt_pk_bf16_f32 v{t+1}, v{B+2}, v{B+3}")
    o(f"    v_and_b32 v{B}, 0xffff, v{t}")
    o(f"    v_lshrrev_b32 v{B+1}, 16, v{t}")
    o(f"    v_and_b32 v{B+2}, 0xffff, v{t+1}")
    o(f"    v_lshrrev_b32 v{B+3}, 16, v{t+1}")
    T = 44 + jj*4
    for i in range(4): o(f"    v_and_b32 v{T+i}, s{sGOFF}, v{Vv+i}")
    for i in range(4): o(f"    v_add_u32 v{T+i}, 0x8000, v{T+i}")
    for i in range(4): o(f"    v_sub_u32_e64 v{T+i}, v{T+i}, v{B+i} clamp")
    for i in range(4): o(f"    v_and_or_b32 v{T+i}, v{T+i}, s{sT1}, v{B+i}")
    for i in range(4): o(f"    v_and_or_b32 v{T+i}, v{Vv+i}, s{sSPIN}, v{T+i}")
    o(f"    ds_write_b128 v10, v[{T}:{T+3}] offset:{jj*64}")
o(f"""    s_waitcnt lgkmcnt(0)
    ds_read_b128 v[44:47], v12
    ds_read_b128 v[48:51], v12 offset:{8*144}
    v_cmp_gt_u32 vcc, 40, v11
    s_mov_b64 s[{sM}:{sM+1}], vcc
    v_cmp_gt_u32 vcc, 32, v11
    s_mov_b64 s[{sM+2}:{sM+3}], vcc
    ; stage w_a|w_u
    s_waitcnt vmcnt(0)
    ds_write_b128 v14, v[120:123]
    ds_write_b128 v14, v[52:55] offset:{64*WROW}
    s_cmp_ge_u32 s3, 12
    s_cbranch_scc1 K_tab_st2
    ds_write_b128 v15, v[56:59]
    ds_write_b128 v15, v[28:31] offset:{64*WROW}
K_tab_st2:
    v_lshlrev_b32 v{vWc}, 16, v{vWc}
    v_mul_f32 v{vWc}, {NLOG2E:#x}, v{vWc}
    s_waitcnt lgkmcnt(0)
    s_cmp_ge_u32 s2, 250
    s_cbranch_scc1 K_tab_norows
    s_mov_b64 exec, s[{sM}:{sM+1}]
    s_cbranch_execz K_tab_r1
    buffer_store_dwordx4 v[44:47], v9, s[{rTABW}:{rTABW+3}], s{sSO+2} offen{SCW}
K_tab_r1:
    s_mov_b64 exec, s[{sM+2}:{sM+3}]
    s_cbranch_execz K_tab_r2
    buffer_store_dwordx4 v[48:51], v9, s[{rTABW}:{rTABW+3}], s{sSO+2} offen offset:2048{SCW}
K_tab_r2:
    s_mov_b64 exec, -1
    s_branch K_tab_stored
K_tab_norows:
    s_cmp_lg_u32 s2, 250
    s_cbranch_scc1 K_tab_stored
    s_cmp_lg_u32 s3, 10
    s_cbranch_scc1 K_tab_stored
    v_mov_b32 v44, 0x7f00
    s_mov_b32 s{sT0}, {N*256}
    buffer_store_dword v44, v{vLane4}, s[{rTABW}:{rTABW+3}], s{sT0} offen{SCW}
K_tab_stored:""")
stamp(5)
o("    s_barrier")
stamp(7)
vFr, vAcc = 72, 104
for jj in range(2):
    for m in range(2):
        for s_ in range(2):
            f = vFr + ((jj*2+m)*2+s_)*4
            off = m*64*WROW + s_*32*WROW + jj*32
            o(f"    ds_read_b64_tr_b16 v[{f}:{f+1}], v{vTmp+5} offset:{off}")
            o(f"    ds_read_b64_tr_b16 v[{f+2}:{f+3}], v{vTmp+5} offset:{off+4*WROW}")
o(f"""    ; LDS dest: (16*tau + (lane&15))*272 + (32*half + 16*jj + 4*g)*4
    s_lshl_b32 s{sT1}, s{sT2}, 4
    v_add_u32 v9, s{sT1}, v{vJ}
    v_mul_u32_u24 v9, 272, v9
    v_lshl_add_u32 v9, v{vG4}, 4, v9
    s_lshl_b32 s{sT0}, s{sT3}, 7
    v_add_u32 v9, s{sT0}, v9
    v_add_u32 v11, {LDS_U}, v9""")
for k in range(4):
    a_ = vAcc + k*4; f = vFr + k*8
    o(f"    s_waitcnt lgkmcnt({12-4*k})")
    o(f"    v_mfma_f32_16x16x32_bf16 v[{a_}:{a_+3}], v[{f}:{f+3}], v[{vXf2}:{vXf2+3}], 0")
    o(f"    v_mfma_f32_16x16x32_bf16 v[{a_}:{a_+3}], v[{f+4}:{f+7}], v[{vXf2+4}:{vXf2+7}], v[{a_}:{a_+3}]")
o(f"""    s_mov_b32 s{sT0}, {NLOG2E:#x}
    v_mov_b32 v10, 0xc27c0000                  ; -63
    s_nop 7""")
for jj in range(2):
    a_ = vAcc + jj*8
    for i in range(4): o(f"    v_fma_f32 v{a_+i}, v{a_+i}, s{sT0}, v10")
    o(f"    ds_write_b128 v9, v[{a_}:{a_+3}] offset:{LDS_A + jj*64}")
    o(f"    ds_write_b128 v11, v[{a_+4}:{a_+7}] offset:{jj*64}")
tags()
o(f"""    ; table-ready signal: the last table wave whose stores have completed publishes one granule per replica
    s_waitcnt vmcnt(0)""")
stamp(6)
o(f"""    s_mov_b64 exec, 1
    ds_add_rtn_u32 v9, v8, v{vOne} offset:{LDS_FLG+8}
    s_mov_b64 exec, -1
    s_waitcnt lgkmcnt(0)
    v_readfirstlane_b32 s{sT0}, v9
    s_nop 3
    s_cmp_lg_u32 s{sT0}, 5
    s_cbranch_scc1 K_poll_setup
    s_add_u32 s{rA}, s{sWS}, {WS_TF:#x}
    s_addc_u32 s{rA+1}, s{sWS+1}, 0
    s_and_b32 s{rA+1}, s{rA+1}, 0xffff
    s_mov_b32 s{rA+2}, {8*2048}
    s_mov_b32 s{rA+3}, 0x20000
    v_lshlrev_b32 v8, 11, v{vLane}
    v_mov_b32 v10, s{sTAGL}
    v_mov_b32 v11, s{sTAGH}
    s_lshl_b32 s{sT0}, s2, 3
    s_mov_b64 exec, 0xff
    buffer_store_dwordx2 v[10:11], v8, s[{rA}:{rA+3}], s{sT0} offen{SC}
    s_mov_b64 exec, -1""")

vG = 72
vEnt, vIdx, vRank = 28, 44, 52
o(f"""K_poll_setup:
    v_lshrrev_b32 v8, 4, v0
    v_lshlrev_b32 v8, 9, v8                    ; 4*(t>>4)*128
    s_lshr_b32 s{sT0}, s{sBETA}, 4
    s_lshl_b32 s{sT0}, s{sT0}, 15
    s_and_b32 s{sT1}, s{sBETA}, 15
    s_lshl_b32 s{sT1}, s{sT1}, 3
    s_add_u32 s{sGOFF}, s{sT0}, s{sT1}
    s_mov_b32 s{sSPIN}, 0
    v_mov_b32 v9, 0xff000000
K_poll:
    buffer_load_dwordx2 v[{vG}:{vG+1}], v8, s[{rOFF}:{rOFF+3}], s{sGOFF} offen{SC}
    buffer_load_dwordx2 v[{vG+2}:{vG+3}], v8, s[{rOFF}:{rOFF+3}], s{sGOFF} offen offset:128{SC}
    buffer_load_dwordx2 v[{vG+4}:{vG+5}], v8, s[{rOFF}:{rOFF+3}], s{sGOFF} offen offset:256{SC}
    buffer_load_dwordx2 v[{vG+6}:{vG+7}], v8, s[{rOFF}:{rOFF+3}], s{sGOFF} offen offset:384{SC}
    s_add_u32 s{sSPIN}, s{sSPIN}, 1
    s_waitcnt vmcnt(0)""")
def tagcheck(d0s, d1s, mask):
    o(f"    v_xor_b32 v{vTmp}, s{sTAGL}, v{d0s[0]}")
    o(f"    v_xor_b32 v{vTmp+1}, s{sTAGL}, v{d0s[1]}")
    o(f"    v_xor_b32 v{vTmp+2}, s{sTAGL}, v{d0s[2]}")
    o(f"    v_xor_b32 v{vTmp+3}, s{sTAGL}, v{d0s[3]}")
    o(f"    v_or3_b32 v{vTmp}, v{vTmp}, v{vTmp+1}, v{vTmp+2}")
    o(f"    v_or_b32 v{vTmp}, v{vTmp}, v{vTmp+3}")
    o(f"    v_and_b32 v{vTmp}, v{mask}, v{vTmp}")
    o(f"    v_xor_b32 v{vTmp+1}, s{sTAGH}, v{d1s[0]}")
    o(f"    v_xor_b32 v{vTmp+2}, s{sTAGH}, v{d1s[1]}")
    o(f"    v_xor_b32 v{vTmp+3}, s{sTAGH}, v{d1s[2]}")
    o(f"    v_xor_b32 v{vTmp+4}, s{sTAGH}, v{d1s[3]}")
    o(f"    v_or3_b32 v{vTmp}, v{vTmp}, v{vTmp+1}, v{vTmp+2}")
    o(f"    v_or3_b32 v{vTmp}, v{vTmp}, v{vTmp+3}, v{vTmp+4}")
    o(f"    v_cmp_ne_u32 vcc, 0, v{vTmp}")
tagcheck([vG, vG+2, vG+4, vG+6], [vG+1, vG+3, vG+5, vG+7], 9)
o(f"""    s_cbranch_vccz K_poll_ok
    s_cmp_ge_u32 s{sSPIN}, {SPIN_MAX}
    s_cbranch_scc1 K_poll_fail
    s_sleep {SLEEP}
    s_branch K_poll
K_poll_fail:""")
for r in range(4): o(f"    v_mov_b32 v{vG+2*r}, 0")
o("K_poll_ok:")
stamp(8)
stampc(18)
vCnt = 80
o(f"""    s_mov_b32 s{sSO}, 0
    s_mov_b32 s{sSO+1}, {CH*8}
    s_mov_b32 s{sSO+2}, {2*CH*8}
    s_mov_b32 s{sSO+3}, {3*CH*8}""")
for r in range(4):
    T = vG + 2*r
    o(f"""    v_bfe_u32 v{vCnt+r}, v{T}, 12, 12          ; count
    v_and_b32 v{vCnt+4+r}, 0xfff, v{T}
    v_add_u32 v{vCnt+4+r}, v{vCnt+4+r}, v{vJ}
    v_cmp_gt_u32 s[{sM+4*r}:{sM+4*r+1}], v{vCnt+r}, v{vJ}
    v_lshl_add_u32 v{vCnt+4+r}, v{vCnt+4+r}, 3, v{vSeg}""")
for r in range(4):
    o(f"""    s_mov_b64 exec, s[{sM+4*r}:{sM+4*r+1}]
    buffer_load_dwordx2 v[{vEnt+4*r}:{vEnt+4*r+1}], v{vCnt+4+r}, s[{rCH}:{rCH+3}], s{sSO+r} offen{SCE}""")
o(f"""    s_mov_b64 exec, -1
    v_max3_u32 v{vTmp}, v{vCnt}, v{vCnt+1}, v{vCnt+2}
    v_max_u32 v{vTmp}, v{vTmp}, v{vCnt+3}
    v_cmp_lt_u32 vcc, 16, v{vTmp}
    s_mov_b64 s[{sBIG}:{sBIG+1}], vcc
    s_cbranch_vccz K_nok1""")
for r in range(4):
    o(f"""    v_cmp_gt_u32 s[{sM+4*r+2}:{sM+4*r+3}], v{vCnt+r}, v{vJ16}""")
o("    s_nop 1")
for r in range(4):
    o(f"""    s_mov_b64 exec, s[{sM+4*r+2}:{sM+4*r+3}]
    s_cbranch_execz K_nok1_{r}
    buffer_load_dwordx2 v[{vEnt+4*r+2}:{vEnt+4*r+3}], v{vCnt+4+r}, s[{rCH}:{rCH+3}], s{sSO+r} offen offset:128{SCE}
K_nok1_{r}:""")
o(f"""    s_mov_b64 exec, -1
    v_cmp_lt_u32 vcc, 32, v{vTmp}
    s_cbranch_vccz K_nok1
    v_mov_b32 v{vTmp}, 0
    ds_write_b32 v{vTmp}, v{vOne} offset:{LDS_FLG}
K_nok1:
    s_waitcnt vmcnt(0)""")
stamp(9)
def slots(ks): return [r*2+k for r in range(4) for k in ks]
def hist(es):
    for e in es:
        d0 = vEnt + 2*e
        o(f"    v_lshlrev_b32 v{vIdx+e}, 2, v{d0}")
        o(f"    v_subrev_u32 v{vIdx+e}, s{sSB4}, v{vIdx+e}")
        o(f"    v_and_b32 v{vIdx+e}, 0xfc, v{vIdx+e}")
        o(f"    s_mov_b64 exec, s[{sM+2*e}:{sM+2*e+1}]")
        o(f"    ds_add_rtn_u32 v{vRank+e}, v{vIdx+e}, v{vOne} offset:{LDS_CNT2}")
        o(f"    s_mov_b64 exec, -1")
hist(slots([0]))
o(f"    s_cmp_eq_u64 s[{sBIG}:{sBIG+1}], 0\n    s_cbranch_scc1 K_noh1")
hist(slots([1]))
o(f"""K_noh1:
    s_waitcnt lgkmcnt(0)
    s_barrier""")
stamp(10)
o(f"""    ds_read_b32 v{vInc}, v{vLane4} offset:{LDS_CNT2}
    v_mov_b32 v{vTmp}, 0
    ds_read_b32 v{vTmp+1}, v{vTmp} offset:{LDS_FLG}
    v_lshlrev_b32 v100, 5, v{vLane}
    v_mov_b32 v101, 0xff000000
    s_cmp_lg_u32 s3, 15
    s_cbranch_scc1 K_notf0
    s_add_u32 s{rB}, s{sWS}, {WS_TF:#x}
    s_addc_u32 s{rB+1}, s{sWS+1}, 0
    s_and_b32 s{rB+1}, s{rB+1}, 0xffff
    s_mov_b32 s{rB+2}, {8*2048}
    s_mov_b32 s{rB+3}, 0x20000
    s_and_b32 s{sT3}, s2, 7
    s_lshl_b32 s{sT3}, s{sT3}, 11
    s_mov_b32 s{sSPIN}, 0
    buffer_load_dwordx4 v[88:91], v100, s[{rB}:{rB+3}], s{sT3} offen{SC}
    buffer_load_dwordx4 v[92:95], v100, s[{rB}:{rB+3}], s{sT3} offen offset:16{SC}
K_notf0:""")
if PREF:
    o(f"""    ; pull this workgroup's share of the table into the L2 of its die (speed only)
    s_lshr_b32 s{sT0}, s2, 3
    s_mul_i32 s{sT0}, s{sT0}, {16*5*1024}
    s_mul_i32 s{sT1}, s3, {5*1024}
    s_add_u32 s{sT0}, s{sT0}, s{sT1}
    v_lshlrev_b32 v8, 4, v{vLane}""")
    for i in range(5):
        o(f"    buffer_load_dwordx4 v[100:103], v8, s[{rTABW}:{rTABW+3}], s{sT0} offen offset:{(i%4)*1024}{SC}" if i < 4 else
          f"    s_add_u32 s{sT0}, s{sT0}, 4096\n    buffer_load_dwordx4 v[100:103], v8, s[{rTABW}:{rTABW+3}], s{sT0} offen{SC}")
o(f"""    ; workgroup 0 records this launch's epoch (all workgroups have read the old one by now)
    s_or_b32 s{sT0}, s2, s3
    s_cmp_lg_u32 s{sT0}, 0
    s_cbranch_scc1 K_noep
    s_add_u32 s{rA}, s{sWS}, {WS_EP:#x}
    s_addc_u32 s{rA+1}, s{sWS+1}, 0
    s_and_b32 s{rA+1}, s{rA+1}, 0xffff
    s_mov_b32 s{rA+2}, 8
    s_mov_b32 s{rA+3}, 0x20000
    v_mov_b32 v8, s{sEP}
    v_mov_b32 v9, s{sEP+1}
    s_mov_b64 exec, 1
    buffer_store_dwordx2 v[8:9], v{vTmp}, s[{rA}:{rA+3}], 0 offen
    s_mov_b64 exec, -1
K_noep:
    s_waitcnt lgkmcnt(0)
    v_add_u32 v{vInc}, 3, v{vInc}
    v_readfirstlane_b32 s{sT0}, v{vTmp+1}
    v_lshrrev_b32 v{vInc}, 2, v{vInc}
    v_mov_b32 v{vBase}, v{vInc}""")
fill = [f"v_and_b32 v{vEnt+2*e}, 0xffffff00, v{vEnt+2*e}" for e in range(8)] + \
       [f"s_lshl_b32 s{sT2}, 1, s3", f"v_mov_b32 v{vTmp+2}, s{sT2}"]
wave_scan(vInc, fill)
vPos = 80
o(f"""    v_sub_u32 v{vTmp+3}, v{vInc}, v{vBase}
    v_lshlrev_b32 v{vBase}, 2, v{vTmp+3}
    v_readlane_b32 s{sQ}, v{vInc}, 63
    s_cmp_lg_u32 s{sT0}, 0
    s_cbranch_scc1 K_slow""")
for e in slots([0]): o(f"    ds_bpermute_b32 v{vPos+e}, v{vIdx+e}, v{vBase}")
o(f"""    s_cmp_gt_u32 s{sQ}, {CAPQ}
    s_cbranch_scc1 K_slow
    s_mul_i32 s{sQ0}, s{sQ}, s3
    s_lshr_b32 s{sQ0}, s{sQ0}, 4
    s_add_u32 s{sT0}, s3, 1
    s_mul_i32 s{sQ1}, s{sQ}, s{sT0}
    s_lshr_b32 s{sQ1}, s{sQ1}, 4
    v_cmp_ge_u32 vcc, s{sQ0}, v{vInc}
    s_bcnt1_i32_b64 s{sNODE}, vcc
    v_cmp_lt_u32 s[{rA}:{rA+1}], s{sQ0}, v{vInc}
    v_cmp_gt_u32 s[{rA+2}:{rA+3}], s{sQ1}, v{vTmp+3}
    v_cmp_gt_u32 vcc, v{vInc}, v{vTmp+3}
    v_readlane_b32 s{sBND}, v{vInc}, s{sNODE}
    s_and_b64 s[{rA}:{rA+1}], s[{rA}:{rA+1}], s[{rA+2}:{rA+3}]
    s_and_b64 s[{rA}:{rA+1}], s[{rA}:{rA+1}], vcc
    s_cmp_lt_u32 s{sQ0}, s{sQ1}
    s_cselect_b64 exec, s[{rA}:{rA+1}], 0
    ds_or_b32 v{vLane4}, v{vTmp+2} offset:{LDS_MSK}
    s_mov_b64 exec, -1
    s_waitcnt lgkmcnt(0)""")
def place(es, bperm):
    if bperm:
        for e in es: o(f"    ds_bpermute_b32 v{vPos+e}, v{vIdx+e}, v{vBase}")
        o("    s_waitcnt lgkmcnt(0)")
    for e in es: o(f"    v_add_lshl_u32 v{vPos+e}, v{vPos+e}, v{vRank+e}, 2")
    for e in es:
        d0 = vEnt + 2*e
        o(f"    s_mov_b64 exec, s[{sM+2*e}:{sM+2*e+1}]")
        o(f"    ds_write_b32 v{vPos+e}, v{d0} offset:{LDS_O}")
        o(f"    ds_write_b32 v{vPos+e}, v{d0+1} offset:{LDS_E}")
    o(f"    s_mov_b64 exec, -1")
place(slots([0]), False)
o(f"    s_cmp_eq_u64 s[{sBIG}:{sBIG+1}], 0\n    s_cbranch_scc1 K_nop1")
place(slots([1]), True)
PT = [int(x) for x in opt('pt', '4-7-9').split('-')]
NOPS = [int(x) for x in opt('nops', '').split('-') if x]
NOPPOS = int(opt('noppos', 0))
vA, vAn, vDen, vNum, vAA, vLA, vSL = 8, 9, 10, 12, 14, 15, 27
vO = 16
vE = [20, 28]
RING = int(opt('ring', 4))
vDr = [32, 36, 40, 44] if RING == 4 else [72 + 4*i for i in range(RING)]
vU, vAa, vP, vS_, vQ, vR = 48, 52, 56, 58, 62, 64
vF = 66
o(f"""K_nop1:
    s_mul_i32 s{sT0}, s{sNODE}, 272
    v_add_u32 v{vAA}, s{sT0}, v{vLane4}
    s_add_u32 s{sT1}, s{sNODE}, s3
    s_lshl_b32 s{sT1}, s{sT1}, 9
    v_add_u32 v{vSL}, s{sT1}, v{vLane4}
    s_lshl_b32 s{sT0}, s{sQ0}, 4
    v_mov_b32 v{vLA}, s{sT0}
    ds_read_b32 v{vA}, v{vAA} offset:{LDS_A}
    ds_read_b32 v{vAn}, v{vAA} offset:{LDS_A+272}
    s_min_u32 s{sSTOP}, s{sBND}, s{sQ1}
    s_sub_u32 s{sREM}, s{sSTOP}, s{sQ0}
    s_mov_b32 s{sC63}, 0x5f000000                ; 2^63
    s_mov_b32 s{sC63+1}, 0x5f000000
    s_mov_b32 s{sSEL}, 0x00003f80
    s_mov_b32 s{sIT}, 0
    v_mov_b64 v[{vDen}:{vDen+1}], 0
    v_mov_b64 v[{vNum}:{vNum+1}], 0
    s_cmp_lg_u32 s3, 15
    s_cbranch_scc1 K_notf
    s_branch K_tfchk
K_tfpoll:
    buffer_load_dwordx4 v[88:91], v100, s[{rB}:{rB+3}], s{sT3} offen{SC}
    buffer_load_dwordx4 v[92:95], v100, s[{rB}:{rB+3}], s{sT3} offen offset:16{SC}
K_tfchk:
    s_add_u32 s{sSPIN}, s{sSPIN}, 1
    s_waitcnt vmcnt(0)""")
tagcheck([88, 90, 92, 94], [89, 91, 93, 95], 101)
o(f"""    s_cbranch_vccz K_notf
    s_cmp_ge_u32 s{sSPIN}, {SPIN_MAX}
    s_cbranch_scc1 K_notf
    s_sleep 1
    s_branch K_tfpoll
K_notf:
    s_waitcnt lgkmcnt(0)
    s_barrier""")
stamp(11)
stampc(14)
o(f"""    s_cmp_ge_u32 s{sQ0}, s{sQ1}
    s_cbranch_scc1 K_main_done
    s_setprio 3""")
scr = [32, 36, 40, 44, 48, 52, 56] if RING > 4 else [vO, vU, vAa]
for j in range(RING-1): o(f"    ds_read_b128 v[{scr[j]}:{scr[j]+3}], v{vLA} offset:{LDS_O+16*j}")
o(f"    ds_read_b128 v[{vE[0]}:{vE[0]+3}], v{vLA} offset:{LDS_E}")
for j in range(RING-1):
    o(f"    s_waitcnt lgkmcnt({RING-1-j})")
    for i in range(4): o(f"    buffer_load_dword v{vDr[j]+i}, v{scr[j]+i}, s[{rTAB}:{rTAB+3}], 0 offen{SC}")
o(f"    ds_read_b128 v[{vO}:{vO+3}], v{vLA} offset:{LDS_O+16*(RING-1)}")
o(".p2align 3")
o("K_loop:")
for k in range(RING):
    e = vE[k%2]; en = vE[(k+1)%2]; Dk = vDr[k]; Dn = vDr[(k+RING-1)%RING]
    o(f"    s_waitcnt lgkmcnt(0)")
    o(f"    s_sub_u32 s{sREM}, s{sREM}, 1")
    for i in range(4):
        o(f"    buffer_load_dword v{Dn+i}, v{vO+i}, s[{rTAB}:{rTAB+3}], 0 offen{SC}")
    o(f"    ds_read_b128 v[{vO}:{vO+3}], v{vLA} offset:{LDS_O+16*(k+RING)}")
    o(f"    ds_read_b128 v[{en}:{en+3}], v{vLA} offset:{LDS_E+16*(k+1)}")
    o(f"    s_cbranch_scc1 K_h{k}")
    o(f"K_r{k}:")
    o(f"    s_waitcnt vmcnt({4*(RING-1)})")
    o(f"    v_pk_fma_f32 v[{vU}:{vU+1}], v[{e}:{e+1}], v[{vWc}:{vWc+1}], v[{vA}:{vA+1}] op_sel_hi:[1,0,0]")
    o(f"    v_pk_fma_f32 v[{vU+2}:{vU+3}], v[{e+2}:{e+3}], v[{vWc}:{vWc+1}], v[{vA}:{vA+1}] op_sel_hi:[1,0,0]")
    for i in range(4): o(f"    v_dot2c_f32_bf16 v{vU+i}, s{sSEL}, v{Dk+i}")
    if NOPS and NOPPOS == 1:
        for z in NOPS: o(f"    s_nop {z}")
    for i in range(4): o(f"    v_exp_f32_e64 v{vU+i}, v{vU+i} clamp")
    if NOPS and NOPPOS == 2:
        for z in NOPS: o(f"    s_nop {z}")
    o(f"    v_pk_fma_f32 v[{vAa}:{vAa+1}], v[{vU}:{vU+1}], s[{sC63}:{sC63+1}], 1.0 op_sel_hi:[1,0,0]")
    o(f"    v_pk_fma_f32 v[{vAa+2}:{vAa+3}], v[{vU+2}:{vU+3}], s[{sC63}:{sC63+1}], 1.0 op_sel_hi:[1,0,0]")
    if NOPS and NOPPOS == 0:
        for z in NOPS: o(f"    s_nop {z}")
    o(f"    v_pk_mul_f32 v[{vP}:{vP+1}], v[{vAa}:{vAa+1}], v[{vAa+2}:{vAa+3}]")
    o(f"    v_pk_add_f32 v[{vS_}:{vS_+1}], v[{vAa}:{vAa+1}], v[{vAa+2}:{vAa+3}]")
    o(f"    v_rcp_f32 v{vR}, v{vP}")
    o(f"    v_rcp_f32 v{vR+1}, v{vP+1}")
    o(f"    v_pk_mul_f32 v[{vQ}:{vQ+1}], v[{vAa+2}:{vAa+3}], v[{Dk}:{Dk+1}]")
    o(f"    v_pk_fma_f32 v[{vQ}:{vQ+1}], v[{vAa}:{vAa+1}], v[{Dk+2}:{Dk+3}], v[{vQ}:{vQ+1}]")
    o(f"    v_pk_fma_f32 v[{vDen}:{vDen+1}], v[{vS_}:{vS_+1}], v[{vR}:{vR+1}], v[{vDen}:{vDen+1}]")
    o(f"    v_pk_fma_f32 v[{vNum}:{vNum+1}], v[{vQ}:{vQ+1}], v[{vR}:{vR+1}], v[{vNum}:{vNum+1}]")
o(f"""    v_add_u32 v{vLA}, {16*RING}, v{vLA}
    s_add_u32 s{sIT}, s{sIT}, 1
    s_cmp_eq_u32 s{sIT}, {PT[0]}
    s_cbranch_scc1 K_p2
    s_cmp_eq_u32 s{sIT}, {PT[1]}
    s_cbranch_scc1 K_p1
    s_cmp_eq_u32 s{sIT}, {PT[2]}
    s_cbranch_scc0 K_loop
    s_setprio 0
    s_branch K_loop
K_p2:
    s_setprio 2
    s_branch K_loop
K_p1:
    s_setprio 1
    s_branch K_loop""")
for k in range(RING):
    o(f"""K_h{k}:
    v_add_f32 v{vF}, v{vDen}, v{vDen+1}
    v_add_f32 v{vF+1}, v{vNum}, v{vNum+1}
    s_add_u32 s{sNODE}, s{sNODE}, 1
    ds_write_b32 v{vSL}, v{vF} offset:{LDS_SL}
    ds_write_b32 v{vSL}, v{vF+1} offset:{LDS_SL+256}
    s_cmp_ge_u32 s{sSTOP}, s{sQ1}
    s_cbranch_scc1 K_main_done
    v_readlane_b32 s{sBND}, v{vInc}, s{sNODE}
    v_mov_b64 v[{vDen}:{vDen+1}], 0
    v_mov_b64 v[{vNum}:{vNum+1}], 0
    v_mov_b32 v{vA}, v{vAn}
    v_add_u32 v{vAA}, 272, v{vAA}
    v_add_u32 v{vSL}, 512, v{vSL}
    s_cmp_eq_u32 s{sBND}, s{sSTOP}
    s_cbranch_scc1 K_hs{k}
    ds_read_b32 v{vAn}, v{vAA} offset:{LDS_A+272}
K_hr{k}:
    s_mov_b32 s{sT0}, s{sSTOP}
    s_min_u32 s{sSTOP}, s{sBND}, s{sQ1}
    s_sub_u32 s{sREM}, s{sSTOP}, s{sT0}
    s_sub_u32 s{sREM}, s{sREM}, 1
    s_branch K_r{k}
K_hs{k}:
    s_add_u32 s{sNODE}, s{sNODE}, 1
    v_readlane_b32 s{sBND}, v{vInc}, s{sNODE}
    v_add_u32 v{vAA}, 272, v{vAA}
    v_add_u32 v{vSL}, 512, v{vSL}
    s_nop 1
    s_cmp_eq_u32 s{sBND}, s{sSTOP}
    s_cbranch_scc1 K_hs{k}
    ds_read_b32 v{vA}, v{vAA} offset:{LDS_A}
    ds_read_b32 v{vAn}, v{vAA} offset:{LDS_A+272}
    s_waitcnt lgkmcnt(0)
    s_branch K_hr{k}""")

sP, sCNT, sPOS, sN, sEN = 4, 5, 6, 7, 8
o(f"""K_slow:
    s_add_u32 s{rB}, s{sWS}, {WS_TF:#x}
    s_addc_u32 s{rB+1}, s{sWS+1}, 0
    s_and_b32 s{rB+1}, s{rB+1}, 0xffff
    s_mov_b32 s{rB+2}, {8*2048}
    s_mov_b32 s{rB+3}, 0x20000
    s_and_b32 s{sT3}, s2, 7
    s_lshl_b32 s{sT3}, s{sT3}, 11
    v_lshlrev_b32 v100, 5, v{vLane}
    v_mov_b32 v101, 0xff000000
    s_mov_b32 s{sSPIN}, 0
K_s_tf:
    buffer_load_dwordx4 v[88:91], v100, s[{rB}:{rB+3}], s{sT3} offen{SC}
    buffer_load_dwordx4 v[92:95], v100, s[{rB}:{rB+3}], s{sT3} offen offset:16{SC}
    s_add_u32 s{sSPIN}, s{sSPIN}, 1
    s_waitcnt vmcnt(0)""")
tagcheck([88, 90, 92, 94], [89, 91, 93, 95], 101)
o(f"""    s_cbranch_vccz K_s_go
    s_cmp_ge_u32 s{sSPIN}, {SPIN_MAX}
    s_cbranch_scc1 K_s_go
    s_sleep 4
    s_branch K_s_tf
K_s_go:
    s_mov_b32 s{sC63}, 0x5f000000
    s_mov_b32 s{sSEL}, 0x00003f80
    s_mov_b32 s{sN}, s3
    v_mov_b32 v{vTmp}, 0
K_s_node:
    s_cmp_ge_u32 s{sN}, s{sNB}
    s_cbranch_scc1 K_main_done
    s_mul_i32 s{sT0}, s{sN}, 272
    v_add_u32 v{vAA}, s{sT0}, v{vLane4}
    ds_read_b32 v{vA}, v{vAA} offset:{LDS_A}
    v_mov_b32 v{vDen}, 0
    v_mov_b32 v{vNum}, 0
    s_mov_b32 s{sP}, 0
    s_waitcnt lgkmcnt(0)
K_s_prod:
    s_lshl_b32 s{sT0}, s{sP}, 7
    s_add_u32 s{sT0}, s{sT0}, s{sGOFF}
    buffer_load_dword v{vU}, v{vTmp}, s[{rOFF}:{rOFF+3}], s{sT0} offen{SC}
    s_waitcnt vmcnt(0)
    v_readfirstlane_b32 s{sCNT}, v{vU}
    s_nop 3
    s_and_b32 s{sPOS}, s{sCNT}, 0xfff
    s_bfe_u32 s{sCNT}, s{sCNT}, 0xc000c
    s_mul_i32 s{sT0}, s{sP}, {CH}
    s_add_u32 s{sPOS}, s{sPOS}, s{sT0}
    s_lshl_b32 s{sPOS}, s{sPOS}, 3
K_s_ent:
    s_cmp_eq_u32 s{sCNT}, 0
    s_cbranch_scc1 K_s_prod_next
    buffer_load_dwordx2 v[{vU}:{vU+1}], v{vTmp}, s[{rCH}:{rCH+3}], s{sPOS} offen{SC}
    s_waitcnt vmcnt(0)
    v_readfirstlane_b32 s{sEN}, v{vU}
    s_nop 3
    s_sub_u32 s{sT0}, s{sEN}, s{sSB}
    s_and_b32 s{sT0}, s{sT0}, 63
    s_cmp_lg_u32 s{sT0}, s{sN}
    s_cbranch_scc1 K_s_ent_next
    s_and_b32 s{sT0}, s{sEN}, 0xffffff00
    buffer_load_dword v{vU+2}, off, s[{rTAB}:{rTAB+3}], s{sT0}{SC}
    v_fma_f32 v{vU}, v{vU+1}, v{vWc}, v{vA}
    s_waitcnt vmcnt(0)
    v_dot2c_f32_bf16 v{vU}, s{sSEL}, v{vU+2}
    s_nop 2
    v_exp_f32_e64 v{vU}, v{vU} clamp
    s_nop 0
    v_fma_f32 v{vU}, v{vU}, s{sC63}, 1.0
    v_rcp_f32 v{vU}, v{vU}
    s_nop 0
    v_add_f32 v{vDen}, v{vDen}, v{vU}
    v_fmac_f32 v{vNum}, v{vU}, v{vU+2}
K_s_ent_next:
    s_add_u32 s{sPOS}, s{sPOS}, 8
    s_sub_u32 s{sCNT}, s{sCNT}, 1
    s_branch K_s_ent
K_s_prod_next:
    s_add_u32 s{sP}, s{sP}, 1
    s_cmp_lt_u32 s{sP}, {NB}
    s_cbranch_scc1 K_s_prod
    s_lshl_b32 s{sT0}, s{sN}, 9
    v_add_u32 v{vF+2}, s{sT0}, v{vLane4}
    ds_write_b32 v{vF+2}, v{vDen} offset:{LDS_SL}
    ds_write_b32 v{vF+2}, v{vNum} offset:{LDS_SL+256}
    s_lshl_b32 s{sT0}, s{sN}, 2
    v_mov_b32 v{vF+3}, s{sT0}
    s_mov_b64 exec, 1
    ds_write_b32 v{vF+3}, v{vOne} offset:{LDS_MSK}
    s_mov_b64 exec, -1
    s_add_u32 s{sN}, s{sN}, 16
    s_branch K_s_node""")

eN, eC, eM, eW, eAd = 8, 9, 10, 11, 12
eDen, eNum, eT0, eT1, eU = 16, 20, 28, 32, 36
o(f"""K_main_done:
    s_setprio 0
    v_lshrrev_b32 v{eN}, 4, v0
    v_and_b32 v{eC}, 15, v0
    v_mul_u32_u24 v13, 272, v{eN}
    v_lshl_add_u32 v13, v{eC}, 4, v13
    v_add_u32 v13, {LDS_U}, v13
    v_lshlrev_b32 v{eAd}, 2, v{eN}
    s_waitcnt vmcnt(0) lgkmcnt(0)""")
stamp(12)
stampc(15)
o(f"""    s_barrier
    s_cmp_ge_u32 s3, 10
    s_cbranch_scc1 K_exit
    ds_read_b32 v{eM}, v{eAd} offset:{LDS_MSK}
    ds_read_b128 v[{eU}:{eU+3}], v13
    v_lshlrev_b32 v{eT0}, 16, v{vXe}
    v_and_b32 v{eT0+1}, 0xffff0000, v{vXe}
    v_lshlrev_b32 v{eT0+2}, 16, v{vXe+1}
    v_and_b32 v{eT0+3}, 0xffff0000, v{vXe+1}
    v_add_u32 v{eAd}, s{sSB}, v{eN}
    v_lshlrev_b32 v{eAd}, 7, v{eAd}
    v_lshl_add_u32 v{eAd}, v{eC}, 3, v{eAd}
    v_mov_b64 v[{eDen}:{eDen+1}], 0
    v_mov_b64 v[{eDen+2}:{eDen+3}], 0
    v_mov_b64 v[{eNum}:{eNum+1}], 0
    v_mov_b64 v[{eNum+2}:{eNum+3}], 0
    v_lshlrev_b32 v14, 4, v{eC}
    v_lshl_add_u32 v14, v{eN}, 9, v14            ; node*512 + c*16
    s_waitcnt lgkmcnt(1)
K_e_loop:
    v_cmp_ne_u32 vcc, 0, v{eM}
    s_and_saveexec_b64 s[{sSAVE}:{sSAVE+1}], vcc
    s_cbranch_execz K_e_end
    v_ffbl_b32 v{eW}, v{eM}
    v_lshl_add_u32 v{eW}, v{eW}, 9, v14
    ds_read_b128 v[40:43], v{eW} offset:{LDS_SL}
    ds_read_b128 v[44:47], v{eW} offset:{LDS_SL+256}
    v_add_u32 v{eW}, -1, v{eM}
    v_and_b32 v{eM}, v{eM}, v{eW}
    s_waitcnt lgkmcnt(0)
    v_pk_add_f32 v[{eDen}:{eDen+1}], v[{eDen}:{eDen+1}], v[40:41]
    v_pk_add_f32 v[{eDen+2}:{eDen+3}], v[{eDen+2}:{eDen+3}], v[42:43]
    v_pk_add_f32 v[{eNum}:{eNum+1}], v[{eNum}:{eNum+1}], v[44:45]
    v_pk_add_f32 v[{eNum+2}:{eNum+3}], v[{eNum+2}:{eNum+3}], v[46:47]
    s_mov_b64 exec, s[{sSAVE}:{sSAVE+1}]
    s_branch K_e_loop
K_e_end:
    s_mov_b64 exec, s[{sSAVE}:{sSAVE+1}]
    s_waitcnt lgkmcnt(0)""")
for i in range(4): o(f"    v_add_f32 v{eDen+i}, 0x358637bd, v{eDen+i}")
for i in range(4): o(f"    v_rcp_f32 v{eDen+i}, v{eDen+i}")
o(f"    v_cmp_gt_u32 vcc, s{sNB}, v{eN}")
for i in range(4): o(f"    v_fma_f32 v{eU+i}, v{eNum+i}, v{eDen+i}, v{eU+i}")
for i in range(4): o(f"    v_max_f32 v{eU+i}, 0, v{eU+i}")
for i in range(4): o(f"    v_add_f32 v{eU+i}, v{eU+i}, v{eT0+i}")
o(f"""    v_cvt_pk_bf16_f32 v{eT1}, v{eU}, v{eU+1}
    v_cvt_pk_bf16_f32 v{eT1+1}, v{eU+2}, v{eU+3}
    s_and_saveexec_b64 s[{sSAVE}:{sSAVE+1}], vcc
    s_cbranch_execz K_exit
    buffer_store_dwordx2 v[{eT1}:{eT1+1}], v{eAd}, s[{rOUT}:{rOUT+3}], 0 offen
K_exit:""")
if STAMP:
    o("    s_mov_b64 exec, -1\n    s_waitcnt vmcnt(0)")
    stamp(13)
    stamp_flush()
o("K_done:\n    s_endpgm")
o(f""".section .rodata,"a"
.p2align 6
.amdhsa_kernel {NAME}
  .amdhsa_next_free_vgpr 128
  .amdhsa_next_free_sgpr 102
  .amdhsa_accum_offset 128
  .amdhsa_group_segment_fixed_size 0
  .amdhsa_kernarg_size 96
  .amdhsa_user_sgpr_count 2
  .amdhsa_user_sgpr_kernarg_segment_ptr 1
  .amdhsa_system_sgpr_workgroup_id_x 1
  .amdhsa_dx10_clamp 0
.end_amdhsa_kernel""")
print("\n".join(L))
```

```python
import sys
FL = set(sys.argv[1].split(',')) if len(sys.argv) > 1 else set()
LIGHT = "light" in FL
STAMP = "stamp" in FL or LIGHT
PREF = "nopref" not in FL
NAME = "standalone__edge_featured_mpnn_gatedgcn__graph_kernel"

LSET = {0, 13}
for f_ in FL:
    if f_.startswith('st='): LSET |= {int(x) for x in f_[3:].split('-')}
L = []
def o(s=""): L.append(s)

N, D, E = 10000, 64, 640000
NB = 256
CH = E // NB
BMUL = 26843
WS_T = 0
T_BYTES = (N+1)*256
WS_O = 0x280000
O_BYTES = NB*NB*8
WS_C = 0x300000
C_BYTES = NB*CH*8
WS_EP = 0x7F0000
WS_TF = 0x7F1000
WS_STAMP = 0x800000
NLOG2E = 0xBFB8AA3B
WROW = 144
SPIN_MAX = 5000000
SPIN_LDS = 20000000
SC = " sc1"
def opt(name, default):
    for f in FL:
        if f.startswith(name + "="): return f.split("=")[1]
    return default
SLEEP = int(opt("sleep", 1))
SCW = " " + opt("stf", "sc1").replace("+", " ")
SCE = " " + opt("ldf", "sc1").replace("+", " ")

LDS_CNT2, LDS_MSK, LDS_FLG = 0, 256, 512
LDS_CNT1, LDS_BASE1 = 768, 1792
LDS_O = 2816
LDS_E = LDS_O + 12800
LDS_A = LDS_E + 12800
LDS_SL = LDS_A + 48*272
LDS_U = LDS_SL + 56*512
LDS_W2 = LDS_U + 48*272
LDS_W1 = LDS_W2 + 2*64*WROW
LDS_ZS = LDS_W1 + 2*64*WROW
LDS_TOT = LDS_ZS + 512
LDS_SORT = LDS_SL
CAPQ = 768
assert LDS_SORT + CH*8 + 16 < 65536

def srd(dst, base, nrec, w3=0x20000, stride=0, off=0):
    if off:
        o(f"    s_add_u32 s{dst}, s{base}, {off:#x}")
        o(f"    s_addc_u32 s{dst+1}, s{base+1}, 0")
        o(f"    s_and_b32 s{dst+1}, s{dst+1}, 0xffff")
    else:
        o(f"    s_mov_b32 s{dst}, s{base}")
        o(f"    s_and_b32 s{dst+1}, s{base+1}, 0xffff")
    if stride: o(f"    s_or_b32 s{dst+1}, s{dst+1}, {stride<<16:#x}")
    o(f"    s_mov_b32 s{dst+2}, {nrec:#x}")
    o(f"    s_mov_b32 s{dst+3}, {w3:#x}")

SCAN = ("row_shr:1 row_mask:0xf bank_mask:0xf bound_ctrl:1", "row_shr:2 row_mask:0xf bank_mask:0xf bound_ctrl:1",
        "row_shr:4 row_mask:0xf bank_mask:0xf bound_ctrl:1", "row_shr:8 row_mask:0xf bank_mask:0xf bound_ctrl:1",
        "row_bcast:15 row_mask:0xa bank_mask:0xf", "row_bcast:31 row_mask:0xc bank_mask:0xf")
def wave_scan(v, fill=()):
    fill = list(fill)
    for ctl in SCAN:
        if len(fill) >= 2:
            o("    " + fill.pop(0)); o("    " + fill.pop(0))
        else:
            o("    s_nop 1")
        o(f"    v_add_u32_dpp v{v}, v{v}, v{v} {ctl}")
    for f in fill: o("    " + f)

sX, sEA, sSRC, sDST = 4, 6, 8, 10
sWA, sWB, sWC, sWU = 12, 14, 16, 18
sWV, sOUT = 20, 22
sWS = 24
sEP = 26
rA, rB, rC = 28, 32, 36
rX, rOFF, rCH, rTAB, rTABW, rOUT = 40, 44, 48, 52, 56, 60
sSB, sNB, sSB4 = 64, 65, 66
sT0, sT1, sT2, sT3 = 67, 68, 69, 70
sM = 72
sV625 = 72
sBIG = 88
sSO = 90
sTAGL, sTAGH = 94, 95
sSAVE = 96
sSPIN = 98
sGOFF = 99
sBETA = 71
sSTMP = 100
sQ, sQ0, sQ1, sNODE, sBND, sSTOP, sREM = 4, 5, 6, 7, 8, 9, 10
sC63, sSEL, sIT = 12, 14, 15

vLane, vT16, vLane4, vJ, vJ16, vSeg, vG4 = 1, 3, 4, 5, 6, 7, 2
vXe, vWc = 24, 26
vOne = 60
vTmp = 62
vInc, vBase = 70, 71
vST = 127
vZ = 61

def stamp(idx, pre=False):
    if not STAMP: return
    if LIGHT and idx not in LSET: return
    if not pre:
        o(f"    s_memrealtime s[{sSTMP}:{sSTMP+1}]")
        o(f"    s_waitcnt lgkmcnt(0)")
    o(f"    v_writelane_b32 v{vST}, s{sSTMP}, {idx}")
def stampc(idx):
    if not STAMP or LIGHT: return
    o(f"    s_memtime s[{sSTMP}:{sSTMP+1}]")
    o(f"    s_waitcnt lgkmcnt(0)")
    o(f"    v_writelane_b32 v{vST}, s{sSTMP}, {idx}")
def stamp_flush():
    if not STAMP: return
    o(f"""    s_mov_b64 exec, -1
    s_lshl_b32 s{sT0}, s2, 4
    s_add_u32 s{sT0}, s{sT0}, s3
    s_lshl_b32 s{sT0}, s{sT0}, 7
    s_add_u32 s{rA}, s{sWS}, {WS_STAMP:#x}
    s_addc_u32 s{rA+1}, s{sWS+1}, 0
    s_and_b32 s{rA+1}, s{rA+1}, 0xffff
    s_mov_b32 s{rA+2}, 0x100000
    s_mov_b32 s{rA+3}, 0x20000
    s_mov_b32 exec_lo, -1
    s_mov_b32 exec_hi, 0
    buffer_store_dword v{vST}, v{vLane4}, s[{rA}:{rA+3}], s{sT0} offen
    s_mov_b64 exec, -1""")

o(f"; @launch grid=({NB},1,1) block=(1024,1,1) lds={LDS_TOT}")
o('.amdgcn_target "amdgcn-amd-amdhsa--gfx950"')
o(".text")
o(f".globl {NAME}\n.p2align 8\n.type {NAME},@function\n{NAME}:")
if STAMP: o(f"    s_memrealtime s[{sSTMP}:{sSTMP+1}]")
o(f"""    s_cmp_ge_u32 s2, {NB}
    s_cbranch_scc1 K_done
    s_load_dwordx8 s[4:11], s[0:1], 0
    s_load_dwordx2 s[{sWS}:{sWS+1}], s[0:1], 88
    s_load_dwordx8 s[12:19], s[0:1], 32        ; w_a, w_b, w_c, w_u
    s_load_dwordx4 s[20:23], s[0:1], 64        ; w_v, out
    v_and_b32 v{vLane}, 63, v0
    v_lshrrev_b32 v{vG4}, 6, v0
    v_lshlrev_b32 v{vT16}, 4, v0
    v_readfirstlane_b32 s3, v{vG4}
    v_lshlrev_b32 v{vLane4}, 2, v{vLane}
    v_mov_b32 v{vOne}, 1
    v_mov_b32 v{vZ}, 0
    v_mov_b32 v{vTmp}, 0
    v_lshlrev_b32 v{vTmp+1}, 2, v0
    v_lshlrev_b32 v8, 3, v0                   ; t*8
    v_cmp_gt_u32 vcc, {CH//4}, v0
    s_mul_i32 s{sSO}, s2, {CH*4}
    s_mul_i32 s{sSO+1}, s2, {CH*2}
    s_mov_b64 s[{sV625}:{sV625+1}], vcc
    s_cmp_ge_u32 s3, 7
    s_cbranch_scc1 K_nozero
    ds_write_b32 v{vTmp+1}, v{vTmp}
K_nozero:
    v_and_b32 v{vJ}, 15, v{vLane}
    v_lshrrev_b32 v{vG4}, 4, v{vLane}         ; g
    s_cmp_ge_u32 s3, 10
    s_cbranch_scc1 K_tab_start
    s_waitcnt lgkmcnt(0)""")
stamp(0, pre=True)
if "sprio" in FL: o("    s_setprio 2")
srd(rA, sDST, E*4)
o(f"""    s_mov_b64 exec, s[{sV625}:{sV625+1}]
    buffer_load_dwordx4 v[32:35], v{vT16}, s[{rA}:{rA+3}], s{sSO} offen
    s_mov_b64 exec, -1""")
srd(rB, sSRC, E*4); srd(rC, sEA, E*2); srd(rOUT, sWS, 8, off=WS_EP)
o(f"""    s_barrier
    s_mov_b64 exec, s[{sV625}:{sV625+1}]
    buffer_load_dwordx4 v[36:39], v{vT16}, s[{rB}:{rB+3}], s{sSO} offen       ; src
    buffer_load_dwordx2 v[40:41], v8, s[{rC}:{rC+3}], s{sSO+1} offen          ; e
    s_mov_b64 exec, -1
    buffer_load_dwordx2 v[10:11], v{vZ}, s[{rOUT}:{rOUT+3}], 0 offen
    v_mov_b32 v48, {N*256}
    v_mov_b32 v49, {N*256}
    v_mov_b32 v50, {N*256}
    v_mov_b32 v51, {N*256}
    v_mov_b32 v52, 0
    v_mov_b32 v53, 0
    v_mov_b32 v54, 0
    v_mov_b32 v55, 0
    s_cmp_ge_u32 s3, 13
    s_cbranch_scc1 K_nofilla
    v_cmp_gt_u32 vcc, 800, v0
    s_and_saveexec_b64 s[{sBIG}:{sBIG+1}], vcc
    ds_write_b128 v{vT16}, v[48:51] offset:{LDS_O}
    ds_write_b128 v{vT16}, v[52:55] offset:{LDS_E}
    s_mov_b64 exec, s[{sBIG}:{sBIG+1}]
K_nofilla:
    v_lshlrev_b32 v56, 4, v{vLane}
    v_add_u32 v56, {LDS_ZS}, v56
    s_cmp_lg_u32 s3, 0
    s_cbranch_scc1 K_nozs
    s_mov_b32 exec_hi, 0
    ds_write_b128 v56, v[52:55]
    s_mov_b64 exec, -1
K_nozs:
""")
def common_consts():
    o(f"""    ; bucket of this workgroup: consecutive buckets on one die (speed only); node range [start(b), start(b+1))
    s_and_b32 s{sBETA}, s2, 7
    s_lshl_b32 s{sBETA}, s{sBETA}, 5
    s_lshr_b32 s{sT0}, s2, 3
    s_or_b32 s{sBETA}, s{sBETA}, s{sT0}
    s_mul_i32 s{sSB}, s{sBETA}, 40000
    s_lshr_b32 s{sSB}, s{sSB}, 10
1:
    s_mul_i32 s{sT0}, s{sSB}, {BMUL}
    s_lshr_b32 s{sT0}, s{sT0}, 20
    s_cmp_ge_u32 s{sT0}, s{sBETA}
    s_cbranch_scc1 2f
    s_add_u32 s{sSB}, s{sSB}, 1
    s_branch 1b
2:
    s_add_u32 s{sT1}, s{sBETA}, 1
    s_mul_i32 s{sNB}, s{sT1}, 40000
    s_lshr_b32 s{sNB}, s{sNB}, 10
3:
    s_mul_i32 s{sT0}, s{sNB}, {BMUL}
    s_lshr_b32 s{sT0}, s{sT0}, 20
    s_cmp_ge_u32 s{sT0}, s{sT1}
    s_cbranch_scc1 4f
    s_add_u32 s{sNB}, s{sNB}, 1
    s_branch 3b
4:
    s_min_u32 s{sNB}, s{sNB}, {N}
    s_sub_u32 s{sNB}, s{sNB}, s{sSB}
    s_lshl_b32 s{sSB4}, s{sSB}, 2
    v_add_u32 v{vJ16}, 16, v{vJ}
    v_lshrrev_b32 v{vTmp}, 4, v0              ; t>>4
    v_mul_u32_u24 v{vSeg}, {4*CH*8}, v{vTmp}
    v_lshlrev_b32 v{vTmp+7}, 1, v{vLane}""")
    srd(rX, sX, N*D*2)
    srd(rC, sWC, D*2)
    srd(rOFF, sWS, O_BYTES, off=WS_O)
    srd(rCH, sWS, C_BYTES, off=WS_C)
    srd(rTAB, sWS, T_BYTES, w3=0x00800000, stride=4, off=WS_T)
    srd(rTABW, sWS, T_BYTES, off=WS_T)
    srd(rOUT, sOUT, N*D*2)
common_consts()
o(f"""    ; epilogue x address
    v_add_u32 v{vTmp+6}, s{sSB}, v{vTmp}
    v_lshlrev_b32 v{vTmp+6}, 7, v{vTmp+6}
    v_lshl_add_u32 v{vTmp+6}, v{vJ}, 3, v{vTmp+6}
    s_mov_b64 exec, s[{sV625}:{sV625+1}]
    s_waitcnt vmcnt(3)""")
for i in range(4): o(f"    v_mul_u32_u24 v{44+i}, {BMUL}, v{32+i}")
for i in range(4): o(f"    v_lshrrev_b32 v{44+i}, 18, v{44+i}")
for i in range(4): o(f"    v_and_b32 v{44+i}, 0x3fc, v{44+i}")
for i in range(4): o(f"    ds_add_rtn_u32 v{48+i}, v{44+i}, v{vOne} offset:{LDS_CNT1}")
for i in range(4): o(f"    v_and_b32 v{32+i}, 63, v{32+i}")
o("    s_mov_b64 exec, -1")
stamp(1)
o(f"""    s_waitcnt lgkmcnt(0)
    s_barrier""")
stamp(2)
o(f"""    s_cmp_lg_u32 s3, 0
    s_cbranch_scc1 K_noscan
    ds_read_b128 v[72:75], v{vT16} offset:{LDS_CNT1}
    s_waitcnt lgkmcnt(0)
    v_add_u32 v76, v72, v73
    v_add_u32 v77, v76, v74
    v_add_u32 v78, v77, v75
    v_mov_b32 v79, v78""")
wave_scan(79)
o(f"""    v_sub_u32 v80, v79, v78
    v_add_u32 v81, v80, v72
    v_add_u32 v82, v80, v76
    v_add_u32 v83, v80, v77
    ds_write_b128 v{vT16}, v[80:83] offset:{LDS_BASE1}
K_noscan:
    s_waitcnt lgkmcnt(0)
    s_barrier""")
stamp(3)
o(f"    s_mov_b64 exec, s[{sV625}:{sV625+1}]")
for i in range(4): o(f"    ds_read_b32 v{12+i}, v{44+i} offset:{LDS_BASE1}")
o("    s_waitcnt vmcnt(0)")
for i in range(4): o(f"    v_lshl_or_b32 v{52+2*i}, v{36+i}, 8, v{32+i}")
o(f"""    v_lshlrev_b32 v53, 16, v40
    v_and_b32 v55, 0xffff0000, v40
    v_lshlrev_b32 v57, 16, v41
    v_and_b32 v59, 0xffff0000, v41
    s_waitcnt lgkmcnt(0)""")
for i in range(4): o(f"    v_add_lshl_u32 v{40+i}, v{12+i}, v{48+i}, 3")
for i in range(4): o(f"    ds_write_b64 v{40+i}, v[{52+2*i}:{53+2*i}] offset:{LDS_SORT}")
o(f"""    s_mov_b64 exec, -1
    v_add_u32 v8, {640*16}, v{vT16}
    v_cmp_gt_u32 vcc, {CH*8//16 - 640}, v0
    s_mul_i32 s{sT0}, s2, {CH*8}
    s_mov_b64 s[{sSAVE}:{sSAVE+1}], vcc
    v_readfirstlane_b32 s{sEP}, v10
    v_readfirstlane_b32 s{sEP+1}, v11
    s_waitcnt lgkmcnt(0)
    s_barrier""")
stamp(4)
o(f"""    ds_read_b128 v[32:35], v{vT16} offset:{LDS_SORT}
    s_mov_b64 exec, s[{sSAVE}:{sSAVE+1}]
    ds_read_b128 v[36:39], v8 offset:{LDS_SORT}
    s_mov_b64 exec, -1
    s_waitcnt lgkmcnt(0)
    buffer_store_dwordx4 v[32:35], v{vT16}, s[{rCH}:{rCH+3}], s{sT0} offen{SCW}
    s_mov_b64 exec, s[{sSAVE}:{sSAVE+1}]
    buffer_store_dwordx4 v[36:39], v8, s[{rCH}:{rCH+3}], s{sT0} offen{SCW}
    s_mov_b64 exec, -1
    buffer_load_dwordx2 v[{vXe}:{vXe+1}], v{vTmp+6}, s[{rX}:{rX+3}], 0 offen
    buffer_load_ushort v{vWc}, v{vTmp+7}, s[{rC}:{rC+3}], 0 offen""")
stamp(5)
def tags(inc=True):
    if inc: o(f"""    ; this launch's epoch
    s_add_u32 s{sEP}, s{sEP}, 1
    s_addc_u32 s{sEP+1}, s{sEP+1}, 0""")
    o(f"""    ; this launch's tag
    s_and_b32 s{sTAGL}, s{sEP}, 0xff
    s_lshl_b32 s{sTAGL}, s{sTAGL}, 24
    s_lshr_b64 s[{sSAVE}:{sSAVE+1}], s[{sEP}:{sEP+1}], 8
    s_mov_b32 s{sTAGH}, s{sSAVE}""")
tags()
o(f"""    ; granule of bucket j (thread j < 256) lives at (j>>4)*32768 + p*128 + (j&15)*8
    v_lshrrev_b32 v8, 4, v0
    v_lshlrev_b32 v86, 15, v8
    v_lshl_add_u32 v86, v{vJ}, 3, v86
    v_and_b32 v9, 255, v0
    v_lshlrev_b32 v9, 2, v9
    ds_read_b32 v84, v9 offset:{LDS_BASE1}
    ds_read_b32 v85, v9 offset:{LDS_CNT1}
    s_waitcnt lgkmcnt(0)
    v_lshl_or_b32 v84, v85, 12, v84
    v_or_b32 v84, s{sTAGL}, v84
    v_mov_b32 v85, s{sTAGH}
    s_lshl_b32 s{sT0}, s2, 7                   ; p*128
    v_mov_b32 v12, s{sEP}
    v_mov_b32 v13, s{sEP+1}
    s_mov_b64 exec, 1
    ds_write_b64 v{vZ}, v[12:13] offset:{LDS_FLG+32}
    s_mov_b64 exec, -1
    s_waitcnt vmcnt(0) lgkmcnt(0)
    v_lshlrev_b32 v{vWc}, 16, v{vWc}
    v_mul_f32 v{vWc}, {NLOG2E:#x}, v{vWc}""")
stamp(6)
o(f"""    s_barrier""")
stamp(7)
o(f"""    s_cmp_ge_u32 s3, 4
    s_cbranch_scc1 K_poll_setup
    buffer_store_dwordx2 v[84:85], v86, s[{rOFF}:{rOFF+3}], s{sT0} offen{SC}
    s_branch K_poll_setup""")

vX1, vW1r, vW2r, vXf2 = 32, 72, 88, 16
o(f"""K_tab_start:
    s_sub_u32 s{sT0}, s3, 10
    s_lshr_b32 s{sT2}, s{sT0}, 1              ; tau
    s_and_b32 s{sT3}, s{sT0}, 1               ; half
    s_lshl_b32 s{sT0}, s{sT2}, 4              ; 16*tau
    s_mul_i32 s{sT1}, s2, 40
    s_add_u32 s{sT1}, s{sT1}, s{sT0}
    v_add_u32 v9, s{sT1}, v{vJ}
    v_lshlrev_b32 v10, 7, v9
    v_lshl_add_u32 v10, v{vG4}, 4, v10
    v_subrev_u32 v11, 640, v0                 ; u = t - 640
    v_lshlrev_b32 v12, 4, v11
    v_add_u32 v13, {384*16}, v12
    s_waitcnt lgkmcnt(0)""")
stamp(0, pre=True)
o("    s_barrier                                  ; B0")
srd(rA, sX, N*D*2); srd(rB, sWB, D*D*2); srd(rC, sWV, D*D*2)
o(f"""    buffer_load_dwordx4 v[{vX1}:{vX1+3}], v10, s[{rA}:{rA+3}], 0 offen
    buffer_load_dwordx4 v[{vX1+4}:{vX1+7}], v10, s[{rA}:{rA+3}], 0 offen offset:64
    buffer_load_dwordx4 v[{vW1r}:{vW1r+3}], v12, s[{rB}:{rB+3}], 0 offen
    buffer_load_dwordx4 v[{vW1r+4}:{vW1r+7}], v12, s[{rC}:{rC+3}], 0 offen
    s_cmp_ge_u32 s3, 12
    s_cbranch_scc1 K_tab_ld1
    buffer_load_dwordx4 v[{vW1r+8}:{vW1r+11}], v13, s[{rB}:{rB+3}], 0 offen
    buffer_load_dwordx4 v[{vW1r+12}:{vW1r+15}], v13, s[{rC}:{rC+3}], 0 offen
K_tab_ld1:
    v_mov_b32 v48, {N*256}
    v_mov_b32 v49, {N*256}
    v_mov_b32 v50, {N*256}
    v_mov_b32 v51, {N*256}
    v_mov_b32 v52, 0
    v_mov_b32 v53, 0
    v_mov_b32 v54, 0
    v_mov_b32 v55, 0
    s_cmp_ge_u32 s3, 13
    s_cbranch_scc1 K_nofillb
    v_cmp_gt_u32 vcc, 800, v0
    s_and_saveexec_b64 s[{sBIG}:{sBIG+1}], vcc
    ds_write_b128 v{vT16}, v[48:51] offset:{LDS_O}
    ds_write_b128 v{vT16}, v[52:55] offset:{LDS_E}
    s_mov_b64 exec, s[{sBIG}:{sBIG+1}]
K_nofillb:
    v_mov_b32 v16, v12
    v_mov_b32 v17, v13""")
common_consts()
o(f"""    ; staging addresses of chunks u and u+384: (c>>3)*WROW + (c&7)*16
    v_lshrrev_b32 v14, 3, v11
    v_mul_u32_u24 v14, {WROW}, v14
    v_and_b32 v15, 7, v11
    v_lshl_add_u32 v14, v15, 4, v14
    v_add_u32 v14, {LDS_W2}, v14
    v_add_u32 v15, {48*WROW}, v14              ; chunk u+384
    v_bfe_u32 v{vTmp+5}, v{vLane}, 2, 2
    v_lshl_add_u32 v{vTmp+5}, v{vG4}, 3, v{vTmp+5}
    v_mul_u32_u24 v{vTmp+5}, {WROW}, v{vTmp+5}
    v_and_b32 v{vTmp+1}, 3, v{vLane}
    v_lshl_add_u32 v{vTmp+5}, v{vTmp+1}, 3, v{vTmp+5}
    s_lshl_b32 s{sT0}, s{sT3}, 6
    s_add_u32 s{sT0}, s{sT0}, {LDS_W2}
    v_add_u32 v{vTmp+5}, s{sT0}, v{vTmp+5}
    s_sub_u32 s{sT0}, s3, 10
    s_mov_b32 s{sT1}, {LDS_U - 3*2304}
    s_cmp_ge_u32 s{sT0}, 3
    s_cselect_b32 s{sT1}, s{sT1}, {LDS_A}
    s_mul_i32 s{sT0}, s{sT0}, 2304
    s_add_u32 s{sT0}, s{sT0}, s{sT1}
    v_mul_u32_u24 v10, 144, v{vJ}
    v_lshl_add_u32 v10, v{vG4}, 4, v10
    v_add_u32 v10, s{sT0}, v10
    v_lshrrev_b32 v11, 3, v{vLane}
    v_mul_u32_u24 v12, 144, v11
    v_and_b32 v13, 7, v{vLane}
    v_lshl_add_u32 v12, v13, 4, v12
    v_add_u32 v12, s{sT0}, v12
    s_lshl_b32 s{sT0}, s{sT2}, 4
    v_add_u32 v11, s{sT0}, v11
    v_lshlrev_b32 v9, 8, v11
    v_lshl_add_u32 v9, v13, 4, v9
    v_mov_b32 v8, 0
    s_waitcnt lgkmcnt(0)
    s_barrier                                  ; B1
    s_barrier                                  ; B2
    ; second weight pair, x fragments of the A/U tile tau, w_c""")
srd(rA, sWA, D*D*2); srd(rB, sWU, D*D*2)
o(f"""    buffer_load_dwordx4 v[120:123], v16, s[{rA}:{rA+3}], 0 offen
    buffer_load_dwordx4 v[52:55], v16, s[{rB}:{rB+3}], 0 offen
    s_cmp_ge_u32 s3, 12
    s_cbranch_scc1 K_tab_ld2
    buffer_load_dwordx4 v[56:59], v17, s[{rA}:{rA+3}], 0 offen
    buffer_load_dwordx4 v[28:31], v17, s[{rB}:{rB+3}], 0 offen
K_tab_ld2:
    s_lshl_b32 s{sT0}, s{sT2}, 4
    s_add_u32 s{sT0}, s{sT0}, s{sSB}
    v_add_u32 v{vTmp}, s{sT0}, v{vJ}
    v_lshlrev_b32 v{vTmp}, 7, v{vTmp}
    v_lshl_add_u32 v{vTmp}, v{vG4}, 4, v{vTmp}
    buffer_load_dwordx4 v[{vXf2}:{vXf2+3}], v{vTmp}, s[{rX}:{rX+3}], 0 offen
    buffer_load_dwordx4 v[{vXf2+4}:{vXf2+7}], v{vTmp}, s[{rX}:{rX+3}], 0 offen offset:64
    buffer_load_ushort v{vWc}, v{vTmp+7}, s[{rC}:{rC+3}], 0 offen
    s_barrier                                  ; B3
    s_cmp_ge_u32 s3, 12
    s_cbranch_scc1 K_tab_w5
    s_waitcnt vmcnt(7)
    s_branch K_tab_w
K_tab_w5:
    s_waitcnt vmcnt(5)
K_tab_w:""")
stamp(1)
o(f"""    ds_write_b128 v14, v[{vW1r}:{vW1r+3}] offset:{128*WROW}
    ds_write_b128 v14, v[{vW1r+4}:{vW1r+7}] offset:{192*WROW}
    s_cmp_ge_u32 s3, 12
    s_cbranch_scc1 K_tab_st0
    ds_write_b128 v15, v[{vW1r+8}:{vW1r+11}] offset:{128*WROW}
    ds_write_b128 v15, v[{vW1r+12}:{vW1r+15}] offset:{192*WROW}
K_tab_st0:
    s_waitcnt lgkmcnt(0)
    s_mov_b64 exec, 1
    ds_add_u32 v8, v{vOne} offset:{LDS_FLG+4}
    s_mov_b64 exec, -1
    s_mov_b32 s{sSPIN}, 0
K_tab_meet:
    ds_read_b32 v{vTmp}, v8 offset:{LDS_FLG+4}
    s_add_u32 s{sSPIN}, s{sSPIN}, 1
    s_waitcnt lgkmcnt(0)
    v_readfirstlane_b32 s{sT0}, v{vTmp}
    s_cmp_ge_u32 s{sSPIN}, {SPIN_LDS}
    s_cbranch_scc1 K_tab_met
    s_cmp_lt_u32 s{sT0}, 6
    s_cbranch_scc1 K_tab_meet
K_tab_met:""")
def frag(k, s_): return 72 + (k*2+s_)*4
for m in range(2):
    for jj in range(2):
        for s_ in range(2):
            f = frag(m*2+jj, s_)
            off = (2+m)*64*WROW + s_*32*WROW + jj*32
            o(f"    ds_read_b64_tr_b16 v[{f}:{f+1}], v{vTmp+5} offset:{off}")
            o(f"    ds_read_b64_tr_b16 v[{f+2}:{f+3}], v{vTmp+5} offset:{off+4*WROW}")
for k in range(4):
    a_ = 104 + k*4
    o(f"    s_waitcnt lgkmcnt({12-4*k})")
    o(f"    v_mfma_f32_16x16x32_bf16 v[{a_}:{a_+3}], v[{frag(k,0)}:{frag(k,0)+3}], v[{vX1}:{vX1+3}], 0")
    o(f"    v_mfma_f32_16x16x32_bf16 v[{a_}:{a_+3}], v[{frag(k,1)}:{frag(k,1)+3}], v[{vX1+4}:{vX1+7}], v[{a_}:{a_+3}]")
o(f"""    s_mov_b32 s{sT0}, {NLOG2E:#x}
    s_mov_b32 s{sT1}, 0xffff0000
    s_mov_b32 s{sSPIN}, 0x80000000
    s_mov_b32 s{sGOFF}, 0x7fffffff
    s_lshl_b32 s{sSO+1}, s{sT3}, 7
    s_mul_i32 s{sSO+2}, s2, {40*256}
    s_add_u32 s{sSO+2}, s{sSO+2}, s{sSO+1}
    s_nop 1""")
for jj in range(2):
    B = 104 + jj*4; Vv = 112 + jj*4
    t = 40
    for i in range(4): o(f"    v_mul_f32 v{B+i}, s{sT0}, v{B+i}")
    o(f"    v_cvt_pk_bf16_f32 v{t}, v{B}, v{B+1}")
    o(f"    v_cvt_pk_bf16_f32 v{t+1}, v{B+2}, v{B+3}")
    o(f"    v_and_b32 v{B}, 0xffff, v{t}")
    o(f"    v_lshrrev_b32 v{B+1}, 16, v{t}")
    o(f"    v_and_b32 v{B+2}, 0xffff, v{t+1}")
    o(f"    v_lshrrev_b32 v{B+3}, 16, v{t+1}")
    T = 44 + jj*4
    for i in range(4): o(f"    v_and_b32 v{T+i}, s{sGOFF}, v{Vv+i}")
    for i in range(4): o(f"    v_add_u32 v{T+i}, 0x8000, v{T+i}")
    for i in range(4): o(f"    v_sub_u32_e64 v{T+i}, v{T+i}, v{B+i} clamp")
    for i in range(4): o(f"    v_and_or_b32 v{T+i}, v{T+i}, s{sT1}, v{B+i}")
    for i in range(4): o(f"    v_and_or_b32 v{T+i}, v{Vv+i}, s{sSPIN}, v{T+i}")
    o(f"    ds_write_b128 v10, v[{T}:{T+3}] offset:{jj*64}")
o(f"""    s_waitcnt lgkmcnt(0)
    ds_read_b128 v[44:47], v12
    ds_read_b128 v[48:51], v12 offset:{8*144}
    v_cmp_gt_u32 vcc, 40, v11
    s_mov_b64 s[{sM}:{sM+1}], vcc
    v_cmp_gt_u32 vcc, 32, v11
    s_mov_b64 s[{sM+2}:{sM+3}], vcc
    ; stage w_a|w_u
    s_waitcnt vmcnt(0)
    ds_write_b128 v14, v[120:123]
    ds_write_b128 v14, v[52:55] offset:{64*WROW}
    s_cmp_ge_u32 s3, 12
    s_cbranch_scc1 K_tab_st2
    ds_write_b128 v15, v[56:59]
    ds_write_b128 v15, v[28:31] offset:{64*WROW}
K_tab_st2:
    v_lshlrev_b32 v{vWc}, 16, v{vWc}
    v_mul_f32 v{vWc}, {NLOG2E:#x}, v{vWc}
    s_waitcnt lgkmcnt(0)
    s_cmp_ge_u32 s2, 250
    s_cbranch_scc1 K_tab_norows
    s_mov_b64 exec, s[{sM}:{sM+1}]
    s_cbranch_execz K_tab_r1
    buffer_store_dwordx4 v[44:47], v9, s[{rTABW}:{rTABW+3}], s{sSO+2} offen{SCW}
K_tab_r1:
    s_mov_b64 exec, s[{sM+2}:{sM+3}]
    s_cbranch_execz K_tab_r2
    buffer_store_dwordx4 v[48:51], v9, s[{rTABW}:{rTABW+3}], s{sSO+2} offen offset:2048{SCW}
K_tab_r2:
    s_mov_b64 exec, -1
    s_branch K_tab_stored
K_tab_norows:
    s_cmp_lg_u32 s2, 250
    s_cbranch_scc1 K_tab_stored
    s_cmp_lg_u32 s3, 10
    s_cbranch_scc1 K_tab_stored
    v_mov_b32 v44, 0x7f00
    s_mov_b32 s{sT0}, {N*256}
    buffer_store_dword v44, v{vLane4}, s[{rTABW}:{rTABW+3}], s{sT0} offen{SCW}
K_tab_stored:""")
stamp(5)
o("    s_barrier")
stamp(7)
o(f"    ds_read_b64 v[124:125], v{vZ} offset:{LDS_FLG+32}")
vFr, vAcc = 72, 104
for jj in range(2):
    for m in range(2):
        for s_ in range(2):
            f = vFr + ((jj*2+m)*2+s_)*4
            off = m*64*WROW + s_*32*WROW + jj*32
            o(f"    ds_read_b64_tr_b16 v[{f}:{f+1}], v{vTmp+5} offset:{off}")
            o(f"    ds_read_b64_tr_b16 v[{f+2}:{f+3}], v{vTmp+5} offset:{off+4*WROW}")
o(f"""    ; LDS dest: (16*tau + (lane&15))*272 + (32*half + 16*jj + 4*g)*4
    s_lshl_b32 s{sT1}, s{sT2}, 4
    v_add_u32 v9, s{sT1}, v{vJ}
    v_mul_u32_u24 v9, 272, v9
    v_lshl_add_u32 v9, v{vG4}, 4, v9
    s_lshl_b32 s{sT0}, s{sT3}, 7
    v_add_u32 v9, s{sT0}, v9
    v_add_u32 v11, {LDS_U}, v9""")
for k in range(4):
    a_ = vAcc + k*4; f = vFr + k*8
    o(f"    s_waitcnt lgkmcnt({12-4*k})")
    o(f"    v_mfma_f32_16x16x32_bf16 v[{a_}:{a_+3}], v[{f}:{f+3}], v[{vXf2}:{vXf2+3}], 0")
    o(f"    v_mfma_f32_16x16x32_bf16 v[{a_}:{a_+3}], v[{f+4}:{f+7}], v[{vXf2+4}:{vXf2+7}], v[{a_}:{a_+3}]")
o(f"""    s_mov_b32 s{sT0}, {NLOG2E:#x}
    v_mov_b32 v10, 0xc27c0000                  ; -63
    s_nop 7""")
for jj in range(2):
    a_ = vAcc + jj*8
    for i in range(4): o(f"    v_fma_f32 v{a_+i}, v{a_+i}, s{sT0}, v10")
    o(f"    ds_write_b128 v9, v[{a_}:{a_+3}] offset:{LDS_A + jj*64}")
    o(f"    ds_write_b128 v11, v[{a_+4}:{a_+7}] offset:{jj*64}")
o(f"    v_readfirstlane_b32 s{sEP}, v124\n    v_readfirstlane_b32 s{sEP+1}, v125\n    s_nop 3")
tags(False)
o(f"""    ; table-ready signal: the last table wave whose stores have completed publishes one granule per replica
    s_waitcnt vmcnt(0)""")
stamp(6)
o(f"""    s_mov_b64 exec, 1
    ds_add_rtn_u32 v9, v8, v{vOne} offset:{LDS_FLG+8}
    s_mov_b64 exec, -1
    s_waitcnt lgkmcnt(0)
    v_readfirstlane_b32 s{sT0}, v9
    s_nop 3
    s_cmp_lg_u32 s{sT0}, 5
    s_cbranch_scc1 K_poll_setup
    s_add_u32 s{rA}, s{sWS}, {WS_TF:#x}
    s_addc_u32 s{rA+1}, s{sWS+1}, 0
    s_and_b32 s{rA+1}, s{rA+1}, 0xffff
    s_mov_b32 s{rA+2}, {8*2048}
    s_mov_b32 s{rA+3}, 0x20000
    v_lshlrev_b32 v8, 11, v{vLane}
    v_mov_b32 v10, s{sTAGL}
    v_mov_b32 v11, s{sTAGH}
    s_lshl_b32 s{sT0}, s2, 3
    s_mov_b64 exec, 0xff
    buffer_store_dwordx2 v[10:11], v8, s[{rA}:{rA+3}], s{sT0} offen{SC}
    s_mov_b64 exec, -1""")

vG = 72
vEnt, vIdx, vRank = 28, 44, 52
o("K_poll_setup:")
if "sprio" in FL: o("    s_setprio 0")
o(f"""
    v_lshrrev_b32 v8, 4, v0
    v_lshlrev_b32 v8, 9, v8                    ; 4*(t>>4)*128
    s_lshr_b32 s{sT0}, s{sBETA}, 4
    s_lshl_b32 s{sT0}, s{sT0}, 15
    s_and_b32 s{sT1}, s{sBETA}, 15
    s_lshl_b32 s{sT1}, s{sT1}, 3
    s_add_u32 s{sGOFF}, s{sT0}, s{sT1}
    s_mov_b32 s{sSPIN}, 0
    v_mov_b32 v9, 0xff000000
K_poll:
    buffer_load_dwordx2 v[{vG}:{vG+1}], v8, s[{rOFF}:{rOFF+3}], s{sGOFF} offen{SC}
    buffer_load_dwordx2 v[{vG+2}:{vG+3}], v8, s[{rOFF}:{rOFF+3}], s{sGOFF} offen offset:128{SC}
    buffer_load_dwordx2 v[{vG+4}:{vG+5}], v8, s[{rOFF}:{rOFF+3}], s{sGOFF} offen offset:256{SC}
    buffer_load_dwordx2 v[{vG+6}:{vG+7}], v8, s[{rOFF}:{rOFF+3}], s{sGOFF} offen offset:384{SC}
    s_add_u32 s{sSPIN}, s{sSPIN}, 1
    s_waitcnt vmcnt(0)""")
def tagcheck(d0s, d1s, mask):
    o(f"    v_xor_b32 v{vTmp}, s{sTAGL}, v{d0s[0]}")
    o(f"    v_xor_b32 v{vTmp+1}, s{sTAGL}, v{d0s[1]}")
    o(f"    v_xor_b32 v{vTmp+2}, s{sTAGL}, v{d0s[2]}")
    o(f"    v_xor_b32 v{vTmp+3}, s{sTAGL}, v{d0s[3]}")
    o(f"    v_or3_b32 v{vTmp}, v{vTmp}, v{vTmp+1}, v{vTmp+2}")
    o(f"    v_or_b32 v{vTmp}, v{vTmp}, v{vTmp+3}")
    o(f"    v_and_b32 v{vTmp}, v{mask}, v{vTmp}")
    o(f"    v_xor_b32 v{vTmp+1}, s{sTAGH}, v{d1s[0]}")
    o(f"    v_xor_b32 v{vTmp+2}, s{sTAGH}, v{d1s[1]}")
    o(f"    v_xor_b32 v{vTmp+3}, s{sTAGH}, v{d1s[2]}")
    o(f"    v_xor_b32 v{vTmp+4}, s{sTAGH}, v{d1s[3]}")
    o(f"    v_or3_b32 v{vTmp}, v{vTmp}, v{vTmp+1}, v{vTmp+2}")
    o(f"    v_or3_b32 v{vTmp}, v{vTmp}, v{vTmp+3}, v{vTmp+4}")
    o(f"    v_cmp_ne_u32 vcc, 0, v{vTmp}")
tagcheck([vG, vG+2, vG+4, vG+6], [vG+1, vG+3, vG+5, vG+7], 9)
o(f"""    s_cbranch_vccz K_poll_ok
    s_cmp_ge_u32 s{sSPIN}, {SPIN_MAX}
    s_cbranch_scc1 K_poll_fail
    s_sleep {SLEEP}
    s_branch K_poll
K_poll_fail:""")
for r in range(4): o(f"    v_mov_b32 v{vG+2*r}, 0")
o("K_poll_ok:")
stamp(8)
stampc(18)
vCnt = 80
o(f"""    s_mov_b32 s{sSO}, 0
    s_mov_b32 s{sSO+1}, {CH*8}
    s_mov_b32 s{sSO+2}, {2*CH*8}
    s_mov_b32 s{sSO+3}, {3*CH*8}""")
for r in range(4):
    T = vG + 2*r
    o(f"""    v_bfe_u32 v{vCnt+r}, v{T}, 12, 12          ; count
    v_and_b32 v{vCnt+4+r}, 0xfff, v{T}
    v_add_u32 v{vCnt+4+r}, v{vCnt+4+r}, v{vJ}
    v_cmp_gt_u32 s[{sM+4*r}:{sM+4*r+1}], v{vCnt+r}, v{vJ}
    v_lshl_add_u32 v{vCnt+4+r}, v{vCnt+4+r}, 3, v{vSeg}""")
for r in range(4):
    o(f"""    s_mov_b64 exec, s[{sM+4*r}:{sM+4*r+1}]
    buffer_load_dwordx2 v[{vEnt+4*r}:{vEnt+4*r+1}], v{vCnt+4+r}, s[{rCH}:{rCH+3}], s{sSO+r} offen{SCE}""")
o(f"""    s_mov_b64 exec, -1
    v_max3_u32 v{vTmp}, v{vCnt}, v{vCnt+1}, v{vCnt+2}
    v_max_u32 v{vTmp}, v{vTmp}, v{vCnt+3}
    v_cmp_lt_u32 vcc, 16, v{vTmp}
    s_mov_b64 s[{sBIG}:{sBIG+1}], vcc
    s_cbranch_vccz K_nok1""")
for r in range(4):
    o(f"""    v_cmp_gt_u32 s[{sM+4*r+2}:{sM+4*r+3}], v{vCnt+r}, v{vJ16}""")
o("    s_nop 1")
for r in range(4):
    o(f"""    s_mov_b64 exec, s[{sM+4*r+2}:{sM+4*r+3}]
    s_cbranch_execz K_nok1_{r}
    buffer_load_dwordx2 v[{vEnt+4*r+2}:{vEnt+4*r+3}], v{vCnt+4+r}, s[{rCH}:{rCH+3}], s{sSO+r} offen offset:128{SCE}
K_nok1_{r}:""")
o(f"""    s_mov_b64 exec, -1
    v_cmp_lt_u32 vcc, 32, v{vTmp}
    s_cbranch_vccz K_nok1
    v_mov_b32 v{vTmp}, 0
    ds_write_b32 v{vTmp}, v{vOne} offset:{LDS_FLG}
K_nok1:
    s_waitcnt vmcnt(0)""")
stamp(9)
def slots(ks): return [r*2+k for r in range(4) for k in ks]
def hist(es):
    for e in es:
        d0 = vEnt + 2*e
        o(f"    v_lshlrev_b32 v{vIdx+e}, 2, v{d0}")
        o(f"    v_subrev_u32 v{vIdx+e}, s{sSB4}, v{vIdx+e}")
        o(f"    v_and_b32 v{vIdx+e}, 0xfc, v{vIdx+e}")
        o(f"    s_mov_b64 exec, s[{sM+2*e}:{sM+2*e+1}]")
        o(f"    ds_add_rtn_u32 v{vRank+e}, v{vIdx+e}, v{vOne} offset:{LDS_CNT2}")
        o(f"    s_mov_b64 exec, -1")
hist(slots([0]))
o(f"    s_cmp_eq_u64 s[{sBIG}:{sBIG+1}], 0\n    s_cbranch_scc1 K_noh1")
hist(slots([1]))
o(f"""K_noh1:
    s_waitcnt lgkmcnt(0)
    s_barrier""")
stamp(10)
o(f"""    ds_read_b32 v{vInc}, v{vLane4} offset:{LDS_CNT2}
    v_mov_b32 v{vTmp}, 0
    ds_read_b32 v{vTmp+1}, v{vTmp} offset:{LDS_FLG}
    v_lshlrev_b32 v100, 5, v{vLane}
    v_mov_b32 v101, 0xff000000
    s_cmp_lg_u32 s3, 15
    s_cbranch_scc1 K_notf0
    s_add_u32 s{rB}, s{sWS}, {WS_TF:#x}
    s_addc_u32 s{rB+1}, s{sWS+1}, 0
    s_and_b32 s{rB+1}, s{rB+1}, 0xffff
    s_mov_b32 s{rB+2}, {8*2048}
    s_mov_b32 s{rB+3}, 0x20000
    s_and_b32 s{sT3}, s2, 7
    s_lshl_b32 s{sT3}, s{sT3}, 11
    s_mov_b32 s{sSPIN}, 0
    buffer_load_dwordx4 v[88:91], v100, s[{rB}:{rB+3}], s{sT3} offen{SC}
    buffer_load_dwordx4 v[92:95], v100, s[{rB}:{rB+3}], s{sT3} offen offset:16{SC}
K_notf0:""")
if PREF:
    o(f"""    ; pull this workgroup's share of the table into the L2 of its die (speed only)
    s_lshr_b32 s{sT0}, s2, 3
    s_mul_i32 s{sT0}, s{sT0}, {16*5*1024}
    s_mul_i32 s{sT1}, s3, {5*1024}
    s_add_u32 s{sT0}, s{sT0}, s{sT1}
    v_lshlrev_b32 v8, 4, v{vLane}""")
    for i in range(5):
        o(f"    buffer_load_dwordx4 v[100:103], v8, s[{rTABW}:{rTABW+3}], s{sT0} offen offset:{(i%4)*1024}{SC}" if i < 4 else
          f"    s_add_u32 s{sT0}, s{sT0}, 4096\n    buffer_load_dwordx4 v[100:103], v8, s[{rTABW}:{rTABW+3}], s{sT0} offen{SC}")
o(f"""    ; workgroup 0 records this launch's epoch (all workgroups have read the old one by now)
    s_or_b32 s{sT0}, s2, s3
    s_cmp_lg_u32 s{sT0}, 0
    s_cbranch_scc1 K_noep
    s_add_u32 s{rA}, s{sWS}, {WS_EP:#x}
    s_addc_u32 s{rA+1}, s{sWS+1}, 0
    s_and_b32 s{rA+1}, s{rA+1}, 0xffff
    s_mov_b32 s{rA+2}, 8
    s_mov_b32 s{rA+3}, 0x20000
    v_mov_b32 v8, s{sEP}
    v_mov_b32 v9, s{sEP+1}
    s_mov_b64 exec, 1
    buffer_store_dwordx2 v[8:9], v{vTmp}, s[{rA}:{rA+3}], 0 offen
    s_mov_b64 exec, -1
K_noep:
    s_waitcnt lgkmcnt(0)
    v_add_u32 v{vInc}, 3, v{vInc}
    v_readfirstlane_b32 s{sT0}, v{vTmp+1}
    v_lshrrev_b32 v{vInc}, 2, v{vInc}
    v_mov_b32 v{vBase}, v{vInc}""")
fill = [f"v_and_b32 v{vEnt+2*e}, 0xffffff00, v{vEnt+2*e}" for e in range(8)] + \
       [f"s_lshl_b32 s{sT2}, 1, s3", f"v_mov_b32 v{vTmp+2}, s{sT2}"]
wave_scan(vInc, fill)
vPos = 80
o(f"""    v_sub_u32 v{vTmp+3}, v{vInc}, v{vBase}
    v_lshlrev_b32 v{vBase}, 2, v{vTmp+3}
    v_readlane_b32 s{sQ}, v{vInc}, 63
    s_cmp_lg_u32 s{sT0}, 0
    s_cbranch_scc1 K_slow""")
for e in slots([0]): o(f"    ds_bpermute_b32 v{vPos+e}, v{vIdx+e}, v{vBase}")
o(f"""    s_cmp_gt_u32 s{sQ}, {CAPQ}
    s_cbranch_scc1 K_slow
    s_mul_i32 s{sQ0}, s{sQ}, s3
    s_lshr_b32 s{sQ0}, s{sQ0}, 4
    s_add_u32 s{sT0}, s3, 1
    s_mul_i32 s{sQ1}, s{sQ}, s{sT0}
    s_lshr_b32 s{sQ1}, s{sQ1}, 4
    v_cmp_ge_u32 vcc, s{sQ0}, v{vInc}
    s_bcnt1_i32_b64 s{sNODE}, vcc
    v_cmp_lt_u32 s[{rA}:{rA+1}], s{sQ0}, v{vInc}
    v_cmp_gt_u32 s[{rA+2}:{rA+3}], s{sQ1}, v{vTmp+3}
    v_cmp_gt_u32 vcc, v{vInc}, v{vTmp+3}
    v_readlane_b32 s{sBND}, v{vInc}, s{sNODE}
    s_and_b64 s[{rA}:{rA+1}], s[{rA}:{rA+1}], s[{rA+2}:{rA+3}]
    s_and_b64 s[{rA}:{rA+1}], s[{rA}:{rA+1}], vcc
    s_cmp_lt_u32 s{sQ0}, s{sQ1}
    s_cselect_b64 exec, s[{rA}:{rA+1}], 0
    ds_or_b32 v{vLane4}, v{vTmp+2} offset:{LDS_MSK}
    s_mov_b64 exec, -1
    s_waitcnt lgkmcnt(0)""")
def place(es, bperm):
    if bperm:
        for e in es: o(f"    ds_bpermute_b32 v{vPos+e}, v{vIdx+e}, v{vBase}")
        o("    s_waitcnt lgkmcnt(0)")
    for e in es: o(f"    v_add_lshl_u32 v{vPos+e}, v{vPos+e}, v{vRank+e}, 2")
    for e in es:
        d0 = vEnt + 2*e
        o(f"    s_mov_b64 exec, s[{sM+2*e}:{sM+2*e+1}]")
        o(f"    ds_write_b32 v{vPos+e}, v{d0} offset:{LDS_O}")
        o(f"    ds_write_b32 v{vPos+e}, v{d0+1} offset:{LDS_E}")
    o(f"    s_mov_b64 exec, -1")
place(slots([0]), False)
o(f"    s_cmp_eq_u64 s[{sBIG}:{sBIG+1}], 0\n    s_cbranch_scc1 K_nop1")
place(slots([1]), True)
PT = [int(x) for x in opt('pt', '4-7-9').split('-')]
NOPS = [int(x) for x in opt('nops', '').split('-') if x]
NOPPOS = int(opt('noppos', 0))
vA, vAn, vDen, vNum, vAA, vLA, vSL = 8, 9, 10, 12, 14, 15, 27
vO = 16
vE = [20, 28]
RING = int(opt('ring', 4))
vDr = [32, 36, 40, 44] if RING == 4 else [72 + 4*i for i in range(RING)]
vU, vAa, vP, vS_, vQ, vR = 48, 52, 56, 58, 62, 64
vF = 66
o(f"""K_nop1:
    s_mul_i32 s{sT0}, s{sNODE}, 272
    v_add_u32 v{vAA}, s{sT0}, v{vLane4}
    s_add_u32 s{sT1}, s{sNODE}, s3
    s_lshl_b32 s{sT1}, s{sT1}, 9
    v_add_u32 v{vSL}, s{sT1}, v{vLane4}
    s_lshl_b32 s{sT0}, s{sQ0}, 4
    v_mov_b32 v{vLA}, s{sT0}
    ds_read_b32 v{vA}, v{vAA} offset:{LDS_A}
    ds_read_b32 v{vAn}, v{vAA} offset:{LDS_A+272}
    s_min_u32 s{sSTOP}, s{sBND}, s{sQ1}
    s_sub_u32 s{sREM}, s{sSTOP}, s{sQ0}
    s_mov_b32 s{sC63}, 0x5f000000                ; 2^63
    s_mov_b32 s{sC63+1}, 0x5f000000
    s_mov_b32 s{sSEL}, 0x00003f80
    s_mov_b32 s{sIT}, 0
    v_mov_b64 v[{vDen}:{vDen+1}], 0
    v_mov_b64 v[{vNum}:{vNum+1}], 0
    s_cmp_lg_u32 s3, {99 if 'notf' in FL else 15}
    s_cbranch_scc1 K_notf
    s_branch K_tfchk
K_tfpoll:
    buffer_load_dwordx4 v[88:91], v100, s[{rB}:{rB+3}], s{sT3} offen{SC}
    buffer_load_dwordx4 v[92:95], v100, s[{rB}:{rB+3}], s{sT3} offen offset:16{SC}
K_tfchk:
    s_add_u32 s{sSPIN}, s{sSPIN}, 1
    s_waitcnt vmcnt(0)""")
tagcheck([88, 90, 92, 94], [89, 91, 93, 95], 101)
o(f"""    s_cbranch_vccz K_notf
    s_cmp_ge_u32 s{sSPIN}, {SPIN_MAX}
    s_cbranch_scc1 K_notf
    s_sleep 1
    s_branch K_tfpoll
K_notf:
    s_waitcnt lgkmcnt(0)
    s_barrier""")
stamp(11)
stampc(14)
o(f"""    s_cmp_ge_u32 s{sQ0}, s{sQ1}
    s_cbranch_scc1 K_main_done
    s_setprio 3""")
scr = [32, 36, 40, 44, 48, 52, 56] if RING > 4 else [vO, vU, vAa]
for j in range(RING-1): o(f"    ds_read_b128 v[{scr[j]}:{scr[j]+3}], v{vLA} offset:{LDS_O+16*j}")
o(f"    ds_read_b128 v[{vE[0]}:{vE[0]+3}], v{vLA} offset:{LDS_E}")
for j in range(RING-1):
    o(f"    s_waitcnt lgkmcnt({RING-1-j})")
    for i in range(4): o(f"    buffer_load_dword v{vDr[j]+i}, v{scr[j]+i}, s[{rTAB}:{rTAB+3}], 0 offen{SC}")
o(f"    ds_read_b128 v[{vO}:{vO+3}], v{vLA} offset:{LDS_O+16*(RING-1)}")
o(".p2align 3")
o("K_loop:")
for k in range(RING):
    e = vE[k%2]; en = vE[(k+1)%2]; Dk = vDr[k]; Dn = vDr[(k+RING-1)%RING]
    o(f"    s_waitcnt lgkmcnt(0)")
    o(f"    s_sub_u32 s{sREM}, s{sREM}, 1")
    for i in range(4):
        o(f"    buffer_load_dword v{Dn+i}, v{vO+i}, s[{rTAB}:{rTAB+3}], 0 offen{SC}")
    o(f"    ds_read_b128 v[{vO}:{vO+3}], v{vLA} offset:{LDS_O+16*(k+RING)}")
    o(f"    ds_read_b128 v[{en}:{en+3}], v{vLA} offset:{LDS_E+16*(k+1)}")
    o(f"    s_cbranch_scc1 K_h{k}")
    o(f"K_r{k}:")
    o(f"    s_waitcnt vmcnt({4*(RING-1)})")
    o(f"    v_pk_fma_f32 v[{vU}:{vU+1}], v[{e}:{e+1}], v[{vWc}:{vWc+1}], v[{vA}:{vA+1}] op_sel_hi:[1,0,0]")
    o(f"    v_pk_fma_f32 v[{vU+2}:{vU+3}], v[{e+2}:{e+3}], v[{vWc}:{vWc+1}], v[{vA}:{vA+1}] op_sel_hi:[1,0,0]")
    for i in range(4): o(f"    v_dot2c_f32_bf16 v{vU+i}, s{sSEL}, v{Dk+i}")
    if NOPS and NOPPOS == 1:
        for z in NOPS: o(f"    s_nop {z}")
    for i in range(4): o(f"    v_exp_f32_e64 v{vU+i}, v{vU+i} clamp")
    if NOPS and NOPPOS == 2:
        for z in NOPS: o(f"    s_nop {z}")
    o(f"    v_pk_fma_f32 v[{vAa}:{vAa+1}], v[{vU}:{vU+1}], s[{sC63}:{sC63+1}], 1.0 op_sel_hi:[1,0,0]")
    o(f"    v_pk_fma_f32 v[{vAa+2}:{vAa+3}], v[{vU+2}:{vU+3}], s[{sC63}:{sC63+1}], 1.0 op_sel_hi:[1,0,0]")
    if NOPS and NOPPOS == 0:
        for z in NOPS: o(f"    s_nop {z}")
    o(f"    v_pk_mul_f32 v[{vP}:{vP+1}], v[{vAa}:{vAa+1}], v[{vAa+2}:{vAa+3}]")
    o(f"    v_pk_add_f32 v[{vS_}:{vS_+1}], v[{vAa}:{vAa+1}], v[{vAa+2}:{vAa+3}]")
    o(f"    v_rcp_f32 v{vR}, v{vP}")
    o(f"    v_rcp_f32 v{vR+1}, v{vP+1}")
    o(f"    v_pk_mul_f32 v[{vQ}:{vQ+1}], v[{vAa+2}:{vAa+3}], v[{Dk}:{Dk+1}]")
    o(f"    v_pk_fma_f32 v[{vQ}:{vQ+1}], v[{vAa}:{vAa+1}], v[{Dk+2}:{Dk+3}], v[{vQ}:{vQ+1}]")
    o(f"    v_pk_fma_f32 v[{vDen}:{vDen+1}], v[{vS_}:{vS_+1}], v[{vR}:{vR+1}], v[{vDen}:{vDen+1}]")
    o(f"    v_pk_fma_f32 v[{vNum}:{vNum+1}], v[{vQ}:{vQ+1}], v[{vR}:{vR+1}], v[{vNum}:{vNum+1}]")
o(f"""    v_add_u32 v{vLA}, {16*RING}, v{vLA}
    s_add_u32 s{sIT}, s{sIT}, 1
    s_cmp_eq_u32 s{sIT}, {PT[0]}
    s_cbranch_scc1 K_p2
    s_cmp_eq_u32 s{sIT}, {PT[1]}
    s_cbranch_scc1 K_p1
    s_cmp_eq_u32 s{sIT}, {PT[2]}
    s_cbranch_scc0 K_loop
    s_setprio 0
    s_branch K_loop
K_p2:
    s_setprio 2
    s_branch K_loop
K_p1:
    s_setprio 1
    s_branch K_loop""")
for k in range(RING):
    o(f"""K_h{k}:
    v_add_f32 v{vF}, v{vDen}, v{vDen+1}
    v_add_f32 v{vF+1}, v{vNum}, v{vNum+1}
    s_add_u32 s{sNODE}, s{sNODE}, 1
    ds_write_b32 v{vSL}, v{vF} offset:{LDS_SL}
    ds_write_b32 v{vSL}, v{vF+1} offset:{LDS_SL+256}
    s_cmp_ge_u32 s{sSTOP}, s{sQ1}
    s_cbranch_scc1 K_main_done
    v_readlane_b32 s{sBND}, v{vInc}, s{sNODE}
    v_mov_b64 v[{vDen}:{vDen+1}], 0
    v_mov_b64 v[{vNum}:{vNum+1}], 0
    v_mov_b32 v{vA}, v{vAn}
    v_add_u32 v{vAA}, 272, v{vAA}
    v_add_u32 v{vSL}, 512, v{vSL}
    s_cmp_eq_u32 s{sBND}, s{sSTOP}
    s_cbranch_scc1 K_hs{k}
    ds_read_b32 v{vAn}, v{vAA} offset:{LDS_A+272}
K_hr{k}:
    s_mov_b32 s{sT0}, s{sSTOP}
    s_min_u32 s{sSTOP}, s{sBND}, s{sQ1}
    s_sub_u32 s{sREM}, s{sSTOP}, s{sT0}
    s_sub_u32 s{sREM}, s{sREM}, 1
    s_branch K_r{k}
K_hs{k}:
    s_add_u32 s{sNODE}, s{sNODE}, 1
    v_readlane_b32 s{sBND}, v{vInc}, s{sNODE}
    v_add_u32 v{vAA}, 272, v{vAA}
    v_add_u32 v{vSL}, 512, v{vSL}
    s_nop 1
    s_cmp_eq_u32 s{sBND}, s{sSTOP}
    s_cbranch_scc1 K_hs{k}
    ds_read_b32 v{vA}, v{vAA} offset:{LDS_A}
    ds_read_b32 v{vAn}, v{vAA} offset:{LDS_A+272}
    s_waitcnt lgkmcnt(0)
    s_branch K_hr{k}""")

sP, sCNT, sPOS, sN, sEN = 4, 5, 6, 7, 8
o(f"""K_slow:
    s_add_u32 s{rB}, s{sWS}, {WS_TF:#x}
    s_addc_u32 s{rB+1}, s{sWS+1}, 0
    s_and_b32 s{rB+1}, s{rB+1}, 0xffff
    s_mov_b32 s{rB+2}, {8*2048}
    s_mov_b32 s{rB+3}, 0x20000
    s_and_b32 s{sT3}, s2, 7
    s_lshl_b32 s{sT3}, s{sT3}, 11
    v_lshlrev_b32 v100, 5, v{vLane}
    v_mov_b32 v101, 0xff000000
    s_mov_b32 s{sSPIN}, 0
K_s_tf:
    buffer_load_dwordx4 v[88:91], v100, s[{rB}:{rB+3}], s{sT3} offen{SC}
    buffer_load_dwordx4 v[92:95], v100, s[{rB}:{rB+3}], s{sT3} offen offset:16{SC}
    s_add_u32 s{sSPIN}, s{sSPIN}, 1
    s_waitcnt vmcnt(0)""")
tagcheck([88, 90, 92, 94], [89, 91, 93, 95], 101)
o(f"""    s_cbranch_vccz K_s_go
    s_cmp_ge_u32 s{sSPIN}, {SPIN_MAX}
    s_cbranch_scc1 K_s_go
    s_sleep 4
    s_branch K_s_tf
K_s_go:
    s_mov_b32 s{sC63}, 0x5f000000
    s_mov_b32 s{sSEL}, 0x00003f80
    s_mov_b32 s{sN}, s3
    v_mov_b32 v{vTmp}, 0
K_s_node:
    s_mov_b32 s{sT3}, 1
    s_cmp_ge_u32 s{sN}, s{sNB}
    s_cbranch_scc1 K_main_done2
    s_mul_i32 s{sT0}, s{sN}, 272
    v_add_u32 v{vAA}, s{sT0}, v{vLane4}
    ds_read_b32 v{vA}, v{vAA} offset:{LDS_A}
    v_mov_b32 v{vDen}, 0
    v_mov_b32 v{vNum}, 0
    s_mov_b32 s{sP}, 0
    s_waitcnt lgkmcnt(0)
K_s_prod:
    s_lshl_b32 s{sT0}, s{sP}, 7
    s_add_u32 s{sT0}, s{sT0}, s{sGOFF}
    buffer_load_dword v{vU}, v{vTmp}, s[{rOFF}:{rOFF+3}], s{sT0} offen{SC}
    s_waitcnt vmcnt(0)
    v_readfirstlane_b32 s{sCNT}, v{vU}
    s_nop 3
    s_and_b32 s{sPOS}, s{sCNT}, 0xfff
    s_bfe_u32 s{sCNT}, s{sCNT}, 0xc000c
    s_mul_i32 s{sT0}, s{sP}, {CH}
    s_add_u32 s{sPOS}, s{sPOS}, s{sT0}
    s_lshl_b32 s{sPOS}, s{sPOS}, 3
K_s_ent:
    s_cmp_eq_u32 s{sCNT}, 0
    s_cbranch_scc1 K_s_prod_next
    buffer_load_dwordx2 v[{vU}:{vU+1}], v{vTmp}, s[{rCH}:{rCH+3}], s{sPOS} offen{SC}
    s_waitcnt vmcnt(0)
    v_readfirstlane_b32 s{sEN}, v{vU}
    s_nop 3
    s_sub_u32 s{sT0}, s{sEN}, s{sSB}
    s_and_b32 s{sT0}, s{sT0}, 63
    s_cmp_lg_u32 s{sT0}, s{sN}
    s_cbranch_scc1 K_s_ent_next
    s_and_b32 s{sT0}, s{sEN}, 0xffffff00
    buffer_load_dword v{vU+2}, off, s[{rTAB}:{rTAB+3}], s{sT0}{SC}
    v_fma_f32 v{vU}, v{vU+1}, v{vWc}, v{vA}
    s_waitcnt vmcnt(0)
    v_dot2c_f32_bf16 v{vU}, s{sSEL}, v{vU+2}
    s_nop 2
    v_exp_f32_e64 v{vU}, v{vU} clamp
    s_nop 0
    v_fma_f32 v{vU}, v{vU}, s{sC63}, 1.0
    v_rcp_f32 v{vU}, v{vU}
    s_nop 0
    v_add_f32 v{vDen}, v{vDen}, v{vU}
    v_fmac_f32 v{vNum}, v{vU}, v{vU+2}
K_s_ent_next:
    s_add_u32 s{sPOS}, s{sPOS}, 8
    s_sub_u32 s{sCNT}, s{sCNT}, 1
    s_branch K_s_ent
K_s_prod_next:
    s_add_u32 s{sP}, s{sP}, 1
    s_cmp_lt_u32 s{sP}, {NB}
    s_cbranch_scc1 K_s_prod
    s_lshl_b32 s{sT0}, s{sN}, 9
    v_add_u32 v{vF+2}, s{sT0}, v{vLane4}
    ds_write_b32 v{vF+2}, v{vDen} offset:{LDS_SL}
    ds_write_b32 v{vF+2}, v{vNum} offset:{LDS_SL+256}
    s_lshl_b32 s{sT0}, s{sN}, 2
    v_mov_b32 v{vF+3}, s{sT0}
    s_mov_b64 exec, 1
    ds_write_b32 v{vF+3}, v{vOne} offset:{LDS_MSK}
    s_mov_b64 exec, -1
    s_add_u32 s{sN}, s{sN}, 16
    s_branch K_s_node""")

eN, eC, eM, eW, eAd = 8, 9, 10, 11, 12
eDen, eNum, eT0, eT1, eU = 16, 20, 28, 32, 36
OUTF = (" " + opt("outf", "").replace("+", " ")).rstrip()
def slot_addrs():
    o(f"""    v_ffbl_b32 v{eW}, v{eM}
    v_cmp_ne_u32 vcc, 0, v{eM}
    v_lshl_add_u32 v{eW}, v{eW}, 9, v14
    v_add_u32 v33, -1, v{eM}
    v_cndmask_b32 v15, v35, v{eW}, vcc
    v_and_b32 v{eM}, v{eM}, v33
    v_ffbl_b32 v{eW}, v{eM}
    v_cmp_ne_u32 vcc, 0, v{eM}
    v_lshl_add_u32 v{eW}, v{eW}, 9, v14
    v_add_u32 v33, -1, v{eM}
    v_cndmask_b32 v34, v35, v{eW}, vcc
    v_and_b32 v{eM}, v{eM}, v33""")
o(f"""K_main_done:
    s_mov_b32 s{sT3}, 0
K_main_done2:
    s_setprio 0
    s_waitcnt vmcnt(0) lgkmcnt(0)
    s_cmp_ge_u32 s3, 10
    s_cbranch_scc1 K_e_wait
    v_lshrrev_b32 v{eN}, 4, v0
    v_and_b32 v{eC}, 15, v0
    v_lshlrev_b32 v{eAd}, 2, v{eN}
    ds_read_b32 v{eM}, v{eAd} offset:{LDS_MSK}
    v_mul_u32_u24 v13, 272, v{eN}
    v_lshl_add_u32 v13, v{eC}, 4, v13
    v_add_u32 v13, {LDS_U}, v13
    ds_read_b128 v[{eU}:{eU+3}], v13
    v_lshlrev_b32 v{eT0}, 16, v{vXe}
    v_and_b32 v{eT0+1}, 0xffff0000, v{vXe}
    v_lshlrev_b32 v{eT0+2}, 16, v{vXe+1}
    v_and_b32 v{eT0+3}, 0xffff0000, v{vXe+1}
    v_lshlrev_b32 v14, 4, v{eC}
    v_add_u32 v35, {LDS_ZS}, v14
    v_lshl_add_u32 v14, v{eN}, 9, v14
    v_add_u32 v14, {LDS_SL}, v14
    v_mov_b32 v13, v{eAd}
    v_add_u32 v{eAd}, s{sSB}, v{eN}
    v_lshlrev_b32 v{eAd}, 7, v{eAd}
    v_lshl_add_u32 v{eAd}, v{eC}, 3, v{eAd}
    s_waitcnt lgkmcnt(0)""")
slot_addrs()
o("K_e_wait:")
stamp(12)
stampc(15)
o(f"""    s_barrier
    s_cmp_ge_u32 s3, 10
    s_cbranch_scc1 K_exit
    s_cmp_eq_u32 s{sT3}, 0
    s_cbranch_scc1 K_e_fast
    ds_read_b32 v{eM}, v13 offset:{LDS_MSK}
    s_waitcnt lgkmcnt(0)""")
slot_addrs()
o(f"""K_e_fast:
    ds_read_b128 v[{eDen}:{eDen+3}], v15
    ds_read_b128 v[{eNum}:{eNum+3}], v15 offset:256
    ds_read_b128 v[40:43], v34
    ds_read_b128 v[44:47], v34 offset:256
    s_waitcnt lgkmcnt(0)
K_e_loop:
    v_pk_add_f32 v[{eDen}:{eDen+1}], v[{eDen}:{eDen+1}], v[40:41]
    v_pk_add_f32 v[{eDen+2}:{eDen+3}], v[{eDen+2}:{eDen+3}], v[42:43]
    v_pk_add_f32 v[{eNum}:{eNum+1}], v[{eNum}:{eNum+1}], v[44:45]
    v_pk_add_f32 v[{eNum+2}:{eNum+3}], v[{eNum+2}:{eNum+3}], v[46:47]
    v_cmp_ne_u32 vcc, 0, v{eM}
    s_cbranch_vccz K_e_end
    v_ffbl_b32 v{eW}, v{eM}
    v_lshl_add_u32 v{eW}, v{eW}, 9, v14
    v_add_u32 v33, -1, v{eM}
    v_cndmask_b32 v34, v35, v{eW}, vcc
    v_and_b32 v{eM}, v{eM}, v33
    ds_read_b128 v[40:43], v34
    ds_read_b128 v[44:47], v34 offset:256
    s_waitcnt lgkmcnt(0)
    s_branch K_e_loop
K_e_end:""")
for i in range(4): o(f"    v_add_f32 v{eDen+i}, 0x358637bd, v{eDen+i}")
for i in range(4): o(f"    v_rcp_f32 v{eDen+i}, v{eDen+i}")
o(f"    v_cmp_gt_u32 vcc, s{sNB}, v{eN}")
for i in range(4): o(f"    v_fma_f32 v{eU+i}, v{eNum+i}, v{eDen+i}, v{eU+i}")
for i in range(4): o(f"    v_max_f32 v{eU+i}, 0, v{eU+i}")
for i in range(4): o(f"    v_add_f32 v{eU+i}, v{eU+i}, v{eT0+i}")
o(f"""    v_cvt_pk_bf16_f32 v{eT1}, v{eU}, v{eU+1}
    v_cvt_pk_bf16_f32 v{eT1+1}, v{eU+2}, v{eU+3}
    s_and_saveexec_b64 s[{sSAVE}:{sSAVE+1}], vcc
    s_cbranch_execz K_exit
    buffer_store_dwordx2 v[{eT1}:{eT1+1}], v{eAd}, s[{rOUT}:{rOUT+3}], 0 offen{OUTF}
K_exit:""")
if STAMP:
    o("    s_mov_b64 exec, -1\n    s_waitcnt vmcnt(0)")
    stamp(13)
    stamp_flush()
o("K_done:\n    s_endpgm")
o(f""".section .rodata,"a"
.p2align 6
.amdhsa_kernel {NAME}
  .amdhsa_next_free_vgpr 128
  .amdhsa_next_free_sgpr 102
  .amdhsa_accum_offset 128
  .amdhsa_group_segment_fixed_size 0
  .amdhsa_kernarg_size 96
  .amdhsa_user_sgpr_count 2
  .amdhsa_user_sgpr_kernarg_segment_ptr 1
  .amdhsa_system_sgpr_workgroup_id_x 1
  .amdhsa_dx10_clamp 0
.end_amdhsa_kernel""")
print("\n".join(L))
```

```python
import sys
FL = set(sys.argv[1].split(',')) if len(sys.argv) > 1 else set()
LIGHT = "light" in FL
STAMP = "stamp" in FL or LIGHT
PREF = "nopref" not in FL
NAME = "standalone__edge_featured_mpnn_gatedgcn__graph_kernel"

L = []
def o(s=""): L.append(s)

N, D, E = 10000, 64, 640000
NB = 256
CH = E // NB
BMUL = 26843
WS_T = 0
T_BYTES = (N+1)*256
WS_O = 0x280000
O_BYTES = NB*NB*8
WS_C = 0x300000
C_BYTES = NB*CH*8
WS_EP = 0x7F0000
WS_TF = 0x7F1000
WS_STAMP = 0x800000
NLOG2E = 0xBFB8AA3B
WROW = 144
SPIN_MAX = 20000000
SC = " sc1"
def opt(name, default):
    for f in FL:
        if f.startswith(name + "="): return f.split("=")[1]
    return default
SLEEP = int(opt("sleep", 1))
SCW = " " + opt("stf", "sc1").replace("+", " ")
SCE = " " + opt("ldf", "sc1").replace("+", " ")

LDS_CNT2, LDS_MSK, LDS_FLG = 0, 256, 512
LDS_CNT1, LDS_BASE1 = 768, 1792
LDS_O = 2816
LDS_E = LDS_O + 12800
LDS_A = LDS_E + 12800
LDS_SL = LDS_A + 48*272
LDS_U = LDS_SL + 56*512
LDS_W2 = LDS_U + 48*272
LDS_W1 = LDS_W2 + 2*64*WROW
LDS_TOT = LDS_W1 + 2*64*WROW
LDS_SORT = LDS_SL
CAPQ = 768
assert LDS_SORT + CH*8 + 16 < 65536

def srd(dst, base, nrec, w3=0x20000, stride=0, off=0):
    if off:
        o(f"    s_add_u32 s{dst}, s{base}, {off:#x}")
        o(f"    s_addc_u32 s{dst+1}, s{base+1}, 0")
        o(f"    s_and_b32 s{dst+1}, s{dst+1}, 0xffff")
    else:
        o(f"    s_mov_b32 s{dst}, s{base}")
        o(f"    s_and_b32 s{dst+1}, s{base+1}, 0xffff")
    if stride: o(f"    s_or_b32 s{dst+1}, s{dst+1}, {stride<<16:#x}")
    o(f"    s_mov_b32 s{dst+2}, {nrec:#x}")
    o(f"    s_mov_b32 s{dst+3}, {w3:#x}")

SCAN = ("row_shr:1 row_mask:0xf bank_mask:0xf bound_ctrl:1", "row_shr:2 row_mask:0xf bank_mask:0xf bound_ctrl:1",
        "row_shr:4 row_mask:0xf bank_mask:0xf bound_ctrl:1", "row_shr:8 row_mask:0xf bank_mask:0xf bound_ctrl:1",
        "row_bcast:15 row_mask:0xa bank_mask:0xf", "row_bcast:31 row_mask:0xc bank_mask:0xf")
def wave_scan(v, fill=()):
    fill = list(fill)
    for ctl in SCAN:
        if len(fill) >= 2:
            o("    " + fill.pop(0)); o("    " + fill.pop(0))
        else:
            o("    s_nop 1")
        o(f"    v_add_u32_dpp v{v}, v{v}, v{v} {ctl}")
    for f in fill: o("    " + f)

sX, sEA, sSRC, sDST = 4, 6, 8, 10
sWA, sWB, sWC, sWU = 12, 14, 16, 18
sWV, sOUT = 20, 22
sWS = 24
sEP = 26
rA, rB, rC = 28, 32, 36
rX, rOFF, rCH, rTAB, rTABW, rOUT = 40, 44, 48, 52, 56, 60
sSB, sNB, sSB4 = 64, 65, 66
sT0, sT1, sT2, sT3 = 67, 68, 69, 70
sM = 72
sV625 = 72
sBIG = 88
sSO = 90
sTAGL, sTAGH = 94, 95
sSAVE = 96
sSPIN = 98
sGOFF = 99
sBETA = 71
sSTMP = 100
sQ, sQ0, sQ1, sNODE, sBND, sSTOP, sREM = 4, 5, 6, 7, 8, 9, 10
sC63, sSEL, sIT = 12, 14, 15

vLane, vT16, vLane4, vJ, vJ16, vSeg, vG4 = 1, 3, 4, 5, 6, 7, 2
vXe, vWc = 24, 26
vOne = 60
vTmp = 62
vInc, vBase = 70, 71
vST = 127
vZ = 61

def stamp(idx, pre=False):
    if not STAMP: return
    if LIGHT and idx not in (0, 13): return
    if not pre:
        o(f"    s_memrealtime s[{sSTMP}:{sSTMP+1}]")
        o(f"    s_waitcnt lgkmcnt(0)")
    o(f"    v_writelane_b32 v{vST}, s{sSTMP}, {idx}")
def stampc(idx):
    if not STAMP or LIGHT: return
    o(f"    s_memtime s[{sSTMP}:{sSTMP+1}]")
    o(f"    s_waitcnt lgkmcnt(0)")
    o(f"    v_writelane_b32 v{vST}, s{sSTMP}, {idx}")
def stamp_flush():
    if not STAMP: return
    o(f"""    s_mov_b64 exec, -1
    s_lshl_b32 s{sT0}, s2, 4
    s_add_u32 s{sT0}, s{sT0}, s3
    s_lshl_b32 s{sT0}, s{sT0}, 7
    s_add_u32 s{rA}, s{sWS}, {WS_STAMP:#x}
    s_addc_u32 s{rA+1}, s{sWS+1}, 0
    s_and_b32 s{rA+1}, s{rA+1}, 0xffff
    s_mov_b32 s{rA+2}, 0x100000
    s_mov_b32 s{rA+3}, 0x20000
    s_mov_b32 exec_lo, -1
    s_mov_b32 exec_hi, 0
    buffer_store_dword v{vST}, v{vLane4}, s[{rA}:{rA+3}], s{sT0} offen
    s_mov_b64 exec, -1""")

o(f"; @launch grid=({NB},1,1) block=(1024,1,1) lds={LDS_TOT}")
o('.amdgcn_target "amdgcn-amd-amdhsa--gfx950"')
o(".text")
o(f".globl {NAME}\n.p2align 8\n.type {NAME},@function\n{NAME}:")
if STAMP: o(f"    s_memrealtime s[{sSTMP}:{sSTMP+1}]")
o(f"""    s_cmp_ge_u32 s2, {NB}
    s_cbranch_scc1 K_done
    s_load_dwordx8 s[4:11], s[0:1], 0
    s_load_dwordx2 s[{sWS}:{sWS+1}], s[0:1], 88
    s_load_dwordx8 s[12:19], s[0:1], 32        ; w_a, w_b, w_c, w_u
    s_load_dwordx4 s[20:23], s[0:1], 64        ; w_v, out
    v_and_b32 v{vLane}, 63, v0
    v_lshrrev_b32 v{vG4}, 6, v0
    v_lshlrev_b32 v{vT16}, 4, v0
    v_readfirstlane_b32 s3, v{vG4}
    v_lshlrev_b32 v{vLane4}, 2, v{vLane}
    v_mov_b32 v{vOne}, 1
    v_mov_b32 v{vZ}, 0
    v_mov_b32 v{vTmp}, 0
    v_lshlrev_b32 v{vTmp+1}, 2, v0
    v_lshlrev_b32 v8, 3, v0                   ; t*8
    v_cmp_gt_u32 vcc, {CH//4}, v0
    s_mul_i32 s{sSO}, s2, {CH*4}
    s_mul_i32 s{sSO+1}, s2, {CH*2}
    s_mov_b64 s[{sV625}:{sV625+1}], vcc
    s_cmp_ge_u32 s3, 7
    s_cbranch_scc1 K_nozero
    ds_write_b32 v{vTmp+1}, v{vTmp}
K_nozero:
    v_mov_b32 v40, {N*256}
    v_mov_b32 v41, {N*256}
    v_mov_b32 v42, {N*256}
    v_mov_b32 v43, {N*256}
    v_mov_b32 v44, 0
    v_mov_b32 v45, 0
    v_mov_b32 v46, 0
    v_mov_b32 v47, 0
    s_cmp_ge_u32 s3, 13
    s_cbranch_scc1 K_nofill
    v_cmp_gt_u32 vcc, 800, v0
    s_and_saveexec_b64 s[{sSAVE}:{sSAVE+1}], vcc
    ds_write_b128 v{vT16}, v[40:43] offset:{LDS_O}
    ds_write_b128 v{vT16}, v[44:47] offset:{LDS_E}
    s_mov_b64 exec, s[{sSAVE}:{sSAVE+1}]
K_nofill:
    v_and_b32 v{vJ}, 15, v{vLane}
    v_lshrrev_b32 v{vG4}, 4, v{vLane}         ; g
    s_cmp_ge_u32 s3, 10
    s_cbranch_scc1 K_tab_start
    s_waitcnt lgkmcnt(0)""")
stamp(0, pre=True)
srd(rA, sDST, E*4)
o(f"""    s_mov_b64 exec, s[{sV625}:{sV625+1}]
    buffer_load_dwordx4 v[32:35], v{vT16}, s[{rA}:{rA+3}], s{sSO} offen
    s_mov_b64 exec, -1""")
srd(rB, sSRC, E*4); srd(rC, sEA, E*2); srd(rOUT, sWS, 8, off=WS_EP)
o(f"""    s_barrier
    s_mov_b64 exec, s[{sV625}:{sV625+1}]
    buffer_load_dwordx4 v[36:39], v{vT16}, s[{rB}:{rB+3}], s{sSO} offen       ; src
    buffer_load_dwordx2 v[40:41], v8, s[{rC}:{rC+3}], s{sSO+1} offen          ; e
    s_mov_b64 exec, -1
    buffer_load_dwordx2 v[10:11], v{vZ}, s[{rOUT}:{rOUT+3}], 0 offen""")
def lds_signal(off):
    o(f"""    s_mov_b64 exec, 1
    ds_add_u32 v{vZ}, v{vOne} offset:{off}
    s_mov_b64 exec, -1""")
def lds_wait(off, cnt, tag):
    o(f"""    s_mov_b32 s{sSPIN}, 0
K_w{tag}:
    ds_read_b32 v{vTmp}, v{vZ} offset:{off}
    s_add_u32 s{sSPIN}, s{sSPIN}, 1
    s_waitcnt lgkmcnt(0)
    v_readfirstlane_b32 s{sT1}, v{vTmp}
    s_cmp_ge_u32 s{sSPIN}, {SPIN_MAX}
    s_cbranch_scc1 K_wd{tag}
    s_cmp_lt_u32 s{sT1}, {cnt}
    s_cbranch_scc1 K_w{tag}
K_wd{tag}:""")
def common_consts():
    o(f"""    ; bucket of this workgroup: consecutive buckets on one die (speed only); node range [start(b), start(b+1))
    s_and_b32 s{sBETA}, s2, 7
    s_lshl_b32 s{sBETA}, s{sBETA}, 5
    s_lshr_b32 s{sT0}, s2, 3
    s_or_b32 s{sBETA}, s{sBETA}, s{sT0}
    s_mul_i32 s{sSB}, s{sBETA}, 40000
    s_lshr_b32 s{sSB}, s{sSB}, 10
1:
    s_mul_i32 s{sT0}, s{sSB}, {BMUL}
    s_lshr_b32 s{sT0}, s{sT0}, 20
    s_cmp_ge_u32 s{sT0}, s{sBETA}
    s_cbranch_scc1 2f
    s_add_u32 s{sSB}, s{sSB}, 1
    s_branch 1b
2:
    s_add_u32 s{sT1}, s{sBETA}, 1
    s_mul_i32 s{sNB}, s{sT1}, 40000
    s_lshr_b32 s{sNB}, s{sNB}, 10
3:
    s_mul_i32 s{sT0}, s{sNB}, {BMUL}
    s_lshr_b32 s{sT0}, s{sT0}, 20
    s_cmp_ge_u32 s{sT0}, s{sT1}
    s_cbranch_scc1 4f
    s_add_u32 s{sNB}, s{sNB}, 1
    s_branch 3b
4:
    s_min_u32 s{sNB}, s{sNB}, {N}
    s_sub_u32 s{sNB}, s{sNB}, s{sSB}
    s_lshl_b32 s{sSB4}, s{sSB}, 2
    v_add_u32 v{vJ16}, 16, v{vJ}
    v_lshrrev_b32 v{vTmp}, 4, v0              ; t>>4
    v_mul_u32_u24 v{vSeg}, {4*CH*8}, v{vTmp}
    v_lshlrev_b32 v{vTmp+7}, 1, v{vLane}""")
    srd(rX, sX, N*D*2)
    srd(rC, sWC, D*2)
    srd(rOFF, sWS, O_BYTES, off=WS_O)
    srd(rCH, sWS, C_BYTES, off=WS_C)
    srd(rTAB, sWS, T_BYTES, w3=0x00800000, stride=4, off=WS_T)
    srd(rTABW, sWS, T_BYTES, off=WS_T)
    srd(rOUT, sOUT, N*D*2)
common_consts()
o(f"""    ; epilogue x address
    v_add_u32 v{vTmp+6}, s{sSB}, v{vTmp}
    v_lshlrev_b32 v{vTmp+6}, 7, v{vTmp+6}
    v_lshl_add_u32 v{vTmp+6}, v{vJ}, 3, v{vTmp+6}
    s_mov_b64 exec, s[{sV625}:{sV625+1}]
    s_waitcnt vmcnt(3)""")
for i in range(4): o(f"    v_mul_u32_u24 v{44+i}, {BMUL}, v{32+i}")
for i in range(4): o(f"    v_lshrrev_b32 v{44+i}, 18, v{44+i}")
for i in range(4): o(f"    v_and_b32 v{44+i}, 0x3fc, v{44+i}")
for i in range(4): o(f"    ds_add_rtn_u32 v{48+i}, v{44+i}, v{vOne} offset:{LDS_CNT1}")
for i in range(4): o(f"    v_and_b32 v{32+i}, 63, v{32+i}")
o("    s_mov_b64 exec, -1")
stamp(1)
o("    s_waitcnt lgkmcnt(0)")
lds_signal(LDS_FLG+16)
o(f"""    s_cmp_lg_u32 s3, 0
    s_cbranch_scc1 K_noscan""")
lds_wait(LDS_FLG+16, 10, "h")
stamp(2)
o(f"""    ds_read_b128 v[72:75], v{vT16} offset:{LDS_CNT1}
    s_waitcnt lgkmcnt(0)
    v_add_u32 v76, v72, v73
    v_add_u32 v77, v76, v74
    v_add_u32 v78, v77, v75
    v_mov_b32 v79, v78""")
wave_scan(79)
o(f"""    v_sub_u32 v80, v79, v78
    v_add_u32 v81, v80, v72
    v_add_u32 v82, v80, v76
    v_add_u32 v83, v80, v77
    ds_write_b128 v{vT16}, v[80:83] offset:{LDS_BASE1}
    s_waitcnt lgkmcnt(0)""")
lds_signal(LDS_FLG+20)
o("K_noscan:")
lds_wait(LDS_FLG+20, 1, "b")
stamp(3)
o(f"    s_mov_b64 exec, s[{sV625}:{sV625+1}]")
for i in range(4): o(f"    ds_read_b32 v{12+i}, v{44+i} offset:{LDS_BASE1}")
o("    s_waitcnt vmcnt(0)")
for i in range(4): o(f"    v_lshl_or_b32 v{52+2*i}, v{36+i}, 8, v{32+i}")
o(f"""    v_lshlrev_b32 v53, 16, v40
    v_and_b32 v55, 0xffff0000, v40
    v_lshlrev_b32 v57, 16, v41
    v_and_b32 v59, 0xffff0000, v41
    s_waitcnt lgkmcnt(0)""")
for i in range(4): o(f"    v_add_lshl_u32 v{40+i}, v{12+i}, v{48+i}, 3")
for i in range(4): o(f"    ds_write_b64 v{40+i}, v[{52+2*i}:{53+2*i}] offset:{LDS_SORT}")
o(f"""    s_mov_b64 exec, -1
    v_add_u32 v8, {640*16}, v{vT16}
    v_cmp_gt_u32 vcc, {CH*8//16 - 640}, v0
    s_mul_i32 s{sT0}, s2, {CH*8}
    s_mov_b64 s[{sSAVE}:{sSAVE+1}], vcc
    v_readfirstlane_b32 s{sEP}, v10
    v_readfirstlane_b32 s{sEP+1}, v11
    s_waitcnt lgkmcnt(0)""")
lds_signal(LDS_FLG+24)
lds_wait(LDS_FLG+24, 10, "s")
stamp(4)
o(f"""    ds_read_b128 v[32:35], v{vT16} offset:{LDS_SORT}
    s_mov_b64 exec, s[{sSAVE}:{sSAVE+1}]
    ds_read_b128 v[36:39], v8 offset:{LDS_SORT}
    s_mov_b64 exec, -1
    s_waitcnt lgkmcnt(0)
    buffer_store_dwordx4 v[32:35], v{vT16}, s[{rCH}:{rCH+3}], s{sT0} offen{SCW}
    s_mov_b64 exec, s[{sSAVE}:{sSAVE+1}]
    buffer_store_dwordx4 v[36:39], v8, s[{rCH}:{rCH+3}], s{sT0} offen{SCW}
    s_mov_b64 exec, -1
    buffer_load_dwordx2 v[{vXe}:{vXe+1}], v{vTmp+6}, s[{rX}:{rX+3}], 0 offen
    buffer_load_ushort v{vWc}, v{vTmp+7}, s[{rC}:{rC+3}], 0 offen""")
stamp(5)
def tags(inc=True):
    if inc: o(f"""    ; this launch's epoch
    s_add_u32 s{sEP}, s{sEP}, 1
    s_addc_u32 s{sEP+1}, s{sEP+1}, 0""")
    o(f"""    ; this launch's tag
    s_and_b32 s{sTAGL}, s{sEP}, 0xff
    s_lshl_b32 s{sTAGL}, s{sTAGL}, 24
    s_lshr_b64 s[{sSAVE}:{sSAVE+1}], s[{sEP}:{sEP+1}], 8
    s_mov_b32 s{sTAGH}, s{sSAVE}""")
tags()
o(f"""    ; granule of bucket j (thread j < 256) lives at (j>>4)*32768 + p*128 + (j&15)*8
    v_lshrrev_b32 v8, 4, v0
    v_lshlrev_b32 v86, 15, v8
    v_lshl_add_u32 v86, v{vJ}, 3, v86
    v_and_b32 v9, 255, v0
    v_lshlrev_b32 v9, 2, v9
    ds_read_b32 v84, v9 offset:{LDS_BASE1}
    ds_read_b32 v85, v9 offset:{LDS_CNT1}
    s_waitcnt lgkmcnt(0)
    v_lshl_or_b32 v84, v85, 12, v84
    v_or_b32 v84, s{sTAGL}, v84
    v_mov_b32 v85, s{sTAGH}
    s_lshl_b32 s{sT0}, s2, 7                   ; p*128
    v_mov_b32 v12, s{sEP}
    v_mov_b32 v13, s{sEP+1}
    s_mov_b64 exec, 1
    ds_write_b64 v{vZ}, v[12:13] offset:{LDS_FLG+32}
    s_mov_b64 exec, -1
    s_waitcnt vmcnt(0) lgkmcnt(0)
    v_lshlrev_b32 v{vWc}, 16, v{vWc}
    v_mul_f32 v{vWc}, {NLOG2E:#x}, v{vWc}""")
stamp(6)
o(f"""    s_barrier""")
stamp(7)
o(f"""    s_cmp_ge_u32 s3, 4
    s_cbranch_scc1 K_poll_setup
    buffer_store_dwordx2 v[84:85], v86, s[{rOFF}:{rOFF+3}], s{sT0} offen{SC}
    s_branch K_poll_setup""")

vX1, vW1r, vW2r, vXf2 = 32, 72, 88, 16
o(f"""K_tab_start:
    s_sub_u32 s{sT0}, s3, 10
    s_lshr_b32 s{sT2}, s{sT0}, 1              ; tau
    s_and_b32 s{sT3}, s{sT0}, 1               ; half
    s_lshl_b32 s{sT0}, s{sT2}, 4              ; 16*tau
    s_mul_i32 s{sT1}, s2, 40
    s_add_u32 s{sT1}, s{sT1}, s{sT0}
    v_add_u32 v9, s{sT1}, v{vJ}
    v_lshlrev_b32 v10, 7, v9
    v_lshl_add_u32 v10, v{vG4}, 4, v10
    v_subrev_u32 v11, 640, v0                 ; u = t - 640
    v_lshlrev_b32 v12, 4, v11
    v_add_u32 v13, {384*16}, v12
    s_waitcnt lgkmcnt(0)""")
stamp(0, pre=True)
srd(rA, sX, N*D*2); srd(rB, sWB, D*D*2); srd(rC, sWV, D*D*2)
o(f"""    buffer_load_dwordx4 v[{vX1}:{vX1+3}], v10, s[{rA}:{rA+3}], 0 offen
    buffer_load_dwordx4 v[{vX1+4}:{vX1+7}], v10, s[{rA}:{rA+3}], 0 offen offset:64
    buffer_load_dwordx4 v[{vW1r}:{vW1r+3}], v12, s[{rB}:{rB+3}], 0 offen
    buffer_load_dwordx4 v[{vW1r+4}:{vW1r+7}], v12, s[{rC}:{rC+3}], 0 offen
    s_cmp_ge_u32 s3, 12
    s_cbranch_scc1 K_tab_ld1
    buffer_load_dwordx4 v[{vW1r+8}:{vW1r+11}], v13, s[{rB}:{rB+3}], 0 offen
    buffer_load_dwordx4 v[{vW1r+12}:{vW1r+15}], v13, s[{rC}:{rC+3}], 0 offen
K_tab_ld1:
    s_barrier                                  ; B0
    v_mov_b32 v16, v12
    v_mov_b32 v17, v13""")
common_consts()
o(f"""    ; staging addresses of chunks u and u+384: (c>>3)*WROW + (c&7)*16
    v_lshrrev_b32 v14, 3, v11
    v_mul_u32_u24 v14, {WROW}, v14
    v_and_b32 v15, 7, v11
    v_lshl_add_u32 v14, v15, 4, v14
    v_add_u32 v14, {LDS_W2}, v14
    v_add_u32 v15, {48*WROW}, v14              ; chunk u+384
    v_bfe_u32 v{vTmp+5}, v{vLane}, 2, 2
    v_lshl_add_u32 v{vTmp+5}, v{vG4}, 3, v{vTmp+5}
    v_mul_u32_u24 v{vTmp+5}, {WROW}, v{vTmp+5}
    v_and_b32 v{vTmp+1}, 3, v{vLane}
    v_lshl_add_u32 v{vTmp+5}, v{vTmp+1}, 3, v{vTmp+5}
    s_lshl_b32 s{sT0}, s{sT3}, 6
    s_add_u32 s{sT0}, s{sT0}, {LDS_W2}
    v_add_u32 v{vTmp+5}, s{sT0}, v{vTmp+5}
    s_sub_u32 s{sT0}, s3, 10
    s_mov_b32 s{sT1}, {LDS_U - 3*2304}
    s_cmp_ge_u32 s{sT0}, 3
    s_cselect_b32 s{sT1}, s{sT1}, {LDS_A}
    s_mul_i32 s{sT0}, s{sT0}, 2304
    s_add_u32 s{sT0}, s{sT0}, s{sT1}
    v_mul_u32_u24 v10, 144, v{vJ}
    v_lshl_add_u32 v10, v{vG4}, 4, v10
    v_add_u32 v10, s{sT0}, v10
    v_lshrrev_b32 v11, 3, v{vLane}
    v_mul_u32_u24 v12, 144, v11
    v_and_b32 v13, 7, v{vLane}
    v_lshl_add_u32 v12, v13, 4, v12
    v_add_u32 v12, s{sT0}, v12
    s_lshl_b32 s{sT0}, s{sT2}, 4
    v_add_u32 v11, s{sT0}, v11
    v_lshlrev_b32 v9, 8, v11
    v_lshl_add_u32 v9, v13, 4, v9
    v_mov_b32 v8, 0
    s_waitcnt vmcnt(0)""")
stamp(1)
o(f"""    ds_write_b128 v14, v[{vW1r}:{vW1r+3}] offset:{128*WROW}
    ds_write_b128 v14, v[{vW1r+4}:{vW1r+7}] offset:{192*WROW}
    s_cmp_ge_u32 s3, 12
    s_cbranch_scc1 K_tab_st0
    ds_write_b128 v15, v[{vW1r+8}:{vW1r+11}] offset:{128*WROW}
    ds_write_b128 v15, v[{vW1r+12}:{vW1r+15}] offset:{192*WROW}
K_tab_st0:
    s_waitcnt lgkmcnt(0)
    s_mov_b64 exec, 1
    ds_add_u32 v8, v{vOne} offset:{LDS_FLG+4}
    s_mov_b64 exec, -1
    s_mov_b32 s{sSPIN}, 0
K_tab_meet:
    ds_read_b32 v{vTmp}, v8 offset:{LDS_FLG+4}
    s_add_u32 s{sSPIN}, s{sSPIN}, 1
    s_waitcnt lgkmcnt(0)
    v_readfirstlane_b32 s{sT0}, v{vTmp}
    s_cmp_ge_u32 s{sSPIN}, {SPIN_MAX}
    s_cbranch_scc1 K_tab_met
    s_cmp_lt_u32 s{sT0}, 6
    s_cbranch_scc1 K_tab_meet
K_tab_met:
    ; second weight pair, x fragments of the A/U tile tau, w_c, epoch""")
srd(rA, sWA, D*D*2); srd(rB, sWU, D*D*2)
o(f"""    buffer_load_dwordx4 v[120:123], v16, s[{rA}:{rA+3}], 0 offen
    buffer_load_dwordx4 v[52:55], v16, s[{rB}:{rB+3}], 0 offen
    s_cmp_ge_u32 s3, 12
    s_cbranch_scc1 K_tab_ld2
    buffer_load_dwordx4 v[56:59], v17, s[{rA}:{rA+3}], 0 offen
    buffer_load_dwordx4 v[28:31], v17, s[{rB}:{rB+3}], 0 offen
K_tab_ld2:
    s_lshl_b32 s{sT0}, s{sT2}, 4
    s_add_u32 s{sT0}, s{sT0}, s{sSB}
    v_add_u32 v{vTmp}, s{sT0}, v{vJ}
    v_lshlrev_b32 v{vTmp}, 7, v{vTmp}
    v_lshl_add_u32 v{vTmp}, v{vG4}, 4, v{vTmp}
    buffer_load_dwordx4 v[{vXf2}:{vXf2+3}], v{vTmp}, s[{rX}:{rX+3}], 0 offen
    buffer_load_dwordx4 v[{vXf2+4}:{vXf2+7}], v{vTmp}, s[{rX}:{rX+3}], 0 offen offset:64
    buffer_load_ushort v{vWc}, v{vTmp+7}, s[{rC}:{rC+3}], 0 offen""")
def frag(k, s_): return 72 + (k*2+s_)*4
for m in range(2):
    for jj in range(2):
        for s_ in range(2):
            f = frag(m*2+jj, s_)
            off = (2+m)*64*WROW + s_*32*WROW + jj*32
            o(f"    ds_read_b64_tr_b16 v[{f}:{f+1}], v{vTmp+5} offset:{off}")
            o(f"    ds_read_b64_tr_b16 v[{f+2}:{f+3}], v{vTmp+5} offset:{off+4*WROW}")
for k in range(4):
    a_ = 104 + k*4
    o(f"    s_waitcnt lgkmcnt({12-4*k})")
    o(f"    v_mfma_f32_16x16x32_bf16 v[{a_}:{a_+3}], v[{frag(k,0)}:{frag(k,0)+3}], v[{vX1}:{vX1+3}], 0")
    o(f"    v_mfma_f32_16x16x32_bf16 v[{a_}:{a_+3}], v[{frag(k,1)}:{frag(k,1)+3}], v[{vX1+4}:{vX1+7}], v[{a_}:{a_+3}]")
o(f"""    s_mov_b32 s{sT0}, {NLOG2E:#x}
    s_mov_b32 s{sT1}, 0xffff0000
    s_mov_b32 s{sSPIN}, 0x80000000
    s_mov_b32 s{sGOFF}, 0x7fffffff
    s_lshl_b32 s{sSO+1}, s{sT3}, 7
    s_mul_i32 s{sSO+2}, s2, {40*256}
    s_add_u32 s{sSO+2}, s{sSO+2}, s{sSO+1}
    s_nop 1""")
for jj in range(2):
    B = 104 + jj*4; Vv = 112 + jj*4
    t = 40
    for i in range(4): o(f"    v_mul_f32 v{B+i}, s{sT0}, v{B+i}")
    o(f"    v_cvt_pk_bf16_f32 v{t}, v{B}, v{B+1}")
    o(f"    v_cvt_pk_bf16_f32 v{t+1}, v{B+2}, v{B+3}")
    o(f"    v_and_b32 v{B}, 0xffff, v{t}")
    o(f"    v_lshrrev_b32 v{B+1}, 16, v{t}")
    o(f"    v_and_b32 v{B+2}, 0xffff, v{t+1}")
    o(f"    v_lshrrev_b32 v{B+3}, 16, v{t+1}")
    T = 44 + jj*4
    for i in range(4): o(f"    v_and_b32 v{T+i}, s{sGOFF}, v{Vv+i}")
    for i in range(4): o(f"    v_add_u32 v{T+i}, 0x8000, v{T+i}")
    for i in range(4): o(f"    v_sub_u32_e64 v{T+i}, v{T+i}, v{B+i} clamp")
    for i in range(4): o(f"    v_and_or_b32 v{T+i}, v{T+i}, s{sT1}, v{B+i}")
    for i in range(4): o(f"    v_and_or_b32 v{T+i}, v{Vv+i}, s{sSPIN}, v{T+i}")
    o(f"    ds_write_b128 v10, v[{T}:{T+3}] offset:{jj*64}")
o(f"""    s_waitcnt lgkmcnt(0)
    ds_read_b128 v[44:47], v12
    ds_read_b128 v[48:51], v12 offset:{8*144}
    v_mov_b32 v{vTmp}, 0x40000000
    s_cmp_ge_u32 s2, 250
    s_cselect_b32 s{sT0}, 0, 40
    s_cselect_b32 s{sT1}, 0, 32
    v_cmp_gt_u32 vcc, s{sT0}, v11
    s_nop 1
    v_cndmask_b32 v{vTmp+1}, v{vTmp}, v9, vcc
    v_cmp_gt_u32 vcc, s{sT1}, v11
    s_nop 1
    v_cndmask_b32 v{vTmp+2}, v{vTmp}, v9, vcc
    s_waitcnt lgkmcnt(0)
    buffer_store_dwordx4 v[44:47], v{vTmp+1}, s[{rTABW}:{rTABW+3}], s{sSO+2} offen{SCW}
    buffer_store_dwordx4 v[48:51], v{vTmp+2}, s[{rTABW}:{rTABW+3}], s{sSO+2} offen offset:2048{SCW}
    s_cmp_lg_u32 s2, 250
    s_cbranch_scc1 K_tab_stored
    s_cmp_lg_u32 s3, 10
    s_cbranch_scc1 K_tab_stored
    v_mov_b32 v40, 0x7f00
    s_mov_b32 s{sT0}, {N*256}
    buffer_store_dword v40, v{vLane4}, s[{rTABW}:{rTABW+3}], s{sT0} offen{SCW}
K_tab_stored:""")
stamp(5)
o("    s_barrier")
stamp(7)
o(f"    ds_read_b64 v[124:125], v{vZ} offset:{LDS_FLG+32}")
o(f"""    ; the loads of w_a|w_u, x, w_c, epoch are older than the (2 or 3) table stores
    s_waitcnt vmcnt(2)
    s_cmp_lg_u32 s2, 250
    s_cbranch_scc1 K_tab_w2
    s_waitcnt vmcnt(2)
K_tab_w2:
    ds_write_b128 v14, v[120:123]
    ds_write_b128 v14, v[52:55] offset:{64*WROW}
    s_cmp_ge_u32 s3, 12
    s_cbranch_scc1 K_tab_st2
    ds_write_b128 v15, v[56:59]
    ds_write_b128 v15, v[28:31] offset:{64*WROW}
K_tab_st2:
    v_lshlrev_b32 v{vWc}, 16, v{vWc}
    v_mul_f32 v{vWc}, {NLOG2E:#x}, v{vWc}
    s_waitcnt lgkmcnt(0)
    v_readfirstlane_b32 s{sEP}, v124
    v_readfirstlane_b32 s{sEP+1}, v125
    s_mov_b64 exec, 1
    ds_add_u32 v8, v{vOne} offset:{LDS_FLG+12}
    s_mov_b64 exec, -1
    s_mov_b32 s{sSPIN}, 0
K_tab_meet2:
    ds_read_b32 v{vTmp}, v8 offset:{LDS_FLG+12}
    s_add_u32 s{sSPIN}, s{sSPIN}, 1
    s_waitcnt lgkmcnt(0)
    v_readfirstlane_b32 s{sT0}, v{vTmp}
    s_cmp_ge_u32 s{sSPIN}, {SPIN_MAX}
    s_cbranch_scc1 K_tab_met2
    s_cmp_lt_u32 s{sT0}, 6
    s_cbranch_scc1 K_tab_meet2
K_tab_met2:""")
vFr, vAcc = 72, 104
for jj in range(2):
    for m in range(2):
        for s_ in range(2):
            f = vFr + ((jj*2+m)*2+s_)*4
            off = m*64*WROW + s_*32*WROW + jj*32
            o(f"    ds_read_b64_tr_b16 v[{f}:{f+1}], v{vTmp+5} offset:{off}")
            o(f"    ds_read_b64_tr_b16 v[{f+2}:{f+3}], v{vTmp+5} offset:{off+4*WROW}")
o(f"""    ; LDS dest: (16*tau + (lane&15))*272 + (32*half + 16*jj + 4*g)*4
    s_lshl_b32 s{sT1}, s{sT2}, 4
    v_add_u32 v9, s{sT1}, v{vJ}
    v_mul_u32_u24 v9, 272, v9
    v_lshl_add_u32 v9, v{vG4}, 4, v9
    s_lshl_b32 s{sT0}, s{sT3}, 7
    v_add_u32 v9, s{sT0}, v9
    v_add_u32 v11, {LDS_U}, v9""")
for k in range(4):
    a_ = vAcc + k*4; f = vFr + k*8
    o(f"    s_waitcnt lgkmcnt({12-4*k})")
    o(f"    v_mfma_f32_16x16x32_bf16 v[{a_}:{a_+3}], v[{f}:{f+3}], v[{vXf2}:{vXf2+3}], 0")
    o(f"    v_mfma_f32_16x16x32_bf16 v[{a_}:{a_+3}], v[{f+4}:{f+7}], v[{vXf2+4}:{vXf2+7}], v[{a_}:{a_+3}]")
o(f"""    s_mov_b32 s{sT0}, {NLOG2E:#x}
    v_mov_b32 v10, 0xc27c0000                  ; -63
    s_nop 7""")
for jj in range(2):
    a_ = vAcc + jj*8
    for i in range(4): o(f"    v_fma_f32 v{a_+i}, v{a_+i}, s{sT0}, v10")
    o(f"    ds_write_b128 v9, v[{a_}:{a_+3}] offset:{LDS_A + jj*64}")
    o(f"    ds_write_b128 v11, v[{a_+4}:{a_+7}] offset:{jj*64}")
tags(False)
o(f"""    ; table-ready signal: the last table wave whose stores have completed publishes one granule per replica
    s_waitcnt vmcnt(0)""")
stamp(6)
o(f"""    s_mov_b64 exec, 1
    ds_add_rtn_u32 v9, v8, v{vOne} offset:{LDS_FLG+8}
    s_mov_b64 exec, -1
    s_waitcnt lgkmcnt(0)
    v_readfirstlane_b32 s{sT0}, v9
    s_nop 3
    s_cmp_lg_u32 s{sT0}, 5
    s_cbranch_scc1 K_poll_setup
    s_add_u32 s{rA}, s{sWS}, {WS_TF:#x}
    s_addc_u32 s{rA+1}, s{sWS+1}, 0
    s_and_b32 s{rA+1}, s{rA+1}, 0xffff
    s_mov_b32 s{rA+2}, {8*2048}
    s_mov_b32 s{rA+3}, 0x20000
    v_lshlrev_b32 v8, 11, v{vLane}
    v_mov_b32 v10, s{sTAGL}
    v_mov_b32 v11, s{sTAGH}
    s_lshl_b32 s{sT0}, s2, 3
    s_mov_b64 exec, 0xff
    buffer_store_dwordx2 v[10:11], v8, s[{rA}:{rA+3}], s{sT0} offen{SC}
    s_mov_b64 exec, -1""")

vG = 72
vEnt, vIdx, vRank = 28, 44, 52
o(f"""K_poll_setup:
    v_lshrrev_b32 v8, 4, v0
    v_lshlrev_b32 v8, 9, v8                    ; 4*(t>>4)*128
    s_lshr_b32 s{sT0}, s{sBETA}, 4
    s_lshl_b32 s{sT0}, s{sT0}, 15
    s_and_b32 s{sT1}, s{sBETA}, 15
    s_lshl_b32 s{sT1}, s{sT1}, 3
    s_add_u32 s{sGOFF}, s{sT0}, s{sT1}
    s_mov_b32 s{sSPIN}, 0
    v_mov_b32 v9, 0xff000000
K_poll:
    buffer_load_dwordx2 v[{vG}:{vG+1}], v8, s[{rOFF}:{rOFF+3}], s{sGOFF} offen{SC}
    buffer_load_dwordx2 v[{vG+2}:{vG+3}], v8, s[{rOFF}:{rOFF+3}], s{sGOFF} offen offset:128{SC}
    buffer_load_dwordx2 v[{vG+4}:{vG+5}], v8, s[{rOFF}:{rOFF+3}], s{sGOFF} offen offset:256{SC}
    buffer_load_dwordx2 v[{vG+6}:{vG+7}], v8, s[{rOFF}:{rOFF+3}], s{sGOFF} offen offset:384{SC}
    s_add_u32 s{sSPIN}, s{sSPIN}, 1
    s_waitcnt vmcnt(0)""")
def tagcheck(d0s, d1s, mask):
    o(f"    v_xor_b32 v{vTmp}, s{sTAGL}, v{d0s[0]}")
    o(f"    v_xor_b32 v{vTmp+1}, s{sTAGL}, v{d0s[1]}")
    o(f"    v_xor_b32 v{vTmp+2}, s{sTAGL}, v{d0s[2]}")
    o(f"    v_xor_b32 v{vTmp+3}, s{sTAGL}, v{d0s[3]}")
    o(f"    v_or3_b32 v{vTmp}, v{vTmp}, v{vTmp+1}, v{vTmp+2}")
    o(f"    v_or_b32 v{vTmp}, v{vTmp}, v{vTmp+3}")
    o(f"    v_and_b32 v{vTmp}, v{mask}, v{vTmp}")
    o(f"    v_xor_b32 v{vTmp+1}, s{sTAGH}, v{d1s[0]}")
    o(f"    v_xor_b32 v{vTmp+2}, s{sTAGH}, v{d1s[1]}")
    o(f"    v_xor_b32 v{vTmp+3}, s{sTAGH}, v{d1s[2]}")
    o(f"    v_xor_b32 v{vTmp+4}, s{sTAGH}, v{d1s[3]}")
    o(f"    v_or3_b32 v{vTmp}, v{vTmp}, v{vTmp+1}, v{vTmp+2}")
    o(f"    v_or3_b32 v{vTmp}, v{vTmp}, v{vTmp+3}, v{vTmp+4}")
    o(f"    v_cmp_ne_u32 vcc, 0, v{vTmp}")
tagcheck([vG, vG+2, vG+4, vG+6], [vG+1, vG+3, vG+5, vG+7], 9)
o(f"""    s_cbranch_vccz K_poll_ok
    s_cmp_ge_u32 s{sSPIN}, {SPIN_MAX}
    s_cbranch_scc1 K_poll_fail
    s_sleep {SLEEP}
    s_branch K_poll
K_poll_fail:""")
for r in range(4): o(f"    v_mov_b32 v{vG+2*r}, 0")
o("K_poll_ok:")
stamp(8)
stampc(18)
vCnt = 80
o(f"""    s_mov_b32 s{sSO}, 0
    s_mov_b32 s{sSO+1}, {CH*8}
    s_mov_b32 s{sSO+2}, {2*CH*8}
    s_mov_b32 s{sSO+3}, {3*CH*8}""")
for r in range(4):
    T = vG + 2*r
    o(f"""    v_bfe_u32 v{vCnt+r}, v{T}, 12, 12          ; count
    v_and_b32 v{vCnt+4+r}, 0xfff, v{T}
    v_add_u32 v{vCnt+4+r}, v{vCnt+4+r}, v{vJ}
    v_cmp_gt_u32 s[{sM+4*r}:{sM+4*r+1}], v{vCnt+r}, v{vJ}
    v_lshl_add_u32 v{vCnt+4+r}, v{vCnt+4+r}, 3, v{vSeg}""")
for r in range(4):
    o(f"""    s_mov_b64 exec, s[{sM+4*r}:{sM+4*r+1}]
    buffer_load_dwordx2 v[{vEnt+4*r}:{vEnt+4*r+1}], v{vCnt+4+r}, s[{rCH}:{rCH+3}], s{sSO+r} offen{SCE}""")
o(f"""    s_mov_b64 exec, -1
    v_max3_u32 v{vTmp}, v{vCnt}, v{vCnt+1}, v{vCnt+2}
    v_max_u32 v{vTmp}, v{vTmp}, v{vCnt+3}
    v_cmp_lt_u32 vcc, 16, v{vTmp}
    s_mov_b64 s[{sBIG}:{sBIG+1}], vcc
    s_cbranch_vccz K_nok1""")
for r in range(4):
    o(f"""    v_cmp_gt_u32 s[{sM+4*r+2}:{sM+4*r+3}], v{vCnt+r}, v{vJ16}""")
o("    s_nop 1")
for r in range(4):
    o(f"""    s_mov_b64 exec, s[{sM+4*r+2}:{sM+4*r+3}]
    s_cbranch_execz K_nok1_{r}
    buffer_load_dwordx2 v[{vEnt+4*r+2}:{vEnt+4*r+3}], v{vCnt+4+r}, s[{rCH}:{rCH+3}], s{sSO+r} offen offset:128{SCE}
K_nok1_{r}:""")
o(f"""    s_mov_b64 exec, -1
    v_cmp_lt_u32 vcc, 32, v{vTmp}
    s_cbranch_vccz K_nok1
    v_mov_b32 v{vTmp}, 0
    ds_write_b32 v{vTmp}, v{vOne} offset:{LDS_FLG}
K_nok1:
    s_waitcnt vmcnt(0)""")
stamp(9)
def slots(ks): return [r*2+k for r in range(4) for k in ks]
def hist(es):
    for e in es:
        d0 = vEnt + 2*e
        o(f"    v_lshlrev_b32 v{vIdx+e}, 2, v{d0}")
        o(f"    v_subrev_u32 v{vIdx+e}, s{sSB4}, v{vIdx+e}")
        o(f"    v_and_b32 v{vIdx+e}, 0xfc, v{vIdx+e}")
        o(f"    s_mov_b64 exec, s[{sM+2*e}:{sM+2*e+1}]")
        o(f"    ds_add_rtn_u32 v{vRank+e}, v{vIdx+e}, v{vOne} offset:{LDS_CNT2}")
        o(f"    s_mov_b64 exec, -1")
hist(slots([0]))
o(f"    s_cmp_eq_u64 s[{sBIG}:{sBIG+1}], 0\n    s_cbranch_scc1 K_noh1")
hist(slots([1]))
o(f"""K_noh1:
    s_waitcnt lgkmcnt(0)
    s_barrier""")
stamp(10)
o(f"""    ds_read_b32 v{vInc}, v{vLane4} offset:{LDS_CNT2}
    v_mov_b32 v{vTmp}, 0
    ds_read_b32 v{vTmp+1}, v{vTmp} offset:{LDS_FLG}
    v_lshlrev_b32 v100, 5, v{vLane}
    v_mov_b32 v101, 0xff000000
    s_cmp_lg_u32 s3, 15
    s_cbranch_scc1 K_notf0
    s_add_u32 s{rB}, s{sWS}, {WS_TF:#x}
    s_addc_u32 s{rB+1}, s{sWS+1}, 0
    s_and_b32 s{rB+1}, s{rB+1}, 0xffff
    s_mov_b32 s{rB+2}, {8*2048}
    s_mov_b32 s{rB+3}, 0x20000
    s_and_b32 s{sT3}, s2, 7
    s_lshl_b32 s{sT3}, s{sT3}, 11
    s_mov_b32 s{sSPIN}, 0
    buffer_load_dwordx4 v[88:91], v100, s[{rB}:{rB+3}], s{sT3} offen{SC}
    buffer_load_dwordx4 v[92:95], v100, s[{rB}:{rB+3}], s{sT3} offen offset:16{SC}
K_notf0:""")
if PREF:
    o(f"""    ; pull this workgroup's share of the table into the L2 of its die (speed only)
    s_lshr_b32 s{sT0}, s2, 3
    s_mul_i32 s{sT0}, s{sT0}, {16*5*1024}
    s_mul_i32 s{sT1}, s3, {5*1024}
    s_add_u32 s{sT0}, s{sT0}, s{sT1}
    v_lshlrev_b32 v8, 4, v{vLane}""")
    for i in range(5):
        o(f"    buffer_load_dwordx4 v[100:103], v8, s[{rTABW}:{rTABW+3}], s{sT0} offen offset:{(i%4)*1024}{SC}" if i < 4 else
          f"    s_add_u32 s{sT0}, s{sT0}, 4096\n    buffer_load_dwordx4 v[100:103], v8, s[{rTABW}:{rTABW+3}], s{sT0} offen{SC}")
o(f"""    ; workgroup 0 records this launch's epoch (all workgroups have read the old one by now)
    s_or_b32 s{sT0}, s2, s3
    s_cmp_lg_u32 s{sT0}, 0
    s_cbranch_scc1 K_noep
    s_add_u32 s{rA}, s{sWS}, {WS_EP:#x}
    s_addc_u32 s{rA+1}, s{sWS+1}, 0
    s_and_b32 s{rA+1}, s{rA+1}, 0xffff
    s_mov_b32 s{rA+2}, 8
    s_mov_b32 s{rA+3}, 0x20000
    v_mov_b32 v8, s{sEP}
    v_mov_b32 v9, s{sEP+1}
    s_mov_b64 exec, 1
    buffer_store_dwordx2 v[8:9], v{vTmp}, s[{rA}:{rA+3}], 0 offen
    s_mov_b64 exec, -1
K_noep:
    s_waitcnt lgkmcnt(0)
    v_add_u32 v{vInc}, 3, v{vInc}
    v_readfirstlane_b32 s{sT0}, v{vTmp+1}
    v_lshrrev_b32 v{vInc}, 2, v{vInc}
    v_mov_b32 v{vBase}, v{vInc}""")
fill = [f"v_and_b32 v{vEnt+2*e}, 0xffffff00, v{vEnt+2*e}" for e in range(8)] + \
       [f"s_lshl_b32 s{sT2}, 1, s3", f"v_mov_b32 v{vTmp+2}, s{sT2}"]
wave_scan(vInc, fill)
vPos = 80
o(f"""    v_sub_u32 v{vTmp+3}, v{vInc}, v{vBase}
    v_lshlrev_b32 v{vBase}, 2, v{vTmp+3}
    v_readlane_b32 s{sQ}, v{vInc}, 63
    s_cmp_lg_u32 s{sT0}, 0
    s_cbranch_scc1 K_slow""")
for e in slots([0]): o(f"    ds_bpermute_b32 v{vPos+e}, v{vIdx+e}, v{vBase}")
o(f"""    s_cmp_gt_u32 s{sQ}, {CAPQ}
    s_cbranch_scc1 K_slow
    s_mul_i32 s{sQ0}, s{sQ}, s3
    s_lshr_b32 s{sQ0}, s{sQ0}, 4
    s_add_u32 s{sT0}, s3, 1
    s_mul_i32 s{sQ1}, s{sQ}, s{sT0}
    s_lshr_b32 s{sQ1}, s{sQ1}, 4
    v_cmp_ge_u32 vcc, s{sQ0}, v{vInc}
    s_bcnt1_i32_b64 s{sNODE}, vcc
    v_cmp_lt_u32 s[{rA}:{rA+1}], s{sQ0}, v{vInc}
    v_cmp_gt_u32 s[{rA+2}:{rA+3}], s{sQ1}, v{vTmp+3}
    v_cmp_gt_u32 vcc, v{vInc}, v{vTmp+3}
    v_readlane_b32 s{sBND}, v{vInc}, s{sNODE}
    s_and_b64 s[{rA}:{rA+1}], s[{rA}:{rA+1}], s[{rA+2}:{rA+3}]
    s_and_b64 s[{rA}:{rA+1}], s[{rA}:{rA+1}], vcc
    s_cmp_lt_u32 s{sQ0}, s{sQ1}
    s_cselect_b64 exec, s[{rA}:{rA+1}], 0
    ds_or_b32 v{vLane4}, v{vTmp+2} offset:{LDS_MSK}
    s_mov_b64 exec, -1
    s_waitcnt lgkmcnt(0)""")
def place(es, bperm):
    if bperm:
        for e in es: o(f"    ds_bpermute_b32 v{vPos+e}, v{vIdx+e}, v{vBase}")
        o("    s_waitcnt lgkmcnt(0)")
    for e in es: o(f"    v_add_lshl_u32 v{vPos+e}, v{vPos+e}, v{vRank+e}, 2")
    for e in es:
        d0 = vEnt + 2*e
        o(f"    s_mov_b64 exec, s[{sM+2*e}:{sM+2*e+1}]")
        o(f"    ds_write_b32 v{vPos+e}, v{d0} offset:{LDS_O}")
        o(f"    ds_write_b32 v{vPos+e}, v{d0+1} offset:{LDS_E}")
    o(f"    s_mov_b64 exec, -1")
place(slots([0]), False)
o(f"    s_cmp_eq_u64 s[{sBIG}:{sBIG+1}], 0\n    s_cbranch_scc1 K_nop1")
place(slots([1]), True)
PT = [int(x) for x in opt('pt', '4-7-9').split('-')]
PREL = opt('prel', '')
PTS = [f's{16+i}' for i in range(3)] if PREL else [str(x) for x in PT]
vA, vAn, vDen, vNum, vAA, vLA, vSL = 8, 9, 10, 12, 14, 15, 27
vO = 16
vE = [20, 28]
RING = int(opt('ring', 4))
vDr = [32, 36, 40, 44] if RING == 4 else [72 + 4*i for i in range(RING)]
vU, vAa, vP, vS_, vQ, vR = 48, 52, 56, 58, 62, 64
vF = 66
o(f"""K_nop1:
    s_mul_i32 s{sT0}, s{sNODE}, 272
    v_add_u32 v{vAA}, s{sT0}, v{vLane4}
    s_add_u32 s{sT1}, s{sNODE}, s3
    s_lshl_b32 s{sT1}, s{sT1}, 9
    v_add_u32 v{vSL}, s{sT1}, v{vLane4}
    s_lshl_b32 s{sT0}, s{sQ0}, 4
    v_mov_b32 v{vLA}, s{sT0}
    ds_read_b32 v{vA}, v{vAA} offset:{LDS_A}
    ds_read_b32 v{vAn}, v{vAA} offset:{LDS_A+272}
    s_min_u32 s{sSTOP}, s{sBND}, s{sQ1}
    s_sub_u32 s{sREM}, s{sSTOP}, s{sQ0}
    s_mov_b32 s{sC63}, 0x5f000000                ; 2^63
    s_mov_b32 s{sC63+1}, 0x5f000000
    s_mov_b32 s{sSEL}, 0x00003f80
    s_mov_b32 s{sIT}, 0
    v_mov_b64 v[{vDen}:{vDen+1}], 0
    v_mov_b64 v[{vNum}:{vNum+1}], 0
    s_cmp_lg_u32 s3, 15
    s_cbranch_scc1 K_notf
    s_branch K_tfchk
K_tfpoll:
    buffer_load_dwordx4 v[88:91], v100, s[{rB}:{rB+3}], s{sT3} offen{SC}
    buffer_load_dwordx4 v[92:95], v100, s[{rB}:{rB+3}], s{sT3} offen offset:16{SC}
K_tfchk:
    s_add_u32 s{sSPIN}, s{sSPIN}, 1
    s_waitcnt vmcnt(0)""")
tagcheck([88, 90, 92, 94], [89, 91, 93, 95], 101)
o(f"""    s_cbranch_vccz K_notf
    s_cmp_ge_u32 s{sSPIN}, {SPIN_MAX}
    s_cbranch_scc1 K_notf
    s_sleep 1
    s_branch K_tfpoll
K_notf:
    s_waitcnt lgkmcnt(0)
    s_barrier""")
stamp(11)
stampc(14)
o(f"""    s_cmp_ge_u32 s{sQ0}, s{sQ1}
    s_cbranch_scc1 K_main_done
    s_setprio 3""")
scr = [32, 36, 40, 44, 48, 52, 56] if RING > 4 else [vO, vU, vAa]
for j in range(RING-1): o(f"    ds_read_b128 v[{scr[j]}:{scr[j]+3}], v{vLA} offset:{LDS_O+16*j}")
o(f"    ds_read_b128 v[{vE[0]}:{vE[0]+3}], v{vLA} offset:{LDS_E}")
for j in range(RING-1):
    o(f"    s_waitcnt lgkmcnt({RING-1-j})")
    for i in range(4): o(f"    buffer_load_dword v{vDr[j]+i}, v{scr[j]+i}, s[{rTAB}:{rTAB+3}], 0 offen{SC}")
o(f"    ds_read_b128 v[{vO}:{vO+3}], v{vLA} offset:{LDS_O+16*(RING-1)}")
if PREL:
    rel = [int(x) for x in PREL.split('-')]
    o(f"    s_sub_u32 s19, s{sQ1}, s{sQ0}\n    s_add_u32 s19, s19, {RING-1}\n    s_lshr_b32 s19, s19, {RING.bit_length()-1}")
    for i in range(3): o(f"    s_sub_u32 s{16+i}, s19, {rel[i]}")
o(".p2align 3")
o("K_loop:")
for k in range(RING):
    e = vE[k%2]; en = vE[(k+1)%2]; Dk = vDr[k]; Dn = vDr[(k+RING-1)%RING]
    o(f"    s_waitcnt lgkmcnt(0)")
    o(f"    s_sub_u32 s{sREM}, s{sREM}, 1")
    for i in range(4):
        o(f"    buffer_load_dword v{Dn+i}, v{vO+i}, s[{rTAB}:{rTAB+3}], 0 offen{SC}")
    o(f"    ds_read_b128 v[{vO}:{vO+3}], v{vLA} offset:{LDS_O+16*(k+RING)}")
    o(f"    ds_read_b128 v[{en}:{en+3}], v{vLA} offset:{LDS_E+16*(k+1)}")
    o(f"    s_cbranch_scc1 K_h{k}")
    o(f"K_r{k}:")
    o(f"    s_waitcnt vmcnt({4*(RING-1)})")
    o(f"    v_pk_fma_f32 v[{vU}:{vU+1}], v[{e}:{e+1}], v[{vWc}:{vWc+1}], v[{vA}:{vA+1}] op_sel_hi:[1,0,0]")
    o(f"    v_pk_fma_f32 v[{vU+2}:{vU+3}], v[{e+2}:{e+3}], v[{vWc}:{vWc+1}], v[{vA}:{vA+1}] op_sel_hi:[1,0,0]")
    for i in range(4): o(f"    v_dot2c_f32_bf16 v{vU+i}, s{sSEL}, v{Dk+i}")
    for i in range(4): o(f"    v_exp_f32_e64 v{vU+i}, v{vU+i} clamp")
    o(f"    v_pk_fma_f32 v[{vAa}:{vAa+1}], v[{vU}:{vU+1}], s[{sC63}:{sC63+1}], 1.0 op_sel_hi:[1,0,0]")
    o(f"    v_pk_fma_f32 v[{vAa+2}:{vAa+3}], v[{vU+2}:{vU+3}], s[{sC63}:{sC63+1}], 1.0 op_sel_hi:[1,0,0]")
    o(f"    v_pk_mul_f32 v[{vP}:{vP+1}], v[{vAa}:{vAa+1}], v[{vAa+2}:{vAa+3}]")
    o(f"    v_pk_add_f32 v[{vS_}:{vS_+1}], v[{vAa}:{vAa+1}], v[{vAa+2}:{vAa+3}]")
    o(f"    v_rcp_f32 v{vR}, v{vP}")
    o(f"    v_rcp_f32 v{vR+1}, v{vP+1}")
    o(f"    v_pk_mul_f32 v[{vQ}:{vQ+1}], v[{vAa+2}:{vAa+3}], v[{Dk}:{Dk+1}]")
    o(f"    v_pk_fma_f32 v[{vQ}:{vQ+1}], v[{vAa}:{vAa+1}], v[{Dk+2}:{Dk+3}], v[{vQ}:{vQ+1}]")
    o(f"    v_pk_fma_f32 v[{vDen}:{vDen+1}], v[{vS_}:{vS_+1}], v[{vR}:{vR+1}], v[{vDen}:{vDen+1}]")
    o(f"    v_pk_fma_f32 v[{vNum}:{vNum+1}], v[{vQ}:{vQ+1}], v[{vR}:{vR+1}], v[{vNum}:{vNum+1}]")
o(f"""    v_add_u32 v{vLA}, {16*RING}, v{vLA}
    s_add_u32 s{sIT}, s{sIT}, 1
    s_cmp_eq_u32 s{sIT}, {PTS[0]}
    s_cbranch_scc1 K_p2
    s_cmp_eq_u32 s{sIT}, {PTS[1]}
    s_cbranch_scc1 K_p1
    s_cmp_eq_u32 s{sIT}, {PTS[2]}
    s_cbranch_scc0 K_loop
    s_setprio 0
    s_branch K_loop
K_p2:
    s_setprio 2
    s_branch K_loop
K_p1:
    s_setprio 1
    s_branch K_loop""")
for k in range(RING):
    o(f"""K_h{k}:
    v_add_f32 v{vF}, v{vDen}, v{vDen+1}
    v_add_f32 v{vF+1}, v{vNum}, v{vNum+1}
    s_add_u32 s{sNODE}, s{sNODE}, 1
    ds_write_b32 v{vSL}, v{vF} offset:{LDS_SL}
    ds_write_b32 v{vSL}, v{vF+1} offset:{LDS_SL+256}
    s_cmp_ge_u32 s{sSTOP}, s{sQ1}
    s_cbranch_scc1 K_main_done
    v_readlane_b32 s{sBND}, v{vInc}, s{sNODE}
    v_mov_b64 v[{vDen}:{vDen+1}], 0
    v_mov_b64 v[{vNum}:{vNum+1}], 0
    v_mov_b32 v{vA}, v{vAn}
    v_add_u32 v{vAA}, 272, v{vAA}
    v_add_u32 v{vSL}, 512, v{vSL}
    s_cmp_eq_u32 s{sBND}, s{sSTOP}
    s_cbranch_scc1 K_hs{k}
    ds_read_b32 v{vAn}, v{vAA} offset:{LDS_A+272}
K_hr{k}:
    s_mov_b32 s{sT0}, s{sSTOP}
    s_min_u32 s{sSTOP}, s{sBND}, s{sQ1}
    s_sub_u32 s{sREM}, s{sSTOP}, s{sT0}
    s_sub_u32 s{sREM}, s{sREM}, 1
    s_branch K_r{k}
K_hs{k}:
    s_add_u32 s{sNODE}, s{sNODE}, 1
    v_readlane_b32 s{sBND}, v{vInc}, s{sNODE}
    v_add_u32 v{vAA}, 272, v{vAA}
    v_add_u32 v{vSL}, 512, v{vSL}
    s_nop 1
    s_cmp_eq_u32 s{sBND}, s{sSTOP}
    s_cbranch_scc1 K_hs{k}
    ds_read_b32 v{vA}, v{vAA} offset:{LDS_A}
    ds_read_b32 v{vAn}, v{vAA} offset:{LDS_A+272}
    s_waitcnt lgkmcnt(0)
    s_branch K_hr{k}""")

sP, sCNT, sPOS, sN, sEN = 4, 5, 6, 7, 8
o(f"""K_slow:
    s_add_u32 s{rB}, s{sWS}, {WS_TF:#x}
    s_addc_u32 s{rB+1}, s{sWS+1}, 0
    s_and_b32 s{rB+1}, s{rB+1}, 0xffff
    s_mov_b32 s{rB+2}, {8*2048}
    s_mov_b32 s{rB+3}, 0x20000
    s_and_b32 s{sT3}, s2, 7
    s_lshl_b32 s{sT3}, s{sT3}, 11
    v_lshlrev_b32 v100, 5, v{vLane}
    v_mov_b32 v101, 0xff000000
    s_mov_b32 s{sSPIN}, 0
K_s_tf:
    buffer_load_dwordx4 v[88:91], v100, s[{rB}:{rB+3}], s{sT3} offen{SC}
    buffer_load_dwordx4 v[92:95], v100, s[{rB}:{rB+3}], s{sT3} offen offset:16{SC}
    s_add_u32 s{sSPIN}, s{sSPIN}, 1
    s_waitcnt vmcnt(0)""")
tagcheck([88, 90, 92, 94], [89, 91, 93, 95], 101)
o(f"""    s_cbranch_vccz K_s_go
    s_cmp_ge_u32 s{sSPIN}, {SPIN_MAX}
    s_cbranch_scc1 K_s_go
    s_sleep 4
    s_branch K_s_tf
K_s_go:
    s_mov_b32 s{sC63}, 0x5f000000
    s_mov_b32 s{sSEL}, 0x00003f80
    s_mov_b32 s{sN}, s3
    v_mov_b32 v{vTmp}, 0
K_s_node:
    s_cmp_ge_u32 s{sN}, s{sNB}
    s_cbranch_scc1 K_main_done
    s_mul_i32 s{sT0}, s{sN}, 272
    v_add_u32 v{vAA}, s{sT0}, v{vLane4}
    ds_read_b32 v{vA}, v{vAA} offset:{LDS_A}
    v_mov_b32 v{vDen}, 0
    v_mov_b32 v{vNum}, 0
    s_mov_b32 s{sP}, 0
    s_waitcnt lgkmcnt(0)
K_s_prod:
    s_lshl_b32 s{sT0}, s{sP}, 7
    s_add_u32 s{sT0}, s{sT0}, s{sGOFF}
    buffer_load_dword v{vU}, v{vTmp}, s[{rOFF}:{rOFF+3}], s{sT0} offen{SC}
    s_waitcnt vmcnt(0)
    v_readfirstlane_b32 s{sCNT}, v{vU}
    s_nop 3
    s_and_b32 s{sPOS}, s{sCNT}, 0xfff
    s_bfe_u32 s{sCNT}, s{sCNT}, 0xc000c
    s_mul_i32 s{sT0}, s{sP}, {CH}
    s_add_u32 s{sPOS}, s{sPOS}, s{sT0}
    s_lshl_b32 s{sPOS}, s{sPOS}, 3
K_s_ent:
    s_cmp_eq_u32 s{sCNT}, 0
    s_cbranch_scc1 K_s_prod_next
    buffer_load_dwordx2 v[{vU}:{vU+1}], v{vTmp}, s[{rCH}:{rCH+3}], s{sPOS} offen{SC}
    s_waitcnt vmcnt(0)
    v_readfirstlane_b32 s{sEN}, v{vU}
    s_nop 3
    s_sub_u32 s{sT0}, s{sEN}, s{sSB}
    s_and_b32 s{sT0}, s{sT0}, 63
    s_cmp_lg_u32 s{sT0}, s{sN}
    s_cbranch_scc1 K_s_ent_next
    s_and_b32 s{sT0}, s{sEN}, 0xffffff00
    buffer_load_dword v{vU+2}, off, s[{rTAB}:{rTAB+3}], s{sT0}{SC}
    v_fma_f32 v{vU}, v{vU+1}, v{vWc}, v{vA}
    s_waitcnt vmcnt(0)
    v_dot2c_f32_bf16 v{vU}, s{sSEL}, v{vU+2}
    s_nop 2
    v_exp_f32_e64 v{vU}, v{vU} clamp
    s_nop 0
    v_fma_f32 v{vU}, v{vU}, s{sC63}, 1.0
    v_rcp_f32 v{vU}, v{vU}
    s_nop 0
    v_add_f32 v{vDen}, v{vDen}, v{vU}
    v_fmac_f32 v{vNum}, v{vU}, v{vU+2}
K_s_ent_next:
    s_add_u32 s{sPOS}, s{sPOS}, 8
    s_sub_u32 s{sCNT}, s{sCNT}, 1
    s_branch K_s_ent
K_s_prod_next:
    s_add_u32 s{sP}, s{sP}, 1
    s_cmp_lt_u32 s{sP}, {NB}
    s_cbranch_scc1 K_s_prod
    s_lshl_b32 s{sT0}, s{sN}, 9
    v_add_u32 v{vF+2}, s{sT0}, v{vLane4}
    ds_write_b32 v{vF+2}, v{vDen} offset:{LDS_SL}
    ds_write_b32 v{vF+2}, v{vNum} offset:{LDS_SL+256}
    s_lshl_b32 s{sT0}, s{sN}, 2
    v_mov_b32 v{vF+3}, s{sT0}
    s_mov_b64 exec, 1
    ds_write_b32 v{vF+3}, v{vOne} offset:{LDS_MSK}
    s_mov_b64 exec, -1
    s_add_u32 s{sN}, s{sN}, 16
    s_branch K_s_node""")

eN, eC, eM, eW, eAd = 8, 9, 10, 11, 12
eDen, eNum, eT0, eT1, eU = 16, 20, 28, 32, 36
o(f"""K_main_done:
    s_setprio 0
    v_lshrrev_b32 v{eN}, 4, v0
    v_and_b32 v{eC}, 15, v0
    v_mul_u32_u24 v13, 272, v{eN}
    v_lshl_add_u32 v13, v{eC}, 4, v13
    v_add_u32 v13, {LDS_U}, v13
    v_lshlrev_b32 v{eAd}, 2, v{eN}
    s_waitcnt vmcnt(0) lgkmcnt(0)""")
stamp(12)
stampc(15)
o(f"""    s_barrier
    s_cmp_ge_u32 s3, 10
    s_cbranch_scc1 K_exit
    ds_read_b32 v{eM}, v{eAd} offset:{LDS_MSK}
    ds_read_b128 v[{eU}:{eU+3}], v13
    v_lshlrev_b32 v{eT0}, 16, v{vXe}
    v_and_b32 v{eT0+1}, 0xffff0000, v{vXe}
    v_lshlrev_b32 v{eT0+2}, 16, v{vXe+1}
    v_and_b32 v{eT0+3}, 0xffff0000, v{vXe+1}
    v_add_u32 v{eAd}, s{sSB}, v{eN}
    v_lshlrev_b32 v{eAd}, 7, v{eAd}
    v_lshl_add_u32 v{eAd}, v{eC}, 3, v{eAd}
    v_mov_b64 v[{eDen}:{eDen+1}], 0
    v_mov_b64 v[{eDen+2}:{eDen+3}], 0
    v_mov_b64 v[{eNum}:{eNum+1}], 0
    v_mov_b64 v[{eNum+2}:{eNum+3}], 0
    v_lshlrev_b32 v14, 4, v{eC}
    v_lshl_add_u32 v14, v{eN}, 9, v14            ; node*512 + c*16
    s_waitcnt lgkmcnt(1)
K_e_loop:
    v_cmp_ne_u32 vcc, 0, v{eM}
    s_and_saveexec_b64 s[{sSAVE}:{sSAVE+1}], vcc
    s_cbranch_execz K_e_end
    v_ffbl_b32 v{eW}, v{eM}
    v_lshl_add_u32 v{eW}, v{eW}, 9, v14
    ds_read_b128 v[40:43], v{eW} offset:{LDS_SL}
    ds_read_b128 v[44:47], v{eW} offset:{LDS_SL+256}
    v_add_u32 v{eW}, -1, v{eM}
    v_and_b32 v{eM}, v{eM}, v{eW}
    s_waitcnt lgkmcnt(0)
    v_pk_add_f32 v[{eDen}:{eDen+1}], v[{eDen}:{eDen+1}], v[40:41]
    v_pk_add_f32 v[{eDen+2}:{eDen+3}], v[{eDen+2}:{eDen+3}], v[42:43]
    v_pk_add_f32 v[{eNum}:{eNum+1}], v[{eNum}:{eNum+1}], v[44:45]
    v_pk_add_f32 v[{eNum+2}:{eNum+3}], v[{eNum+2}:{eNum+3}], v[46:47]
    s_mov_b64 exec, s[{sSAVE}:{sSAVE+1}]
    s_branch K_e_loop
K_e_end:
    s_mov_b64 exec, s[{sSAVE}:{sSAVE+1}]
    s_waitcnt lgkmcnt(0)""")
for i in range(4): o(f"    v_add_f32 v{eDen+i}, 0x358637bd, v{eDen+i}")
for i in range(4): o(f"    v_rcp_f32 v{eDen+i}, v{eDen+i}")
o(f"    v_cmp_gt_u32 vcc, s{sNB}, v{eN}")
for i in range(4): o(f"    v_fma_f32 v{eU+i}, v{eNum+i}, v{eDen+i}, v{eU+i}")
for i in range(4): o(f"    v_max_f32 v{eU+i}, 0, v{eU+i}")
for i in range(4): o(f"    v_add_f32 v{eU+i}, v{eU+i}, v{eT0+i}")
o(f"""    v_cvt_pk_bf16_f32 v{eT1}, v{eU}, v{eU+1}
    v_cvt_pk_bf16_f32 v{eT1+1}, v{eU+2}, v{eU+3}
    s_and_saveexec_b64 s[{sSAVE}:{sSAVE+1}], vcc
    s_cbranch_execz K_exit
    buffer_store_dwordx2 v[{eT1}:{eT1+1}], v{eAd}, s[{rOUT}:{rOUT+3}], 0 offen
K_exit:""")
if STAMP:
    o("    s_mov_b64 exec, -1\n    s_waitcnt vmcnt(0)")
    stamp(13)
    stamp_flush()
o("K_done:\n    s_endpgm")
o(f""".section .rodata,"a"
.p2align 6
.amdhsa_kernel {NAME}
  .amdhsa_next_free_vgpr 128
  .amdhsa_next_free_sgpr 102
  .amdhsa_accum_offset 128
  .amdhsa_group_segment_fixed_size 0
  .amdhsa_kernarg_size 96
  .amdhsa_user_sgpr_count 2
  .amdhsa_user_sgpr_kernarg_segment_ptr 1
  .amdhsa_system_sgpr_workgroup_id_x 1
  .amdhsa_dx10_clamp 0
.end_amdhsa_kernel""")
print("\n".join(L))
```

```python
import sys
FL = set(sys.argv[1].split(',')) if len(sys.argv) > 1 else set()
LIGHT = "light" in FL
STAMP = "stamp" in FL or LIGHT
PREF = "nopref" not in FL
NAME = "standalone__edge_featured_mpnn_gatedgcn__graph_kernel"

LSET = {0, 13}
for f_ in FL:
    if f_.startswith('st='): LSET |= {int(x) for x in f_[3:].split('-')}
L = []
def o(s=""): L.append(s)

N, D, E = 10000, 64, 640000
NB = 256
CH = E // NB
BMUL = 26843
WS_T = 0
T_BYTES = (N+1)*256
WS_O = 0x280000
O_BYTES = NB*NB*8
WS_C = 0x300000
C_BYTES = NB*CH*8
WS_EP = 0x7F0000
WS_TF = 0x7F1000
WS_STAMP = 0x800000
NLOG2E = 0xBFB8AA3B
WROW = 144
SPIN_MAX = 5000000
SPIN_LDS = 20000000
SC = " sc1"
def opt(name, default):
    for f in FL:
        if f.startswith(name + "="): return f.split("=")[1]
    return default
SLEEP = int(opt("sleep", 1))
B4B = "    s_barrier\n" if "b4b" in FL else ""
PRE_SLEEP = ("    s_sleep %s\n" % opt("presleep", "")) if opt("presleep", "") else ""
SCW = " " + opt("stf", "sc1").replace("+", " ")
SCE = " " + opt("ldf", "sc1").replace("+", " ")

LDS_CNT2, LDS_MSK, LDS_FLG = 0, 256, 512
LDS_CNT1, LDS_BASE1 = 768, 1792
LDS_O = 2816
LDS_E = LDS_O + 12800
LDS_A = LDS_E + 12800
LDS_SL = LDS_A + 48*272
LDS_U = LDS_SL + 56*512
LDS_W2 = LDS_U + 48*272
LDS_W1 = LDS_W2 + 2*64*WROW
LDS_ZS = LDS_W1 + 2*64*WROW
LDS_TOT = LDS_ZS + 512
LDS_SORT = LDS_SL
CAPQ = 768
assert LDS_SORT + CH*8 + 16 < 65536

def srd(dst, base, nrec, w3=0x20000, stride=0, off=0):
    if off:
        o(f"    s_add_u32 s{dst}, s{base}, {off:#x}")
        o(f"    s_addc_u32 s{dst+1}, s{base+1}, 0")
        o(f"    s_and_b32 s{dst+1}, s{dst+1}, 0xffff")
    else:
        o(f"    s_mov_b32 s{dst}, s{base}")
        o(f"    s_and_b32 s{dst+1}, s{base+1}, 0xffff")
    if stride: o(f"    s_or_b32 s{dst+1}, s{dst+1}, {stride<<16:#x}")
    o(f"    s_mov_b32 s{dst+2}, {nrec:#x}")
    o(f"    s_mov_b32 s{dst+3}, {w3:#x}")

SCAN = ("row_shr:1 row_mask:0xf bank_mask:0xf bound_ctrl:1", "row_shr:2 row_mask:0xf bank_mask:0xf bound_ctrl:1",
        "row_shr:4 row_mask:0xf bank_mask:0xf bound_ctrl:1", "row_shr:8 row_mask:0xf bank_mask:0xf bound_ctrl:1",
        "row_bcast:15 row_mask:0xa bank_mask:0xf", "row_bcast:31 row_mask:0xc bank_mask:0xf")
def wave_scan(v, fill=()):
    fill = list(fill)
    for ctl in SCAN:
        if len(fill) >= 2:
            o("    " + fill.pop(0)); o("    " + fill.pop(0))
        else:
            o("    s_nop 1")
        o(f"    v_add_u32_dpp v{v}, v{v}, v{v} {ctl}")
    for f in fill: o("    " + f)

sX, sEA, sSRC, sDST = 4, 6, 8, 10
sWA, sWB, sWC, sWU = 12, 14, 16, 18
sWV, sOUT = 20, 22
sWS = 24
sEP = 26
rA, rB, rC = 28, 32, 36
rX, rOFF, rCH, rTAB, rTABW, rOUT = 40, 44, 48, 52, 56, 60
sSB, sNB, sSB4 = 64, 65, 66
sT0, sT1, sT2, sT3 = 67, 68, 69, 70
sM = 72
sV625 = 72
sBIG = 88
sSO = 90
sTAGL, sTAGH = 94, 95
sSAVE = 96
sSPIN = 98
sGOFF = 99
sBETA = 71
sSTMP = 100
sQ, sQ0, sQ1, sNODE, sBND, sSTOP, sREM = 4, 5, 6, 7, 8, 9, 10
sC63, sSEL, sIT = 12, 14, 15

vLane, vT16, vLane4, vJ, vJ16, vSeg, vG4 = 1, 3, 4, 5, 6, 7, 2
vXe, vWc = 24, 26
vOne = 60
vTmp = 62
vInc, vBase = 70, 71
vST = 127
vZ = 61

def stamp(idx, pre=False):
    if not STAMP: return
    if LIGHT and idx not in LSET: return
    if not pre:
        o(f"    s_memrealtime s[{sSTMP}:{sSTMP+1}]")
        o(f"    s_waitcnt lgkmcnt(0)")
    o(f"    v_writelane_b32 v{vST}, s{sSTMP}, {idx}")
def stampc(idx):
    if not STAMP or LIGHT: return
    o(f"    s_memtime s[{sSTMP}:{sSTMP+1}]")
    o(f"    s_waitcnt lgkmcnt(0)")
    o(f"    v_writelane_b32 v{vST}, s{sSTMP}, {idx}")
def stamp_flush():
    if not STAMP: return
    o(f"""    s_mov_b64 exec, -1
    s_lshl_b32 s{sT0}, s2, 4
    s_add_u32 s{sT0}, s{sT0}, s3
    s_lshl_b32 s{sT0}, s{sT0}, 7
    s_add_u32 s{rA}, s{sWS}, {WS_STAMP:#x}
    s_addc_u32 s{rA+1}, s{sWS+1}, 0
    s_and_b32 s{rA+1}, s{rA+1}, 0xffff
    s_mov_b32 s{rA+2}, 0x100000
    s_mov_b32 s{rA+3}, 0x20000
    s_mov_b32 exec_lo, -1
    s_mov_b32 exec_hi, 0
    buffer_store_dword v{vST}, v{vLane4}, s[{rA}:{rA+3}], s{sT0} offen
    s_mov_b64 exec, -1""")

o(f"; @launch grid=({NB},1,1) block=(1024,1,1) lds={LDS_TOT}")
o('.amdgcn_target "amdgcn-amd-amdhsa--gfx950"')
o(".text")
o(f".globl {NAME}\n.p2align 8\n.type {NAME},@function\n{NAME}:")
if STAMP: o(f"    s_memrealtime s[{sSTMP}:{sSTMP+1}]")
o(f"""    s_cmp_ge_u32 s2, {NB}
    s_cbranch_scc1 K_done
    s_load_dwordx8 s[4:11], s[0:1], 0
    s_load_dwordx2 s[{sWS}:{sWS+1}], s[0:1], 88
    s_load_dwordx8 s[12:19], s[0:1], 32        ; w_a, w_b, w_c, w_u
    s_load_dwordx4 s[20:23], s[0:1], 64        ; w_v, out
    v_and_b32 v{vLane}, 63, v0
    v_lshrrev_b32 v{vG4}, 6, v0
    v_lshlrev_b32 v{vT16}, 4, v0
    v_readfirstlane_b32 s3, v{vG4}
    v_lshlrev_b32 v{vLane4}, 2, v{vLane}
    v_mov_b32 v{vOne}, 1
    v_mov_b32 v{vZ}, 0
    v_mov_b32 v{vTmp}, 0
    v_lshlrev_b32 v{vTmp+1}, 2, v0
    v_lshlrev_b32 v8, 3, v0                   ; t*8
    v_cmp_gt_u32 vcc, {CH//4}, v0
    s_mul_i32 s{sSO}, s2, {CH*4}
    s_mul_i32 s{sSO+1}, s2, {CH*2}
    s_mov_b64 s[{sV625}:{sV625+1}], vcc
    s_cmp_ge_u32 s3, 7
    s_cbranch_scc1 K_nozero
    ds_write_b32 v{vTmp+1}, v{vTmp}
K_nozero:
    v_and_b32 v{vJ}, 15, v{vLane}
    v_lshrrev_b32 v{vG4}, 4, v{vLane}         ; g
    s_cmp_ge_u32 s3, 10
    s_cbranch_scc1 K_tab_start
    s_waitcnt lgkmcnt(0)""")
stamp(0, pre=True)
if "sprio" in FL: o("    s_setprio 2")
srd(rA, sDST, E*4)
o(f"""    s_mov_b64 exec, s[{sV625}:{sV625+1}]
    buffer_load_dwordx4 v[32:35], v{vT16}, s[{rA}:{rA+3}], s{sSO} offen
    s_mov_b64 exec, -1""")
srd(rB, sSRC, E*4); srd(rC, sEA, E*2); srd(rOUT, sWS, 8, off=WS_EP)
o(f"""    s_barrier
    s_mov_b64 exec, s[{sV625}:{sV625+1}]
    buffer_load_dwordx4 v[36:39], v{vT16}, s[{rB}:{rB+3}], s{sSO} offen       ; src
    buffer_load_dwordx2 v[40:41], v8, s[{rC}:{rC+3}], s{sSO+1} offen          ; e
    s_mov_b64 exec, -1
    buffer_load_dwordx2 v[10:11], v{vZ}, s[{rOUT}:{rOUT+3}], 0 offen
    v_mov_b32 v48, {N*256}
    v_mov_b32 v49, {N*256}
    v_mov_b32 v50, {N*256}
    v_mov_b32 v51, {N*256}
    v_mov_b32 v52, 0
    v_mov_b32 v53, 0
    v_mov_b32 v54, 0
    v_mov_b32 v55, 0
    s_cmp_ge_u32 s3, 13
    s_cbranch_scc1 K_nofilla
    v_cmp_gt_u32 vcc, 800, v0
    s_and_saveexec_b64 s[{sBIG}:{sBIG+1}], vcc
    ds_write_b128 v{vT16}, v[48:51] offset:{LDS_O}
    ds_write_b128 v{vT16}, v[52:55] offset:{LDS_E}
    s_mov_b64 exec, s[{sBIG}:{sBIG+1}]
K_nofilla:
    v_lshlrev_b32 v56, 4, v{vLane}
    v_add_u32 v56, {LDS_ZS}, v56
    s_cmp_lg_u32 s3, 0
    s_cbranch_scc1 K_nozs
    s_mov_b32 exec_hi, 0
    ds_write_b128 v56, v[52:55]
    s_mov_b64 exec, -1
K_nozs:
""")
def common_consts():
    o(f"""    ; bucket of this workgroup: consecutive buckets on one die (speed only); node range [start(b), start(b+1))
    s_and_b32 s{sBETA}, s2, 7
    s_lshl_b32 s{sBETA}, s{sBETA}, 5
    s_lshr_b32 s{sT0}, s2, 3
    s_or_b32 s{sBETA}, s{sBETA}, s{sT0}
    s_mul_i32 s{sSB}, s{sBETA}, 40000
    s_lshr_b32 s{sSB}, s{sSB}, 10
1:
    s_mul_i32 s{sT0}, s{sSB}, {BMUL}
    s_lshr_b32 s{sT0}, s{sT0}, 20
    s_cmp_ge_u32 s{sT0}, s{sBETA}
    s_cbranch_scc1 2f
    s_add_u32 s{sSB}, s{sSB}, 1
    s_branch 1b
2:
    s_add_u32 s{sT1}, s{sBETA}, 1
    s_mul_i32 s{sNB}, s{sT1}, 40000
    s_lshr_b32 s{sNB}, s{sNB}, 10
3:
    s_mul_i32 s{sT0}, s{sNB}, {BMUL}
    s_lshr_b32 s{sT0}, s{sT0}, 20
    s_cmp_ge_u32 s{sT0}, s{sT1}
    s_cbranch_scc1 4f
    s_add_u32 s{sNB}, s{sNB}, 1
    s_branch 3b
4:
    s_min_u32 s{sNB}, s{sNB}, {N}
    s_sub_u32 s{sNB}, s{sNB}, s{sSB}
    s_lshl_b32 s{sSB4}, s{sSB}, 2
    v_add_u32 v{vJ16}, 16, v{vJ}
    v_lshrrev_b32 v{vTmp}, 4, v0              ; t>>4
    v_mul_u32_u24 v{vSeg}, {4*CH*8}, v{vTmp}
    v_lshlrev_b32 v{vTmp+7}, 1, v{vLane}""")
    srd(rX, sX, N*D*2)
    srd(rC, sWC, D*2)
    srd(rOFF, sWS, O_BYTES, off=WS_O)
    srd(rCH, sWS, C_BYTES, off=WS_C)
    srd(rTAB, sWS, T_BYTES, w3=0x00800000, stride=4, off=WS_T)
    srd(rTABW, sWS, T_BYTES, off=WS_T)
    srd(rOUT, sOUT, N*D*2)
common_consts()
o(f"""    ; epilogue x address
    v_add_u32 v{vTmp+6}, s{sSB}, v{vTmp}
    v_lshlrev_b32 v{vTmp+6}, 7, v{vTmp+6}
    v_lshl_add_u32 v{vTmp+6}, v{vJ}, 3, v{vTmp+6}
    s_mov_b64 exec, s[{sV625}:{sV625+1}]
    s_waitcnt vmcnt(3)""")
for i in range(4): o(f"    v_mul_u32_u24 v{44+i}, {BMUL}, v{32+i}")
for i in range(4): o(f"    v_lshrrev_b32 v{44+i}, 18, v{44+i}")
for i in range(4): o(f"    v_and_b32 v{44+i}, 0x3fc, v{44+i}")
for i in range(4): o(f"    ds_add_rtn_u32 v{48+i}, v{44+i}, v{vOne} offset:{LDS_CNT1}")
for i in range(4): o(f"    v_and_b32 v{32+i}, 63, v{32+i}")
o("    s_mov_b64 exec, -1")
stamp(1)
o(f"""    s_waitcnt lgkmcnt(0)
    s_barrier""")
stamp(2)
o(f"""    s_cmp_lg_u32 s3, 0
    s_cbranch_scc1 K_noscan
    ds_read_b128 v[72:75], v{vT16} offset:{LDS_CNT1}
    s_waitcnt lgkmcnt(0)
    v_add_u32 v76, v72, v73
    v_add_u32 v77, v76, v74
    v_add_u32 v78, v77, v75
    v_mov_b32 v79, v78""")
wave_scan(79)
o(f"""    v_sub_u32 v80, v79, v78
    v_add_u32 v81, v80, v72
    v_add_u32 v82, v80, v76
    v_add_u32 v83, v80, v77
    ds_write_b128 v{vT16}, v[80:83] offset:{LDS_BASE1}
K_noscan:
    s_waitcnt lgkmcnt(0)
    s_barrier""")
stamp(3)
o(f"    s_mov_b64 exec, s[{sV625}:{sV625+1}]")
for i in range(4): o(f"    ds_read_b32 v{12+i}, v{44+i} offset:{LDS_BASE1}")
o("    s_waitcnt vmcnt(0)")
for i in range(4): o(f"    v_lshl_or_b32 v{52+2*i}, v{36+i}, 8, v{32+i}")
o(f"""    v_lshlrev_b32 v53, 16, v40
    v_and_b32 v55, 0xffff0000, v40
    v_lshlrev_b32 v57, 16, v41
    v_and_b32 v59, 0xffff0000, v41
    s_waitcnt lgkmcnt(0)""")
for i in range(4): o(f"    v_add_lshl_u32 v{40+i}, v{12+i}, v{48+i}, 3")
for i in range(4): o(f"    ds_write_b64 v{40+i}, v[{52+2*i}:{53+2*i}] offset:{LDS_SORT}")
o(f"""    s_mov_b64 exec, -1
    v_add_u32 v8, {640*16}, v{vT16}
    v_cmp_gt_u32 vcc, {CH*8//16 - 640}, v0
    s_mul_i32 s{sT0}, s2, {CH*8}
    s_mov_b64 s[{sSAVE}:{sSAVE+1}], vcc
    v_readfirstlane_b32 s{sEP}, v10
    v_readfirstlane_b32 s{sEP+1}, v11
    s_waitcnt lgkmcnt(0)
    s_barrier""")
stamp(4)
o(f"""    ds_read_b128 v[32:35], v{vT16} offset:{LDS_SORT}
    s_mov_b64 exec, s[{sSAVE}:{sSAVE+1}]
    ds_read_b128 v[36:39], v8 offset:{LDS_SORT}
    s_mov_b64 exec, -1
    s_waitcnt lgkmcnt(0)
    buffer_store_dwordx4 v[32:35], v{vT16}, s[{rCH}:{rCH+3}], s{sT0} offen{SCW}
    s_mov_b64 exec, s[{sSAVE}:{sSAVE+1}]
    buffer_store_dwordx4 v[36:39], v8, s[{rCH}:{rCH+3}], s{sT0} offen{SCW}
    s_mov_b64 exec, -1""")
stamp(5)
def tags(inc=True):
    if inc: o(f"""    ; this launch's epoch
    s_add_u32 s{sEP}, s{sEP}, 1
    s_addc_u32 s{sEP+1}, s{sEP+1}, 0""")
    o(f"""    ; this launch's tag
    s_and_b32 s{sTAGL}, s{sEP}, 0xff
    s_lshl_b32 s{sTAGL}, s{sTAGL}, 24
    s_lshr_b64 s[{sSAVE}:{sSAVE+1}], s[{sEP}:{sEP+1}], 8
    s_mov_b32 s{sTAGH}, s{sSAVE}""")
tags()
o(f"""    ; granule of bucket j (thread j < 256) lives at (j>>4)*32768 + p*128 + (j&15)*8
    v_lshrrev_b32 v8, 4, v0
    v_lshlrev_b32 v86, 15, v8
    v_lshl_add_u32 v86, v{vJ}, 3, v86
    v_and_b32 v9, 255, v0
    v_lshlrev_b32 v9, 2, v9
    ds_read_b32 v84, v9 offset:{LDS_BASE1}
    ds_read_b32 v85, v9 offset:{LDS_CNT1}
    s_waitcnt lgkmcnt(0)
    v_lshl_or_b32 v84, v85, 12, v84
    v_or_b32 v84, s{sTAGL}, v84
    v_mov_b32 v85, s{sTAGH}
    s_lshl_b32 s{sT0}, s2, 7                   ; p*128
    v_mov_b32 v12, s{sEP}
    v_mov_b32 v13, s{sEP+1}
    s_mov_b64 exec, 1
    ds_write_b64 v{vZ}, v[12:13] offset:{LDS_FLG+32}
    s_mov_b64 exec, -1
    s_waitcnt vmcnt(0) lgkmcnt(0)""")
stamp(6)
o(f"""    s_barrier""")
stamp(7)
o(f"""    s_cmp_ge_u32 s3, 4
    s_cbranch_scc1 K_poll_setup
    buffer_store_dwordx2 v[84:85], v86, s[{rOFF}:{rOFF+3}], s{sT0} offen{SC}
    s_waitcnt vmcnt(0)
    s_branch K_poll_setup""")

vX1, vW1r, vW2r, vXf2 = 32, 72, 88, 16
o(f"""K_tab_start:
    s_sub_u32 s{sT0}, s3, 10
    s_lshr_b32 s{sT2}, s{sT0}, 1              ; tau
    s_and_b32 s{sT3}, s{sT0}, 1               ; half
    s_lshl_b32 s{sT0}, s{sT2}, 4              ; 16*tau
    s_mul_i32 s{sT1}, s2, 40
    s_add_u32 s{sT1}, s{sT1}, s{sT0}
    v_add_u32 v9, s{sT1}, v{vJ}
    v_lshlrev_b32 v10, 7, v9
    v_lshl_add_u32 v10, v{vG4}, 4, v10
    v_subrev_u32 v11, 640, v0                 ; u = t - 640
    v_lshlrev_b32 v12, 4, v11
    v_add_u32 v13, {384*16}, v12
    s_waitcnt lgkmcnt(0)""")
stamp(0, pre=True)
o("    s_barrier                                  ; B0")
srd(rA, sX, N*D*2); srd(rB, sWB, D*D*2); srd(rC, sWV, D*D*2)
o(f"""    buffer_load_dwordx4 v[{vX1}:{vX1+3}], v10, s[{rA}:{rA+3}], 0 offen
    buffer_load_dwordx4 v[{vX1+4}:{vX1+7}], v10, s[{rA}:{rA+3}], 0 offen offset:64
    buffer_load_dwordx4 v[{vW1r}:{vW1r+3}], v12, s[{rB}:{rB+3}], 0 offen
    buffer_load_dwordx4 v[{vW1r+4}:{vW1r+7}], v12, s[{rC}:{rC+3}], 0 offen
    s_cmp_ge_u32 s3, 12
    s_cbranch_scc1 K_tab_ld1
    buffer_load_dwordx4 v[{vW1r+8}:{vW1r+11}], v13, s[{rB}:{rB+3}], 0 offen
    buffer_load_dwordx4 v[{vW1r+12}:{vW1r+15}], v13, s[{rC}:{rC+3}], 0 offen
K_tab_ld1:
    v_mov_b32 v48, {N*256}
    v_mov_b32 v49, {N*256}
    v_mov_b32 v50, {N*256}
    v_mov_b32 v51, {N*256}
    v_mov_b32 v52, 0
    v_mov_b32 v53, 0
    v_mov_b32 v54, 0
    v_mov_b32 v55, 0
    s_cmp_ge_u32 s3, 13
    s_cbranch_scc1 K_nofillb
    v_cmp_gt_u32 vcc, 800, v0
    s_and_saveexec_b64 s[{sBIG}:{sBIG+1}], vcc
    ds_write_b128 v{vT16}, v[48:51] offset:{LDS_O}
    ds_write_b128 v{vT16}, v[52:55] offset:{LDS_E}
    s_mov_b64 exec, s[{sBIG}:{sBIG+1}]
K_nofillb:
    v_mov_b32 v16, v12
    v_mov_b32 v17, v13""")
common_consts()
o(f"""    ; staging addresses of chunks u and u+384: (c>>3)*WROW + (c&7)*16
    v_lshrrev_b32 v14, 3, v11
    v_mul_u32_u24 v14, {WROW}, v14
    v_and_b32 v15, 7, v11
    v_lshl_add_u32 v14, v15, 4, v14
    v_add_u32 v14, {LDS_W2}, v14
    v_add_u32 v15, {48*WROW}, v14              ; chunk u+384
    v_bfe_u32 v{vTmp+5}, v{vLane}, 2, 2
    v_lshl_add_u32 v{vTmp+5}, v{vG4}, 3, v{vTmp+5}
    v_mul_u32_u24 v{vTmp+5}, {WROW}, v{vTmp+5}
    v_and_b32 v{vTmp+1}, 3, v{vLane}
    v_lshl_add_u32 v{vTmp+5}, v{vTmp+1}, 3, v{vTmp+5}
    s_lshl_b32 s{sT0}, s{sT3}, 6
    s_add_u32 s{sT0}, s{sT0}, {LDS_W2}
    v_add_u32 v{vTmp+5}, s{sT0}, v{vTmp+5}
    s_sub_u32 s{sT0}, s3, 10
    s_mov_b32 s{sT1}, {LDS_U - 3*2304}
    s_cmp_ge_u32 s{sT0}, 3
    s_cselect_b32 s{sT1}, s{sT1}, {LDS_A}
    s_mul_i32 s{sT0}, s{sT0}, 2304
    s_add_u32 s{sT0}, s{sT0}, s{sT1}
    v_mul_u32_u24 v10, 144, v{vJ}
    v_lshl_add_u32 v10, v{vG4}, 4, v10
    v_add_u32 v10, s{sT0}, v10
    v_lshrrev_b32 v11, 3, v{vLane}
    v_mul_u32_u24 v12, 144, v11
    v_and_b32 v13, 7, v{vLane}
    v_lshl_add_u32 v12, v13, 4, v12
    v_add_u32 v12, s{sT0}, v12
    s_lshl_b32 s{sT0}, s{sT2}, 4
    v_add_u32 v11, s{sT0}, v11
    v_lshlrev_b32 v9, 8, v11
    v_lshl_add_u32 v9, v13, 4, v9
    v_mov_b32 v8, 0
    s_waitcnt lgkmcnt(0)
    s_barrier                                  ; B1
    s_barrier                                  ; B2
    ; second weight pair, x fragments of the A/U tile tau, w_c""")
srd(rA, sWA, D*D*2); srd(rB, sWU, D*D*2)
o(f"""    buffer_load_dwordx4 v[120:123], v16, s[{rA}:{rA+3}], 0 offen
    buffer_load_dwordx4 v[52:55], v16, s[{rB}:{rB+3}], 0 offen
    s_cmp_ge_u32 s3, 12
    s_cbranch_scc1 K_tab_ld2
    buffer_load_dwordx4 v[56:59], v17, s[{rA}:{rA+3}], 0 offen
    buffer_load_dwordx4 v[28:31], v17, s[{rB}:{rB+3}], 0 offen
K_tab_ld2:
    s_lshl_b32 s{sT0}, s{sT2}, 4
    s_add_u32 s{sT0}, s{sT0}, s{sSB}
    v_add_u32 v{vTmp}, s{sT0}, v{vJ}
    v_lshlrev_b32 v{vTmp}, 7, v{vTmp}
    v_lshl_add_u32 v{vTmp}, v{vG4}, 4, v{vTmp}
    buffer_load_dwordx4 v[{vXf2}:{vXf2+3}], v{vTmp}, s[{rX}:{rX+3}], 0 offen
    buffer_load_dwordx4 v[{vXf2+4}:{vXf2+7}], v{vTmp}, s[{rX}:{rX+3}], 0 offen offset:64
    s_barrier                                  ; B3
    s_cmp_ge_u32 s3, 12
    s_cbranch_scc1 K_tab_w5
    s_waitcnt vmcnt(6)
    s_branch K_tab_w
K_tab_w5:
    s_waitcnt vmcnt(4)
K_tab_w:""")
stamp(1)
o(f"""    ds_write_b128 v14, v[{vW1r}:{vW1r+3}] offset:{128*WROW}
    ds_write_b128 v14, v[{vW1r+4}:{vW1r+7}] offset:{192*WROW}
    s_cmp_ge_u32 s3, 12
    s_cbranch_scc1 K_tab_st0
    ds_write_b128 v15, v[{vW1r+8}:{vW1r+11}] offset:{128*WROW}
    ds_write_b128 v15, v[{vW1r+12}:{vW1r+15}] offset:{192*WROW}
K_tab_st0:
    s_waitcnt lgkmcnt(0)
    s_mov_b64 exec, 1
    ds_add_u32 v8, v{vOne} offset:{LDS_FLG+4}
    s_mov_b64 exec, -1
    s_mov_b32 s{sSPIN}, 0
K_tab_meet:
    ds_read_b32 v{vTmp}, v8 offset:{LDS_FLG+4}
    s_add_u32 s{sSPIN}, s{sSPIN}, 1
    s_waitcnt lgkmcnt(0)
    v_readfirstlane_b32 s{sT0}, v{vTmp}
    s_cmp_ge_u32 s{sSPIN}, {SPIN_LDS}
    s_cbranch_scc1 K_tab_met
    s_cmp_lt_u32 s{sT0}, 6
    s_cbranch_scc1 K_tab_meet
K_tab_met:""")
def frag(k, s_): return 72 + (k*2+s_)*4
for m in range(2):
    for jj in range(2):
        for s_ in range(2):
            f = frag(m*2+jj, s_)
            off = (2+m)*64*WROW + s_*32*WROW + jj*32
            o(f"    ds_read_b64_tr_b16 v[{f}:{f+1}], v{vTmp+5} offset:{off}")
            o(f"    ds_read_b64_tr_b16 v[{f+2}:{f+3}], v{vTmp+5} offset:{off+4*WROW}")
for k in range(4):
    a_ = 104 + k*4
    o(f"    s_waitcnt lgkmcnt({12-4*k})")
    o(f"    v_mfma_f32_16x16x32_bf16 v[{a_}:{a_+3}], v[{frag(k,0)}:{frag(k,0)+3}], v[{vX1}:{vX1+3}], 0")
    o(f"    v_mfma_f32_16x16x32_bf16 v[{a_}:{a_+3}], v[{frag(k,1)}:{frag(k,1)+3}], v[{vX1+4}:{vX1+7}], v[{a_}:{a_+3}]")
o(f"""    s_mov_b32 s{sT0}, {NLOG2E:#x}
    s_mov_b32 s{sT1}, 0xffff0000
    s_mov_b32 s{sSPIN}, 0x80000000
    s_mov_b32 s{sGOFF}, 0x7fffffff
    s_lshl_b32 s{sSO+1}, s{sT3}, 7
    s_mul_i32 s{sSO+2}, s2, {40*256}
    s_add_u32 s{sSO+2}, s{sSO+2}, s{sSO+1}
    s_nop 1""")
for jj in range(2):
    B = 104 + jj*4; Vv = 112 + jj*4
    t = 40
    for i in range(4): o(f"    v_mul_f32 v{B+i}, s{sT0}, v{B+i}")
    o(f"    v_cvt_pk_bf16_f32 v{t}, v{B}, v{B+1}")
    o(f"    v_cvt_pk_bf16_f32 v{t+1}, v{B+2}, v{B+3}")
    o(f"    v_and_b32 v{B}, 0xffff, v{t}")
    o(f"    v_lshrrev_b32 v{B+1}, 16, v{t}")
    o(f"    v_and_b32 v{B+2}, 0xffff, v{t+1}")
    o(f"    v_lshrrev_b32 v{B+3}, 16, v{t+1}")
    T = 44 + jj*4
    for i in range(4): o(f"    v_and_b32 v{T+i}, s{sGOFF}, v{Vv+i}")
    for i in range(4): o(f"    v_add_u32 v{T+i}, 0x8000, v{T+i}")
    for i in range(4): o(f"    v_sub_u32_e64 v{T+i}, v{T+i}, v{B+i} clamp")
    for i in range(4): o(f"    v_and_or_b32 v{T+i}, v{T+i}, s{sT1}, v{B+i}")
    for i in range(4): o(f"    v_and_or_b32 v{T+i}, v{Vv+i}, s{sSPIN}, v{T+i}")
    o(f"    ds_write_b128 v10, v[{T}:{T+3}] offset:{jj*64}")
o(f"""    s_waitcnt lgkmcnt(0)
    ds_read_b128 v[44:47], v12
    ds_read_b128 v[48:51], v12 offset:{8*144}
    v_cmp_gt_u32 vcc, 40, v11
    s_mov_b64 s[{sM}:{sM+1}], vcc
    v_cmp_gt_u32 vcc, 32, v11
    s_mov_b64 s[{sM+2}:{sM+3}], vcc
    ; stage w_a|w_u
    s_waitcnt vmcnt(0)
    ds_write_b128 v14, v[120:123]
    ds_write_b128 v14, v[52:55] offset:{64*WROW}
    s_cmp_ge_u32 s3, 12
    s_cbranch_scc1 K_tab_st2
    ds_write_b128 v15, v[56:59]
    ds_write_b128 v15, v[28:31] offset:{64*WROW}
K_tab_st2:
    s_waitcnt lgkmcnt(0)
    s_cmp_ge_u32 s2, 250
    s_cbranch_scc1 K_tab_norows
    s_mov_b64 exec, s[{sM}:{sM+1}]
    s_cbranch_execz K_tab_r1
    buffer_store_dwordx4 v[44:47], v9, s[{rTABW}:{rTABW+3}], s{sSO+2} offen{SCW}
K_tab_r1:
    s_mov_b64 exec, s[{sM+2}:{sM+3}]
    s_cbranch_execz K_tab_r2
    buffer_store_dwordx4 v[48:51], v9, s[{rTABW}:{rTABW+3}], s{sSO+2} offen offset:2048{SCW}
K_tab_r2:
    s_mov_b64 exec, -1
    s_branch K_tab_stored
K_tab_norows:
    s_cmp_lg_u32 s2, 250
    s_cbranch_scc1 K_tab_stored
    s_cmp_lg_u32 s3, 10
    s_cbranch_scc1 K_tab_stored
    v_mov_b32 v44, 0x7f00
    s_mov_b32 s{sT0}, {N*256}
    buffer_store_dword v44, v{vLane4}, s[{rTABW}:{rTABW+3}], s{sT0} offen{SCW}
K_tab_stored:""")
stamp(5)
o("    s_barrier")
stamp(7)
o(f"    ds_read_b64 v[124:125], v{vZ} offset:{LDS_FLG+32}")
vFr, vAcc = 72, 104
for jj in range(2):
    for m in range(2):
        for s_ in range(2):
            f = vFr + ((jj*2+m)*2+s_)*4
            off = m*64*WROW + s_*32*WROW + jj*32
            o(f"    ds_read_b64_tr_b16 v[{f}:{f+1}], v{vTmp+5} offset:{off}")
            o(f"    ds_read_b64_tr_b16 v[{f+2}:{f+3}], v{vTmp+5} offset:{off+4*WROW}")
o(f"""    ; LDS dest: (16*tau + (lane&15))*272 + (32*half + 16*jj + 4*g)*4
    s_lshl_b32 s{sT1}, s{sT2}, 4
    v_add_u32 v9, s{sT1}, v{vJ}
    v_mul_u32_u24 v9, 272, v9
    v_lshl_add_u32 v9, v{vG4}, 4, v9
    s_lshl_b32 s{sT0}, s{sT3}, 7
    v_add_u32 v9, s{sT0}, v9
    v_add_u32 v11, {LDS_U}, v9""")
for k in range(4):
    a_ = vAcc + k*4; f = vFr + k*8
    o(f"    s_waitcnt lgkmcnt({12-4*k})")
    o(f"    v_mfma_f32_16x16x32_bf16 v[{a_}:{a_+3}], v[{f}:{f+3}], v[{vXf2}:{vXf2+3}], 0")
    o(f"    v_mfma_f32_16x16x32_bf16 v[{a_}:{a_+3}], v[{f+4}:{f+7}], v[{vXf2+4}:{vXf2+7}], v[{a_}:{a_+3}]")
o(f"""    s_mov_b32 s{sT0}, {NLOG2E:#x}
    v_mov_b32 v10, 0xc27c0000                  ; -63
    s_nop 7""")
for jj in range(2):
    a_ = vAcc + jj*8
    for i in range(4): o(f"    v_fma_f32 v{a_+i}, v{a_+i}, s{sT0}, v10")
    o(f"    ds_write_b128 v9, v[{a_}:{a_+3}] offset:{LDS_A + jj*64}")
    o(f"    ds_write_b128 v11, v[{a_+4}:{a_+7}] offset:{jj*64}")
o(f"    v_readfirstlane_b32 s{sEP}, v124\n    v_readfirstlane_b32 s{sEP+1}, v125\n    s_nop 3")
tags(False)
o(f"""    ; table-ready signal: the last table wave whose stores have completed publishes one granule per replica
    s_waitcnt vmcnt(0)""")
stamp(6)
o(f"""    s_mov_b64 exec, 1
    ds_add_rtn_u32 v9, v8, v{vOne} offset:{LDS_FLG+8}
    s_mov_b64 exec, -1
    s_waitcnt lgkmcnt(0)
    v_readfirstlane_b32 s{sT0}, v9
    s_nop 3
    s_cmp_lg_u32 s{sT0}, 5
    s_cbranch_scc1 K_poll_setup
    s_add_u32 s{rA}, s{sWS}, {WS_TF:#x}
    s_addc_u32 s{rA+1}, s{sWS+1}, 0
    s_and_b32 s{rA+1}, s{rA+1}, 0xffff
    s_mov_b32 s{rA+2}, {8*2048}
    s_mov_b32 s{rA+3}, 0x20000
    v_lshlrev_b32 v8, 11, v{vLane}
    v_mov_b32 v10, s{sTAGL}
    v_mov_b32 v11, s{sTAGH}
    s_lshl_b32 s{sT0}, s2, 3
    s_mov_b64 exec, 0xff
    buffer_store_dwordx2 v[10:11], v8, s[{rA}:{rA+3}], s{sT0} offen{SC}
    s_mov_b64 exec, -1""")

vG = 72
vEnt, vIdx, vRank = 28, 44, 52
o("K_poll_setup:")
if "sprio" in FL: o("    s_setprio 0")
o(f"""
    v_lshrrev_b32 v8, 4, v0
    v_lshlrev_b32 v8, 9, v8                    ; 4*(t>>4)*128
    s_lshr_b32 s{sT0}, s{sBETA}, 4
    s_lshl_b32 s{sT0}, s{sT0}, 15
    s_and_b32 s{sT1}, s{sBETA}, 15
    s_lshl_b32 s{sT1}, s{sT1}, 3
    s_add_u32 s{sGOFF}, s{sT0}, s{sT1}
    s_mov_b32 s{sSPIN}, 0
    v_mov_b32 v9, 0xff000000
{PRE_SLEEP}{B4B}K_poll:
    buffer_load_dwordx2 v[{vG}:{vG+1}], v8, s[{rOFF}:{rOFF+3}], s{sGOFF} offen{SC}
    buffer_load_dwordx2 v[{vG+2}:{vG+3}], v8, s[{rOFF}:{rOFF+3}], s{sGOFF} offen offset:128{SC}
    buffer_load_dwordx2 v[{vG+4}:{vG+5}], v8, s[{rOFF}:{rOFF+3}], s{sGOFF} offen offset:256{SC}
    buffer_load_dwordx2 v[{vG+6}:{vG+7}], v8, s[{rOFF}:{rOFF+3}], s{sGOFF} offen offset:384{SC}
    s_add_u32 s{sSPIN}, s{sSPIN}, 1
    s_waitcnt vmcnt(0)""")
def tagcheck(d0s, d1s, mask):
    o(f"    v_xor_b32 v{vTmp}, s{sTAGL}, v{d0s[0]}")
    o(f"    v_xor_b32 v{vTmp+1}, s{sTAGL}, v{d0s[1]}")
    o(f"    v_xor_b32 v{vTmp+2}, s{sTAGL}, v{d0s[2]}")
    o(f"    v_xor_b32 v{vTmp+3}, s{sTAGL}, v{d0s[3]}")
    o(f"    v_or3_b32 v{vTmp}, v{vTmp}, v{vTmp+1}, v{vTmp+2}")
    o(f"    v_or_b32 v{vTmp}, v{vTmp}, v{vTmp+3}")
    o(f"    v_and_b32 v{vTmp}, v{mask}, v{vTmp}")
    o(f"    v_xor_b32 v{vTmp+1}, s{sTAGH}, v{d1s[0]}")
    o(f"    v_xor_b32 v{vTmp+2}, s{sTAGH}, v{d1s[1]}")
    o(f"    v_xor_b32 v{vTmp+3}, s{sTAGH}, v{d1s[2]}")
    o(f"    v_xor_b32 v{vTmp+4}, s{sTAGH}, v{d1s[3]}")
    o(f"    v_or3_b32 v{vTmp}, v{vTmp}, v{vTmp+1}, v{vTmp+2}")
    o(f"    v_or3_b32 v{vTmp}, v{vTmp}, v{vTmp+3}, v{vTmp+4}")
    o(f"    v_cmp_ne_u32 vcc, 0, v{vTmp}")
tagcheck([vG, vG+2, vG+4, vG+6], [vG+1, vG+3, vG+5, vG+7], 9)
o(f"""    s_cbranch_vccz K_poll_ok
    s_cmp_ge_u32 s{sSPIN}, {SPIN_MAX}
    s_cbranch_scc1 K_poll_fail
    s_sleep {SLEEP}
    s_branch K_poll
K_poll_fail:""")
for r in range(4): o(f"    v_mov_b32 v{vG+2*r}, 0")
o("K_poll_ok:")
if STAMP: o(f"    v_writelane_b32 v{vST}, s{sSPIN}, 19")
stamp(8)
stampc(18)
vCnt = 80
o(f"""    s_mov_b32 s{sSO}, 0
    s_mov_b32 s{sSO+1}, {CH*8}
    s_mov_b32 s{sSO+2}, {2*CH*8}
    s_mov_b32 s{sSO+3}, {3*CH*8}""")
for r in range(4):
    T = vG + 2*r
    o(f"""    v_bfe_u32 v{vCnt+r}, v{T}, 12, 12          ; count
    v_and_b32 v{vCnt+4+r}, 0xfff, v{T}
    v_add_u32 v{vCnt+4+r}, v{vCnt+4+r}, v{vJ}
    v_cmp_gt_u32 s[{sM+4*r}:{sM+4*r+1}], v{vCnt+r}, v{vJ}
    v_lshl_add_u32 v{vCnt+4+r}, v{vCnt+4+r}, 3, v{vSeg}""")
for r in range(4):
    o(f"""    s_mov_b64 exec, s[{sM+4*r}:{sM+4*r+1}]
    buffer_load_dwordx2 v[{vEnt+4*r}:{vEnt+4*r+1}], v{vCnt+4+r}, s[{rCH}:{rCH+3}], s{sSO+r} offen{SCE}""")
o(f"""    s_mov_b64 exec, -1
    v_lshrrev_b32 v12, 4, v0
    v_add_u32 v12, s{sSB}, v12
    v_lshlrev_b32 v12, 7, v12
    v_lshl_add_u32 v12, v{vJ}, 3, v12
    v_lshlrev_b32 v13, 1, v{vLane}
    buffer_load_ushort v{vWc}, v13, s[{rC}:{rC+3}], 0 offen
    buffer_load_dwordx2 v[{vXe}:{vXe+1}], v12, s[{rX}:{rX+3}], 0 offen
    v_max3_u32 v{vTmp}, v{vCnt}, v{vCnt+1}, v{vCnt+2}
    v_max_u32 v{vTmp}, v{vTmp}, v{vCnt+3}
    v_cmp_lt_u32 vcc, 16, v{vTmp}
    s_mov_b64 s[{sBIG}:{sBIG+1}], vcc
    s_cbranch_vccz K_nok1""")
for r in range(4):
    o(f"""    v_cmp_gt_u32 s[{sM+4*r+2}:{sM+4*r+3}], v{vCnt+r}, v{vJ16}""")
o("    s_nop 1")
for r in range(4):
    o(f"""    s_mov_b64 exec, s[{sM+4*r+2}:{sM+4*r+3}]
    s_cbranch_execz K_nok1_{r}
    buffer_load_dwordx2 v[{vEnt+4*r+2}:{vEnt+4*r+3}], v{vCnt+4+r}, s[{rCH}:{rCH+3}], s{sSO+r} offen offset:128{SCE}
K_nok1_{r}:""")
o(f"""    s_mov_b64 exec, -1
    v_cmp_lt_u32 vcc, 32, v{vTmp}
    s_cbranch_vccz K_nok1
    v_mov_b32 v{vTmp}, 0
    ds_write_b32 v{vTmp}, v{vOne} offset:{LDS_FLG}
K_nok1:
    s_waitcnt vmcnt(0)
    v_lshlrev_b32 v{vWc}, 16, v{vWc}
    v_mul_f32 v{vWc}, {NLOG2E:#x}, v{vWc}""")
stamp(9)
def slots(ks): return [r*2+k for r in range(4) for k in ks]
def hist(es):
    for e in es:
        d0 = vEnt + 2*e
        o(f"    v_lshlrev_b32 v{vIdx+e}, 2, v{d0}")
        o(f"    v_subrev_u32 v{vIdx+e}, s{sSB4}, v{vIdx+e}")
        o(f"    v_and_b32 v{vIdx+e}, 0xfc, v{vIdx+e}")
        o(f"    s_mov_b64 exec, s[{sM+2*e}:{sM+2*e+1}]")
        o(f"    ds_add_rtn_u32 v{vRank+e}, v{vIdx+e}, v{vOne} offset:{LDS_CNT2}")
        o(f"    s_mov_b64 exec, -1")
hist(slots([0]))
o(f"    s_cmp_eq_u64 s[{sBIG}:{sBIG+1}], 0\n    s_cbranch_scc1 K_noh1")
hist(slots([1]))
o(f"""K_noh1:
    s_waitcnt lgkmcnt(0)
    s_barrier""")
stamp(10)
o(f"""    ds_read_b32 v{vInc}, v{vLane4} offset:{LDS_CNT2}
    v_mov_b32 v{vTmp}, 0
    ds_read_b32 v{vTmp+1}, v{vTmp} offset:{LDS_FLG}
    v_lshlrev_b32 v100, 5, v{vLane}
    v_mov_b32 v101, 0xff000000
    s_cmp_lg_u32 s3, 15
    s_cbranch_scc1 K_notf0
    s_add_u32 s{rB}, s{sWS}, {WS_TF:#x}
    s_addc_u32 s{rB+1}, s{sWS+1}, 0
    s_and_b32 s{rB+1}, s{rB+1}, 0xffff
    s_mov_b32 s{rB+2}, {8*2048}
    s_mov_b32 s{rB+3}, 0x20000
    s_and_b32 s{sT3}, s2, 7
    s_lshl_b32 s{sT3}, s{sT3}, 11
    s_mov_b32 s{sSPIN}, 0
    buffer_load_dwordx4 v[88:91], v100, s[{rB}:{rB+3}], s{sT3} offen{SC}
    buffer_load_dwordx4 v[92:95], v100, s[{rB}:{rB+3}], s{sT3} offen offset:16{SC}
K_notf0:""")
if PREF:
    o(f"""    ; pull this workgroup's share of the table into the L2 of its die (speed only)
    s_lshr_b32 s{sT0}, s2, 3
    s_mul_i32 s{sT0}, s{sT0}, {16*5*1024}
    s_mul_i32 s{sT1}, s3, {5*1024}
    s_add_u32 s{sT0}, s{sT0}, s{sT1}
    v_lshlrev_b32 v8, 4, v{vLane}""")
    for i in range(5):
        o(f"    buffer_load_dwordx4 v[100:103], v8, s[{rTABW}:{rTABW+3}], s{sT0} offen offset:{(i%4)*1024}{SC}" if i < 4 else
          f"    s_add_u32 s{sT0}, s{sT0}, 4096\n    buffer_load_dwordx4 v[100:103], v8, s[{rTABW}:{rTABW+3}], s{sT0} offen{SC}")
o(f"""    ; workgroup 0 records this launch's epoch (all workgroups have read the old one by now)
    s_or_b32 s{sT0}, s2, s3
    s_cmp_lg_u32 s{sT0}, 0
    s_cbranch_scc1 K_noep
    s_add_u32 s{rA}, s{sWS}, {WS_EP:#x}
    s_addc_u32 s{rA+1}, s{sWS+1}, 0
    s_and_b32 s{rA+1}, s{rA+1}, 0xffff
    s_mov_b32 s{rA+2}, 8
    s_mov_b32 s{rA+3}, 0x20000
    v_mov_b32 v8, s{sEP}
    v_mov_b32 v9, s{sEP+1}
    s_mov_b64 exec, 1
    buffer_store_dwordx2 v[8:9], v{vTmp}, s[{rA}:{rA+3}], 0 offen
    s_mov_b64 exec, -1
K_noep:
    s_waitcnt lgkmcnt(0)
    v_add_u32 v{vInc}, 3, v{vInc}
    v_readfirstlane_b32 s{sT0}, v{vTmp+1}
    v_lshrrev_b32 v{vInc}, 2, v{vInc}
    v_mov_b32 v{vBase}, v{vInc}""")
fill = [f"v_and_b32 v{vEnt+2*e}, 0xffffff00, v{vEnt+2*e}" for e in range(8)] + \
       [f"s_lshl_b32 s{sT2}, 1, s3", f"v_mov_b32 v{vTmp+2}, s{sT2}"]
wave_scan(vInc, fill)
vPos = 80
o(f"""    v_sub_u32 v{vTmp+3}, v{vInc}, v{vBase}
    v_lshlrev_b32 v{vBase}, 2, v{vTmp+3}
    v_readlane_b32 s{sQ}, v{vInc}, 63
    s_cmp_lg_u32 s{sT0}, 0
    s_cbranch_scc1 K_slow""")
for e in slots([0]): o(f"    ds_bpermute_b32 v{vPos+e}, v{vIdx+e}, v{vBase}")
o(f"""    s_cmp_gt_u32 s{sQ}, {CAPQ}
    s_cbranch_scc1 K_slow
    s_mul_i32 s{sQ0}, s{sQ}, s3
    s_lshr_b32 s{sQ0}, s{sQ0}, 4
    s_add_u32 s{sT0}, s3, 1
    s_mul_i32 s{sQ1}, s{sQ}, s{sT0}
    s_lshr_b32 s{sQ1}, s{sQ1}, 4
    v_cmp_ge_u32 vcc, s{sQ0}, v{vInc}
    s_bcnt1_i32_b64 s{sNODE}, vcc
    v_cmp_lt_u32 s[{rA}:{rA+1}], s{sQ0}, v{vInc}
    v_cmp_gt_u32 s[{rA+2}:{rA+3}], s{sQ1}, v{vTmp+3}
    v_cmp_gt_u32 vcc, v{vInc}, v{vTmp+3}
    v_readlane_b32 s{sBND}, v{vInc}, s{sNODE}
    s_and_b64 s[{rA}:{rA+1}], s[{rA}:{rA+1}], s[{rA+2}:{rA+3}]
    s_and_b64 s[{rA}:{rA+1}], s[{rA}:{rA+1}], vcc
    s_cmp_lt_u32 s{sQ0}, s{sQ1}
    s_cselect_b64 exec, s[{rA}:{rA+1}], 0
    ds_or_b32 v{vLane4}, v{vTmp+2} offset:{LDS_MSK}
    s_mov_b64 exec, -1
    s_waitcnt lgkmcnt(0)""")
def place(es, bperm):
    if bperm:
        for e in es: o(f"    ds_bpermute_b32 v{vPos+e}, v{vIdx+e}, v{vBase}")
        o("    s_waitcnt lgkmcnt(0)")
    for e in es: o(f"    v_add_lshl_u32 v{vPos+e}, v{vPos+e}, v{vRank+e}, 2")
    for e in es:
        d0 = vEnt + 2*e
        o(f"    s_mov_b64 exec, s[{sM+2*e}:{sM+2*e+1}]")
        o(f"    ds_write_b32 v{vPos+e}, v{d0} offset:{LDS_O}")
        o(f"    ds_write_b32 v{vPos+e}, v{d0+1} offset:{LDS_E}")
    o(f"    s_mov_b64 exec, -1")
place(slots([0]), False)
o(f"    s_cmp_eq_u64 s[{sBIG}:{sBIG+1}], 0\n    s_cbranch_scc1 K_nop1")
place(slots([1]), True)
PT = [int(x) for x in opt('pt', '4-7-9').split('-')]
NOPS = [int(x) for x in opt('nops', '').split('-') if x]
NOPPOS = int(opt('noppos', 0))
vA, vAn, vDen, vNum, vAA, vLA, vSL = 8, 9, 10, 12, 14, 15, 27
vO = 16
vE = [20, 28]
RING = int(opt('ring', 4))
vDr = [32, 36, 40, 44] if RING == 4 else [72 + 4*i for i in range(RING)]
vU, vAa, vP, vS_, vQ, vR = 48, 52, 56, 58, 62, 64
vF = 66
o(f"""K_nop1:
    s_mul_i32 s{sT0}, s{sNODE}, 272
    v_add_u32 v{vAA}, s{sT0}, v{vLane4}
    s_add_u32 s{sT1}, s{sNODE}, s3
    s_lshl_b32 s{sT1}, s{sT1}, 9
    v_add_u32 v{vSL}, s{sT1}, v{vLane4}
    s_lshl_b32 s{sT0}, s{sQ0}, 4
    v_mov_b32 v{vLA}, s{sT0}
    ds_read_b32 v{vA}, v{vAA} offset:{LDS_A}
    ds_read_b32 v{vAn}, v{vAA} offset:{LDS_A+272}
    s_min_u32 s{sSTOP}, s{sBND}, s{sQ1}
    s_sub_u32 s{sREM}, s{sSTOP}, s{sQ0}
    s_mov_b32 s{sC63}, 0x5f000000                ; 2^63
    s_mov_b32 s{sC63+1}, 0x5f000000
    s_mov_b32 s{sSEL}, 0x00003f80
    s_mov_b32 s{sIT}, 0
    v_mov_b64 v[{vDen}:{vDen+1}], 0
    v_mov_b64 v[{vNum}:{vNum+1}], 0
    s_cmp_lg_u32 s3, {99 if 'notf' in FL else 15}
    s_cbranch_scc1 K_notf
    s_branch K_tfchk
K_tfpoll:
    buffer_load_dwordx4 v[88:91], v100, s[{rB}:{rB+3}], s{sT3} offen{SC}
    buffer_load_dwordx4 v[92:95], v100, s[{rB}:{rB+3}], s{sT3} offen offset:16{SC}
K_tfchk:
    s_add_u32 s{sSPIN}, s{sSPIN}, 1
    s_waitcnt vmcnt(0)""")
tagcheck([88, 90, 92, 94], [89, 91, 93, 95], 101)
o(f"""    s_cbranch_vccz K_notf
    s_cmp_ge_u32 s{sSPIN}, {SPIN_MAX}
    s_cbranch_scc1 K_notf
    s_sleep 1
    s_branch K_tfpoll
K_notf:
    s_waitcnt lgkmcnt(0)
    s_barrier""")
stamp(11)
stampc(14)
o(f"""    s_cmp_ge_u32 s{sQ0}, s{sQ1}
    s_cbranch_scc1 K_main_done
    s_setprio 3""")
scr = [32, 36, 40, 44, 48, 52, 56] if RING > 4 else [vO, vU, vAa]
for j in range(RING-1): o(f"    ds_read_b128 v[{scr[j]}:{scr[j]+3}], v{vLA} offset:{LDS_O+16*j}")
o(f"    ds_read_b128 v[{vE[0]}:{vE[0]+3}], v{vLA} offset:{LDS_E}")
for j in range(RING-1):
    o(f"    s_waitcnt lgkmcnt({RING-1-j})")
    for i in range(4): o(f"    buffer_load_dword v{vDr[j]+i}, v{scr[j]+i}, s[{rTAB}:{rTAB+3}], 0 offen{SC}")
o(f"    ds_read_b128 v[{vO}:{vO+3}], v{vLA} offset:{LDS_O+16*(RING-1)}")
o(".p2align 3")
o("K_loop:")
for k in range(RING):
    e = vE[k%2]; en = vE[(k+1)%2]; Dk = vDr[k]; Dn = vDr[(k+RING-1)%RING]
    o(f"    s_waitcnt lgkmcnt(0)")
    o(f"    s_sub_u32 s{sREM}, s{sREM}, 1")
    for i in range(4):
        o(f"    buffer_load_dword v{Dn+i}, v{vO+i}, s[{rTAB}:{rTAB+3}], 0 offen{SC}")
    o(f"    ds_read_b128 v[{vO}:{vO+3}], v{vLA} offset:{LDS_O+16*(k+RING)}")
    o(f"    ds_read_b128 v[{en}:{en+3}], v{vLA} offset:{LDS_E+16*(k+1)}")
    o(f"    s_cbranch_scc1 K_h{k}")
    o(f"K_r{k}:")
    o(f"    s_waitcnt vmcnt({4*(RING-1)})")
    o(f"    v_pk_fma_f32 v[{vU}:{vU+1}], v[{e}:{e+1}], v[{vWc}:{vWc+1}], v[{vA}:{vA+1}] op_sel_hi:[1,0,0]")
    o(f"    v_pk_fma_f32 v[{vU+2}:{vU+3}], v[{e+2}:{e+3}], v[{vWc}:{vWc+1}], v[{vA}:{vA+1}] op_sel_hi:[1,0,0]")
    for i in range(4): o(f"    v_dot2c_f32_bf16 v{vU+i}, s{sSEL}, v{Dk+i}")
    if NOPS and NOPPOS == 1:
        for z in NOPS: o(f"    s_nop {z}")
    for i in range(4): o(f"    v_exp_f32_e64 v{vU+i}, v{vU+i} clamp")
    if NOPS and NOPPOS == 2:
        for z in NOPS: o(f"    s_nop {z}")
    o(f"    v_pk_fma_f32 v[{vAa}:{vAa+1}], v[{vU}:{vU+1}], s[{sC63}:{sC63+1}], 1.0 op_sel_hi:[1,0,0]")
    o(f"    v_pk_fma_f32 v[{vAa+2}:{vAa+3}], v[{vU+2}:{vU+3}], s[{sC63}:{sC63+1}], 1.0 op_sel_hi:[1,0,0]")
    if NOPS and NOPPOS == 0:
        for z in NOPS: o(f"    s_nop {z}")
    o(f"    v_pk_mul_f32 v[{vP}:{vP+1}], v[{vAa}:{vAa+1}], v[{vAa+2}:{vAa+3}]")
    o(f"    v_pk_add_f32 v[{vS_}:{vS_+1}], v[{vAa}:{vAa+1}], v[{vAa+2}:{vAa+3}]")
    o(f"    v_rcp_f32 v{vR}, v{vP}")
    o(f"    v_rcp_f32 v{vR+1}, v{vP+1}")
    o(f"    v_pk_mul_f32 v[{vQ}:{vQ+1}], v[{vAa+2}:{vAa+3}], v[{Dk}:{Dk+1}]")
    o(f"    v_pk_fma_f32 v[{vQ}:{vQ+1}], v[{vAa}:{vAa+1}], v[{Dk+2}:{Dk+3}], v[{vQ}:{vQ+1}]")
    o(f"    v_pk_fma_f32 v[{vDen}:{vDen+1}], v[{vS_}:{vS_+1}], v[{vR}:{vR+1}], v[{vDen}:{vDen+1}]")
    o(f"    v_pk_fma_f32 v[{vNum}:{vNum+1}], v[{vQ}:{vQ+1}], v[{vR}:{vR+1}], v[{vNum}:{vNum+1}]")
o(f"""    v_add_u32 v{vLA}, {16*RING}, v{vLA}
    s_add_u32 s{sIT}, s{sIT}, 1
    s_cmp_eq_u32 s{sIT}, {PT[0]}
    s_cbranch_scc1 K_p2
    s_cmp_eq_u32 s{sIT}, {PT[1]}
    s_cbranch_scc1 K_p1
    s_cmp_eq_u32 s{sIT}, {PT[2]}
    s_cbranch_scc0 K_loop
    s_setprio 0
    s_branch K_loop
K_p2:
    s_setprio 2
    s_branch K_loop
K_p1:
    s_setprio 1
    s_branch K_loop""")
for k in range(RING):
    o(f"""K_h{k}:
    v_add_f32 v{vF}, v{vDen}, v{vDen+1}
    v_add_f32 v{vF+1}, v{vNum}, v{vNum+1}
    s_add_u32 s{sNODE}, s{sNODE}, 1
    ds_write_b32 v{vSL}, v{vF} offset:{LDS_SL}
    ds_write_b32 v{vSL}, v{vF+1} offset:{LDS_SL+256}
    s_cmp_ge_u32 s{sSTOP}, s{sQ1}
    s_cbranch_scc1 K_main_done
    v_readlane_b32 s{sBND}, v{vInc}, s{sNODE}
    v_mov_b64 v[{vDen}:{vDen+1}], 0
    v_mov_b64 v[{vNum}:{vNum+1}], 0
    v_mov_b32 v{vA}, v{vAn}
    v_add_u32 v{vAA}, 272, v{vAA}
    v_add_u32 v{vSL}, 512, v{vSL}
    s_cmp_eq_u32 s{sBND}, s{sSTOP}
    s_cbranch_scc1 K_hs{k}
    ds_read_b32 v{vAn}, v{vAA} offset:{LDS_A+272}
K_hr{k}:
    s_mov_b32 s{sT0}, s{sSTOP}
    s_min_u32 s{sSTOP}, s{sBND}, s{sQ1}
    s_sub_u32 s{sREM}, s{sSTOP}, s{sT0}
    s_sub_u32 s{sREM}, s{sREM}, 1
    s_branch K_r{k}
K_hs{k}:
    s_add_u32 s{sNODE}, s{sNODE}, 1
    v_readlane_b32 s{sBND}, v{vInc}, s{sNODE}
    v_add_u32 v{vAA}, 272, v{vAA}
    v_add_u32 v{vSL}, 512, v{vSL}
    s_nop 1
    s_cmp_eq_u32 s{sBND}, s{sSTOP}
    s_cbranch_scc1 K_hs{k}
    ds_read_b32 v{vA}, v{vAA} offset:{LDS_A}
    ds_read_b32 v{vAn}, v{vAA} offset:{LDS_A+272}
    s_waitcnt lgkmcnt(0)
    s_branch K_hr{k}""")

sP, sCNT, sPOS, sN, sEN = 4, 5, 6, 7, 8
o(f"""K_slow:
    s_add_u32 s{rB}, s{sWS}, {WS_TF:#x}
    s_addc_u32 s{rB+1}, s{sWS+1}, 0
    s_and_b32 s{rB+1}, s{rB+1}, 0xffff
    s_mov_b32 s{rB+2}, {8*2048}
    s_mov_b32 s{rB+3}, 0x20000
    s_and_b32 s{sT3}, s2, 7
    s_lshl_b32 s{sT3}, s{sT3}, 11
    v_lshlrev_b32 v100, 5, v{vLane}
    v_mov_b32 v101, 0xff000000
    s_mov_b32 s{sSPIN}, 0
K_s_tf:
    buffer_load_dwordx4 v[88:91], v100, s[{rB}:{rB+3}], s{sT3} offen{SC}
    buffer_load_dwordx4 v[92:95], v100, s[{rB}:{rB+3}], s{sT3} offen offset:16{SC}
    s_add_u32 s{sSPIN}, s{sSPIN}, 1
    s_waitcnt vmcnt(0)""")
tagcheck([88, 90, 92, 94], [89, 91, 93, 95], 101)
o(f"""    s_cbranch_vccz K_s_go
    s_cmp_ge_u32 s{sSPIN}, {SPIN_MAX}
    s_cbranch_scc1 K_s_go
    s_sleep 4
    s_branch K_s_tf
K_s_go:
    s_mov_b32 s{sC63}, 0x5f000000
    s_mov_b32 s{sSEL}, 0x00003f80
    s_mov_b32 s{sN}, s3
    v_mov_b32 v{vTmp}, 0
K_s_node:
    s_mov_b32 s{sT3}, 1
    s_cmp_ge_u32 s{sN}, s{sNB}
    s_cbranch_scc1 K_main_done2
    s_mul_i32 s{sT0}, s{sN}, 272
    v_add_u32 v{vAA}, s{sT0}, v{vLane4}
    ds_read_b32 v{vA}, v{vAA} offset:{LDS_A}
    v_mov_b32 v{vDen}, 0
    v_mov_b32 v{vNum}, 0
    s_mov_b32 s{sP}, 0
    s_waitcnt lgkmcnt(0)
K_s_prod:
    s_lshl_b32 s{sT0}, s{sP}, 7
    s_add_u32 s{sT0}, s{sT0}, s{sGOFF}
    buffer_load_dword v{vU}, v{vTmp}, s[{rOFF}:{rOFF+3}], s{sT0} offen{SC}
    s_waitcnt vmcnt(0)
    v_readfirstlane_b32 s{sCNT}, v{vU}
    s_nop 3
    s_and_b32 s{sPOS}, s{sCNT}, 0xfff
    s_bfe_u32 s{sCNT}, s{sCNT}, 0xc000c
    s_mul_i32 s{sT0}, s{sP}, {CH}
    s_add_u32 s{sPOS}, s{sPOS}, s{sT0}
    s_lshl_b32 s{sPOS}, s{sPOS}, 3
K_s_ent:
    s_cmp_eq_u32 s{sCNT}, 0
    s_cbranch_scc1 K_s_prod_next
    buffer_load_dwordx2 v[{vU}:{vU+1}], v{vTmp}, s[{rCH}:{rCH+3}], s{sPOS} offen{SC}
    s_waitcnt vmcnt(0)
    v_readfirstlane_b32 s{sEN}, v{vU}
    s_nop 3
    s_sub_u32 s{sT0}, s{sEN}, s{sSB}
    s_and_b32 s{sT0}, s{sT0}, 63
    s_cmp_lg_u32 s{sT0}, s{sN}
    s_cbranch_scc1 K_s_ent_next
    s_and_b32 s{sT0}, s{sEN}, 0xffffff00
    buffer_load_dword v{vU+2}, off, s[{rTAB}:{rTAB+3}], s{sT0}{SC}
    v_fma_f32 v{vU}, v{vU+1}, v{vWc}, v{vA}
    s_waitcnt vmcnt(0)
    v_dot2c_f32_bf16 v{vU}, s{sSEL}, v{vU+2}
    s_nop 2
    v_exp_f32_e64 v{vU}, v{vU} clamp
    s_nop 0
    v_fma_f32 v{vU}, v{vU}, s{sC63}, 1.0
    v_rcp_f32 v{vU}, v{vU}
    s_nop 0
    v_add_f32 v{vDen}, v{vDen}, v{vU}
    v_fmac_f32 v{vNum}, v{vU}, v{vU+2}
K_s_ent_next:
    s_add_u32 s{sPOS}, s{sPOS}, 8
    s_sub_u32 s{sCNT}, s{sCNT}, 1
    s_branch K_s_ent
K_s_prod_next:
    s_add_u32 s{sP}, s{sP}, 1
    s_cmp_lt_u32 s{sP}, {NB}
    s_cbranch_scc1 K_s_prod
    s_lshl_b32 s{sT0}, s{sN}, 9
    v_add_u32 v{vF+2}, s{sT0}, v{vLane4}
    ds_write_b32 v{vF+2}, v{vDen} offset:{LDS_SL}
    ds_write_b32 v{vF+2}, v{vNum} offset:{LDS_SL+256}
    s_lshl_b32 s{sT0}, s{sN}, 2
    v_mov_b32 v{vF+3}, s{sT0}
    s_mov_b64 exec, 1
    ds_write_b32 v{vF+3}, v{vOne} offset:{LDS_MSK}
    s_mov_b64 exec, -1
    s_add_u32 s{sN}, s{sN}, 16
    s_branch K_s_node""")

eN, eC, eM, eW, eAd = 8, 9, 10, 11, 12
eDen, eNum, eT0, eT1, eU = 16, 20, 28, 32, 36
OUTF = (" " + opt("outf", "").replace("+", " ")).rstrip()
def slot_addrs():
    o(f"""    v_ffbl_b32 v{eW}, v{eM}
    v_cmp_ne_u32 vcc, 0, v{eM}
    v_lshl_add_u32 v{eW}, v{eW}, 9, v14
    v_add_u32 v33, -1, v{eM}
    v_cndmask_b32 v15, v35, v{eW}, vcc
    v_and_b32 v{eM}, v{eM}, v33
    v_ffbl_b32 v{eW}, v{eM}
    v_cmp_ne_u32 vcc, 0, v{eM}
    v_lshl_add_u32 v{eW}, v{eW}, 9, v14
    v_add_u32 v33, -1, v{eM}
    v_cndmask_b32 v34, v35, v{eW}, vcc
    v_and_b32 v{eM}, v{eM}, v33""")
o(f"""K_main_done:
    s_mov_b32 s{sT3}, 0
K_main_done2:
    s_setprio 0
    s_waitcnt vmcnt(0) lgkmcnt(0)
    s_cmp_ge_u32 s3, 10
    s_cbranch_scc1 K_e_wait
    v_lshrrev_b32 v{eN}, 4, v0
    v_and_b32 v{eC}, 15, v0
    v_lshlrev_b32 v{eAd}, 2, v{eN}
    ds_read_b32 v{eM}, v{eAd} offset:{LDS_MSK}
    v_mul_u32_u24 v13, 272, v{eN}
    v_lshl_add_u32 v13, v{eC}, 4, v13
    v_add_u32 v13, {LDS_U}, v13
    ds_read_b128 v[{eU}:{eU+3}], v13
    v_lshlrev_b32 v{eT0}, 16, v{vXe}
    v_and_b32 v{eT0+1}, 0xffff0000, v{vXe}
    v_lshlrev_b32 v{eT0+2}, 16, v{vXe+1}
    v_and_b32 v{eT0+3}, 0xffff0000, v{vXe+1}
    v_lshlrev_b32 v14, 4, v{eC}
    v_add_u32 v35, {LDS_ZS}, v14
    v_lshl_add_u32 v14, v{eN}, 9, v14
    v_add_u32 v14, {LDS_SL}, v14
    v_mov_b32 v13, v{eAd}
    v_add_u32 v{eAd}, s{sSB}, v{eN}
    v_lshlrev_b32 v{eAd}, 7, v{eAd}
    v_lshl_add_u32 v{eAd}, v{eC}, 3, v{eAd}
    s_waitcnt lgkmcnt(0)""")
slot_addrs()
o("K_e_wait:")
stamp(12)
stampc(15)
o(f"""    s_barrier
    s_cmp_ge_u32 s3, 10
    s_cbranch_scc1 K_exit
    s_cmp_eq_u32 s{sT3}, 0
    s_cbranch_scc1 K_e_fast
    ds_read_b32 v{eM}, v13 offset:{LDS_MSK}
    s_waitcnt lgkmcnt(0)""")
slot_addrs()
o(f"""K_e_fast:
    ds_read_b128 v[{eDen}:{eDen+3}], v15
    ds_read_b128 v[{eNum}:{eNum+3}], v15 offset:256
    ds_read_b128 v[40:43], v34
    ds_read_b128 v[44:47], v34 offset:256
    s_waitcnt lgkmcnt(0)
K_e_loop:
    v_pk_add_f32 v[{eDen}:{eDen+1}], v[{eDen}:{eDen+1}], v[40:41]
    v_pk_add_f32 v[{eDen+2}:{eDen+3}], v[{eDen+2}:{eDen+3}], v[42:43]
    v_pk_add_f32 v[{eNum}:{eNum+1}], v[{eNum}:{eNum+1}], v[44:45]
    v_pk_add_f32 v[{eNum+2}:{eNum+3}], v[{eNum+2}:{eNum+3}], v[46:47]
    v_cmp_ne_u32 vcc, 0, v{eM}
    s_cbranch_vccz K_e_end
    v_ffbl_b32 v{eW}, v{eM}
    v_lshl_add_u32 v{eW}, v{eW}, 9, v14
    v_add_u32 v33, -1, v{eM}
    v_cndmask_b32 v34, v35, v{eW}, vcc
    v_and_b32 v{eM}, v{eM}, v33
    ds_read_b128 v[40:43], v34
    ds_read_b128 v[44:47], v34 offset:256
    s_waitcnt lgkmcnt(0)
    s_branch K_e_loop
K_e_end:""")
for i in range(4): o(f"    v_add_f32 v{eDen+i}, 0x358637bd, v{eDen+i}")
for i in range(4): o(f"    v_rcp_f32 v{eDen+i}, v{eDen+i}")
o(f"    v_cmp_gt_u32 vcc, s{sNB}, v{eN}")
for i in range(4): o(f"    v_fma_f32 v{eU+i}, v{eNum+i}, v{eDen+i}, v{eU+i}")
for i in range(4): o(f"    v_max_f32 v{eU+i}, 0, v{eU+i}")
for i in range(4): o(f"    v_add_f32 v{eU+i}, v{eU+i}, v{eT0+i}")
o(f"""    v_cvt_pk_bf16_f32 v{eT1}, v{eU}, v{eU+1}
    v_cvt_pk_bf16_f32 v{eT1+1}, v{eU+2}, v{eU+3}
    s_and_saveexec_b64 s[{sSAVE}:{sSAVE+1}], vcc
    s_cbranch_execz K_exit
    buffer_store_dwordx2 v[{eT1}:{eT1+1}], v{eAd}, s[{rOUT}:{rOUT+3}], 0 offen{OUTF}
K_exit:""")
if STAMP:
    o("    s_mov_b64 exec, -1\n    s_waitcnt vmcnt(0)")
    stamp(13)
    stamp_flush()
o("K_done:\n    s_endpgm")
o(f""".section .rodata,"a"
.p2align 6
.amdhsa_kernel {NAME}
  .amdhsa_next_free_vgpr 128
  .amdhsa_next_free_sgpr 102
  .amdhsa_accum_offset 128
  .amdhsa_group_segment_fixed_size 0
  .amdhsa_kernarg_size 96
  .amdhsa_user_sgpr_count 2
  .amdhsa_user_sgpr_kernarg_segment_ptr 1
  .amdhsa_system_sgpr_workgroup_id_x 1
  .amdhsa_dx10_clamp 0
.end_amdhsa_kernel""")
print("\n".join(L))
```

```python
import sys
FL = set(sys.argv[1].split(',')) if len(sys.argv) > 1 else set()
LIGHT = "light" in FL
STAMP = "stamp" in FL or LIGHT
PREF = "nopref" not in FL
NAME = "standalone__edge_featured_mpnn_gatedgcn__graph_kernel"

LSET = {0, 13}
for f_ in FL:
    if f_.startswith('st='): LSET |= {int(x) for x in f_[3:].split('-')}
L = []
def o(s=""): L.append(s)

N, D, E = 10000, 64, 640000
NB = 256
CH = E // NB
BMUL = 26843
WS_T = 0
T_BYTES = (N+1)*256
WS_O = 0x280000
O_BYTES = NB*NB*8
WS_C = 0x300000
C_BYTES = NB*CH*8
WS_EP = 0x7F0000
WS_TF = 0x7F1000
WS_STAMP = 0x800000
NLOG2E = 0xBFB8AA3B
WROW = 144
SPIN_MAX = 5000000
SPIN_LDS = 20000000
SC = " sc1"
def opt(name, default):
    for f in FL:
        if f.startswith(name + "="): return f.split("=")[1]
    return default
SLEEP = int(opt("sleep", 1))
B4B = "    s_barrier\n" if "b4b" in FL else ""
PRE_SLEEP = ("    s_sleep %s\n" % opt("presleep", "")) if opt("presleep", "") else ""
SCW = " " + opt("stf", "sc1").replace("+", " ")
SCE = " " + opt("ldf", "sc1").replace("+", " ")

LDS_CNT2, LDS_MSK, LDS_FLG = 0, 256, 512
LDS_CNT1, LDS_BASE1 = 768, 1792
LDS_O = 2816
LDS_E = LDS_O + 12800
LDS_A = LDS_E + 12800
LDS_SL = LDS_A + 48*272
LDS_U = LDS_SL + 56*512
LDS_W2 = LDS_U + 48*272
LDS_W1 = LDS_W2 + 2*64*WROW
LDS_ZS = LDS_W1 + 2*64*WROW
LDS_TOT = LDS_ZS + 512
LDS_SORT = LDS_SL
CAPQ = 768
assert LDS_SORT + CH*8 + 16 < 65536

def srd(dst, base, nrec, w3=0x20000, stride=0, off=0):
    if off:
        o(f"    s_add_u32 s{dst}, s{base}, {off:#x}")
        o(f"    s_addc_u32 s{dst+1}, s{base+1}, 0")
        o(f"    s_and_b32 s{dst+1}, s{dst+1}, 0xffff")
    else:
        o(f"    s_mov_b32 s{dst}, s{base}")
        o(f"    s_and_b32 s{dst+1}, s{base+1}, 0xffff")
    if stride: o(f"    s_or_b32 s{dst+1}, s{dst+1}, {stride<<16:#x}")
    o(f"    s_mov_b32 s{dst+2}, {nrec:#x}")
    o(f"    s_mov_b32 s{dst+3}, {w3:#x}")

SCAN = ("row_shr:1 row_mask:0xf bank_mask:0xf bound_ctrl:1", "row_shr:2 row_mask:0xf bank_mask:0xf bound_ctrl:1",
        "row_shr:4 row_mask:0xf bank_mask:0xf bound_ctrl:1", "row_shr:8 row_mask:0xf bank_mask:0xf bound_ctrl:1",
        "row_bcast:15 row_mask:0xa bank_mask:0xf", "row_bcast:31 row_mask:0xc bank_mask:0xf")
def wave_scan(v, fill=()):
    fill = list(fill)
    for ctl in SCAN:
        if len(fill) >= 2:
            o("    " + fill.pop(0)); o("    " + fill.pop(0))
        else:
            o("    s_nop 1")
        o(f"    v_add_u32_dpp v{v}, v{v}, v{v} {ctl}")
    for f in fill: o("    " + f)

sX, sEA, sSRC, sDST = 4, 6, 8, 10
sWA, sWB, sWC, sWU = 12, 14, 16, 18
sWV, sOUT = 20, 22
sWS = 24
sEP = 26
rA, rB, rC = 28, 32, 36
rX, rOFF, rCH, rTAB, rTABW, rOUT = 40, 44, 48, 52, 56, 60
sSB, sNB, sSB4 = 64, 65, 66
sT0, sT1, sT2, sT3 = 67, 68, 69, 70
sM = 72
sV625 = 72
sBIG = 88
sSO = 90
sTAGL, sTAGH = 94, 95
sSAVE = 96
sSPIN = 98
sGOFF = 99
sBETA = 71
sSTMP = 100
sQ, sQ0, sQ1, sNODE, sBND, sSTOP, sREM = 4, 5, 6, 7, 8, 9, 10
sC63, sSEL, sIT = 12, 14, 15

vLane, vT16, vLane4, vJ, vJ16, vSeg, vG4 = 1, 3, 4, 5, 6, 7, 2
vXe, vWc = 24, 26
vOne = 60
vTmp = 62
vInc, vBase = 70, 71
vST = 127
vZ = 61

DBG = "dbg" in FL
DBGMAP = {0: 0, 4: 1, 7: 2, 8: 3, 10: 4, 11: 5, 12: 6, 13: 7}
DBGN = [0]
def dbgstamp(idx, pre):
    if idx not in DBGMAP: return
    DBGN[0] += 1
    lab = f"K_dbg{DBGN[0]}"
    if not pre:
        o(f"    s_memrealtime s[{sSTMP}:{sSTMP+1}]")
        o(f"    s_waitcnt lgkmcnt(0)")
    o(f"""    s_cmp_lg_u32 s3, 0
    s_cbranch_scc1 {lab}
    s_and_b32 s{sSTMP+1}, s2, 0xff
    s_add_u32 s{sSTMP+1}, s{sSTMP+1}, 1
    s_and_b32 s{sSTMP+1}, s{sSTMP+1}, 0xfe
    s_cmp_lg_u32 s{sSTMP+1}, 0
    s_cbranch_scc1 {lab}
    s_and_b32 s{sSTMP+1}, s2, 1
    s_lshl_b32 s{sSTMP+1}, s{sSTMP+1}, 5
    v_mov_b32 v126, s{sSTMP}
    v_mov_b32 v125, s{sSTMP+1}
    s_mov_b64 exec, 1
    global_store_dword v125, v126, s[0:1] offset:{DBGMAP[idx]*4}
    s_mov_b64 exec, -1
{lab}:""")
def stamp(idx, pre=False):
    if DBG: return dbgstamp(idx, pre)
    if not STAMP: return
    if LIGHT and idx not in LSET: return
    if not pre:
        o(f"    s_memrealtime s[{sSTMP}:{sSTMP+1}]")
        o(f"    s_waitcnt lgkmcnt(0)")
    o(f"    v_writelane_b32 v{vST}, s{sSTMP}, {idx}")
def stampc(idx):
    if not STAMP or LIGHT: return
    o(f"    s_memtime s[{sSTMP}:{sSTMP+1}]")
    o(f"    s_waitcnt lgkmcnt(0)")
    o(f"    v_writelane_b32 v{vST}, s{sSTMP}, {idx}")
def stamp_flush():
    if not STAMP: return
    o(f"""    s_mov_b64 exec, -1
    s_lshl_b32 s{sT0}, s2, 4
    s_add_u32 s{sT0}, s{sT0}, s3
    s_lshl_b32 s{sT0}, s{sT0}, 7
    s_add_u32 s{rA}, s{sWS}, {WS_STAMP:#x}
    s_addc_u32 s{rA+1}, s{sWS+1}, 0
    s_and_b32 s{rA+1}, s{rA+1}, 0xffff
    s_mov_b32 s{rA+2}, 0x100000
    s_mov_b32 s{rA+3}, 0x20000
    s_mov_b32 exec_lo, -1
    s_mov_b32 exec_hi, 0
    buffer_store_dword v{vST}, v{vLane4}, s[{rA}:{rA+3}], s{sT0} offen
    s_mov_b64 exec, -1""")

o(f"; @launch grid=({NB},1,1) block=(1024,1,1) lds={LDS_TOT}")
o('.amdgcn_target "amdgcn-amd-amdhsa--gfx950"')
o(".text")
o(f".globl {NAME}\n.p2align 8\n.type {NAME},@function\n{NAME}:")
if STAMP or DBG: o(f"    s_memrealtime s[{sSTMP}:{sSTMP+1}]")
DBGLD = "    s_load_dwordx2 s[0:1], s[0:1], 80\n" if DBG else ""
o(f"""    s_cmp_ge_u32 s2, {NB}
    s_cbranch_scc1 K_done
    s_load_dwordx8 s[4:11], s[0:1], 0
    s_load_dwordx2 s[{sWS}:{sWS+1}], s[0:1], 88
    s_load_dwordx8 s[12:19], s[0:1], 32        ; w_a, w_b, w_c, w_u
    s_load_dwordx4 s[20:23], s[0:1], 64        ; w_v, out
{DBGLD}    v_and_b32 v{vLane}, 63, v0
    v_lshrrev_b32 v{vG4}, 6, v0
    v_lshlrev_b32 v{vT16}, 4, v0
    v_readfirstlane_b32 s3, v{vG4}
    v_lshlrev_b32 v{vLane4}, 2, v{vLane}
    v_mov_b32 v{vOne}, 1
    v_mov_b32 v{vZ}, 0
    v_mov_b32 v{vTmp}, 0
    v_lshlrev_b32 v{vTmp+1}, 2, v0
    v_lshlrev_b32 v8, 3, v0                   ; t*8
    v_cmp_gt_u32 vcc, {CH//4}, v0
    s_mul_i32 s{sSO}, s2, {CH*4}
    s_mul_i32 s{sSO+1}, s2, {CH*2}
    s_mov_b64 s[{sV625}:{sV625+1}], vcc
    s_cmp_ge_u32 s3, 7
    s_cbranch_scc1 K_nozero
    ds_write_b32 v{vTmp+1}, v{vTmp}
K_nozero:
    v_and_b32 v{vJ}, 15, v{vLane}
    v_lshrrev_b32 v{vG4}, 4, v{vLane}         ; g
    s_cmp_ge_u32 s3, 10
    s_cbranch_scc1 K_tab_start
    s_waitcnt lgkmcnt(0)""")
stamp(0, pre=True)
if "sprio" in FL: o("    s_setprio 2")
srd(rA, sDST, E*4)
o(f"""    s_mov_b64 exec, s[{sV625}:{sV625+1}]
    buffer_load_dwordx4 v[32:35], v{vT16}, s[{rA}:{rA+3}], s{sSO} offen
    s_mov_b64 exec, -1""")
srd(rB, sSRC, E*4); srd(rC, sEA, E*2); srd(rOUT, sWS, 8, off=WS_EP)
o(f"""    s_barrier
    s_mov_b64 exec, s[{sV625}:{sV625+1}]
    buffer_load_dwordx4 v[36:39], v{vT16}, s[{rB}:{rB+3}], s{sSO} offen       ; src
    buffer_load_dwordx2 v[40:41], v8, s[{rC}:{rC+3}], s{sSO+1} offen          ; e
    s_mov_b64 exec, -1
    buffer_load_dwordx2 v[10:11], v{vZ}, s[{rOUT}:{rOUT+3}], 0 offen
    v_mov_b32 v48, {N*256}
    v_mov_b32 v49, {N*256}
    v_mov_b32 v50, {N*256}
    v_mov_b32 v51, {N*256}
    v_mov_b32 v52, 0
    v_mov_b32 v53, 0
    v_mov_b32 v54, 0
    v_mov_b32 v55, 0
    s_cmp_ge_u32 s3, 13
    s_cbranch_scc1 K_nofilla
    v_cmp_gt_u32 vcc, 800, v0
    s_and_saveexec_b64 s[{sBIG}:{sBIG+1}], vcc
    ds_write_b128 v{vT16}, v[48:51] offset:{LDS_O}
    ds_write_b128 v{vT16}, v[52:55] offset:{LDS_E}
    s_mov_b64 exec, s[{sBIG}:{sBIG+1}]
K_nofilla:
    v_lshlrev_b32 v56, 4, v{vLane}
    v_add_u32 v56, {LDS_ZS}, v56
    s_cmp_lg_u32 s3, 0
    s_cbranch_scc1 K_nozs
    s_mov_b32 exec_hi, 0
    ds_write_b128 v56, v[52:55]
    s_mov_b64 exec, -1
K_nozs:
""")
def common_consts():
    o(f"""    ; bucket of this workgroup: consecutive buckets on one die (speed only); node range [start(b), start(b+1))
    s_and_b32 s{sBETA}, s2, 7
    s_lshl_b32 s{sBETA}, s{sBETA}, 5
    s_lshr_b32 s{sT0}, s2, 3
    s_or_b32 s{sBETA}, s{sBETA}, s{sT0}
    s_mul_i32 s{sSB}, s{sBETA}, 40000
    s_lshr_b32 s{sSB}, s{sSB}, 10
1:
    s_mul_i32 s{sT0}, s{sSB}, {BMUL}
    s_lshr_b32 s{sT0}, s{sT0}, 20
    s_cmp_ge_u32 s{sT0}, s{sBETA}
    s_cbranch_scc1 2f
    s_add_u32 s{sSB}, s{sSB}, 1
    s_branch 1b
2:
    s_add_u32 s{sT1}, s{sBETA}, 1
    s_mul_i32 s{sNB}, s{sT1}, 40000
    s_lshr_b32 s{sNB}, s{sNB}, 10
3:
    s_mul_i32 s{sT0}, s{sNB}, {BMUL}
    s_lshr_b32 s{sT0}, s{sT0}, 20
    s_cmp_ge_u32 s{sT0}, s{sT1}
    s_cbranch_scc1 4f
    s_add_u32 s{sNB}, s{sNB}, 1
    s_branch 3b
4:
    s_min_u32 s{sNB}, s{sNB}, {N}
    s_sub_u32 s{sNB}, s{sNB}, s{sSB}
    s_lshl_b32 s{sSB4}, s{sSB}, 2
    v_add_u32 v{vJ16}, 16, v{vJ}
    v_lshrrev_b32 v{vTmp}, 4, v0              ; t>>4
    v_mul_u32_u24 v{vSeg}, {4*CH*8}, v{vTmp}
    v_lshlrev_b32 v{vTmp+7}, 1, v{vLane}""")
    srd(rX, sX, N*D*2)
    srd(rC, sWC, D*2)
    srd(rOFF, sWS, O_BYTES, off=WS_O)
    srd(rCH, sWS, C_BYTES, off=WS_C)
    srd(rTAB, sWS, T_BYTES, w3=0x00800000, stride=4, off=WS_T)
    srd(rTABW, sWS, T_BYTES, off=WS_T)
    srd(rOUT, sOUT, N*D*2)
common_consts()
o(f"""    ; epilogue x address
    v_add_u32 v{vTmp+6}, s{sSB}, v{vTmp}
    v_lshlrev_b32 v{vTmp+6}, 7, v{vTmp+6}
    v_lshl_add_u32 v{vTmp+6}, v{vJ}, 3, v{vTmp+6}
    s_mov_b64 exec, s[{sV625}:{sV625+1}]
    s_waitcnt vmcnt(3)""")
for i in range(4): o(f"    v_mul_u32_u24 v{44+i}, {BMUL}, v{32+i}")
for i in range(4): o(f"    v_lshrrev_b32 v{44+i}, 18, v{44+i}")
for i in range(4): o(f"    v_and_b32 v{44+i}, 0x3fc, v{44+i}")
for i in range(4): o(f"    ds_add_rtn_u32 v{48+i}, v{44+i}, v{vOne} offset:{LDS_CNT1}")
for i in range(4): o(f"    v_and_b32 v{32+i}, 63, v{32+i}")
o("    s_mov_b64 exec, -1")
stamp(1)
o(f"""    s_waitcnt lgkmcnt(0)
    s_barrier""")
stamp(2)
o(f"""    s_cmp_lg_u32 s3, 0
    s_cbranch_scc1 K_noscan
    ds_read_b128 v[72:75], v{vT16} offset:{LDS_CNT1}
    s_waitcnt lgkmcnt(0)
    v_add_u32 v76, v72, v73
    v_add_u32 v77, v76, v74
    v_add_u32 v78, v77, v75
    v_mov_b32 v79, v78""")
wave_scan(79)
o(f"""    v_sub_u32 v80, v79, v78
    v_add_u32 v81, v80, v72
    v_add_u32 v82, v80, v76
    v_add_u32 v83, v80, v77
    ds_write_b128 v{vT16}, v[80:83] offset:{LDS_BASE1}
K_noscan:
    s_waitcnt lgkmcnt(0)
    s_barrier""")
stamp(3)
o(f"    s_mov_b64 exec, s[{sV625}:{sV625+1}]")
for i in range(4): o(f"    ds_read_b32 v{12+i}, v{44+i} offset:{LDS_BASE1}")
o("    s_waitcnt vmcnt(0)")
for i in range(4): o(f"    v_lshl_or_b32 v{52+2*i}, v{36+i}, 8, v{32+i}")
o(f"""    v_lshlrev_b32 v53, 16, v40
    v_and_b32 v55, 0xffff0000, v40
    v_lshlrev_b32 v57, 16, v41
    v_and_b32 v59, 0xffff0000, v41
    s_waitcnt lgkmcnt(0)""")
for i in range(4): o(f"    v_add_lshl_u32 v{40+i}, v{12+i}, v{48+i}, 3")
for i in range(4): o(f"    ds_write_b64 v{40+i}, v[{52+2*i}:{53+2*i}] offset:{LDS_SORT}")
o(f"""    s_mov_b64 exec, -1
    v_add_u32 v8, {640*16}, v{vT16}
    v_cmp_gt_u32 vcc, {CH*8//16 - 640}, v0
    s_mul_i32 s{sT0}, s2, {CH*8}
    s_mov_b64 s[{sSAVE}:{sSAVE+1}], vcc
    v_readfirstlane_b32 s{sEP}, v10
    v_readfirstlane_b32 s{sEP+1}, v11
    s_waitcnt lgkmcnt(0)
    s_barrier""")
stamp(4)
o(f"""    ds_read_b128 v[32:35], v{vT16} offset:{LDS_SORT}
    s_mov_b64 exec, s[{sSAVE}:{sSAVE+1}]
    ds_read_b128 v[36:39], v8 offset:{LDS_SORT}
    s_mov_b64 exec, -1
    s_waitcnt lgkmcnt(0)
    buffer_store_dwordx4 v[32:35], v{vT16}, s[{rCH}:{rCH+3}], s{sT0} offen{SCW}
    s_mov_b64 exec, s[{sSAVE}:{sSAVE+1}]
    buffer_store_dwordx4 v[36:39], v8, s[{rCH}:{rCH+3}], s{sT0} offen{SCW}
    s_mov_b64 exec, -1""")
stamp(5)
def tags(inc=True):
    if inc: o(f"""    ; this launch's epoch
    s_add_u32 s{sEP}, s{sEP}, 1
    s_addc_u32 s{sEP+1}, s{sEP+1}, 0""")
    o(f"""    ; this launch's tag
    s_and_b32 s{sTAGL}, s{sEP}, 0xff
    s_lshl_b32 s{sTAGL}, s{sTAGL}, 24
    s_lshr_b64 s[{sSAVE}:{sSAVE+1}], s[{sEP}:{sEP+1}], 8
    s_mov_b32 s{sTAGH}, s{sSAVE}""")
tags()
o(f"""    ; granule of bucket j (thread j < 256) lives at (j>>4)*32768 + p*128 + (j&15)*8
    v_lshrrev_b32 v8, 4, v0
    v_lshlrev_b32 v86, 15, v8
    v_lshl_add_u32 v86, v{vJ}, 3, v86
    v_and_b32 v9, 255, v0
    v_lshlrev_b32 v9, 2, v9
    ds_read_b32 v84, v9 offset:{LDS_BASE1}
    ds_read_b32 v85, v9 offset:{LDS_CNT1}
    s_waitcnt lgkmcnt(0)
    v_lshl_or_b32 v84, v85, 12, v84
    v_or_b32 v84, s{sTAGL}, v84
    v_mov_b32 v85, s{sTAGH}
    s_lshl_b32 s{sT0}, s2, 7                   ; p*128
    v_mov_b32 v12, s{sEP}
    v_mov_b32 v13, s{sEP+1}
    s_mov_b64 exec, 1
    ds_write_b64 v{vZ}, v[12:13] offset:{LDS_FLG+32}
    s_mov_b64 exec, -1
    s_waitcnt vmcnt(0) lgkmcnt(0)""")
stamp(6)
o(f"""    s_barrier""")
stamp(7)
o(f"""    s_cmp_ge_u32 s3, 4
    s_cbranch_scc1 K_poll_setup
    buffer_store_dwordx2 v[84:85], v86, s[{rOFF}:{rOFF+3}], s{sT0} offen{SC}
    s_waitcnt vmcnt(0)
    s_branch K_poll_setup""")

vX1, vW1r, vW2r, vXf2 = 32, 72, 88, 16
o(f"""K_tab_start:
    s_sub_u32 s{sT0}, s3, 10
    s_lshr_b32 s{sT2}, s{sT0}, 1              ; tau
    s_and_b32 s{sT3}, s{sT0}, 1               ; half
    s_lshl_b32 s{sT0}, s{sT2}, 4              ; 16*tau
    s_mul_i32 s{sT1}, s2, 40
    s_add_u32 s{sT1}, s{sT1}, s{sT0}
    v_add_u32 v9, s{sT1}, v{vJ}
    v_lshlrev_b32 v10, 7, v9
    v_lshl_add_u32 v10, v{vG4}, 4, v10
    v_subrev_u32 v11, 640, v0                 ; u = t - 640
    v_lshlrev_b32 v12, 4, v11
    v_add_u32 v13, {384*16}, v12
    s_waitcnt lgkmcnt(0)""")
stamp(0, pre=True)
o("    s_barrier                                  ; B0")
srd(rA, sX, N*D*2); srd(rB, sWB, D*D*2); srd(rC, sWV, D*D*2)
o(f"""    buffer_load_dwordx4 v[{vX1}:{vX1+3}], v10, s[{rA}:{rA+3}], 0 offen
    buffer_load_dwordx4 v[{vX1+4}:{vX1+7}], v10, s[{rA}:{rA+3}], 0 offen offset:64
    buffer_load_dwordx4 v[{vW1r}:{vW1r+3}], v12, s[{rB}:{rB+3}], 0 offen
    buffer_load_dwordx4 v[{vW1r+4}:{vW1r+7}], v12, s[{rC}:{rC+3}], 0 offen
    s_cmp_ge_u32 s3, 12
    s_cbranch_scc1 K_tab_ld1
    buffer_load_dwordx4 v[{vW1r+8}:{vW1r+11}], v13, s[{rB}:{rB+3}], 0 offen
    buffer_load_dwordx4 v[{vW1r+12}:{vW1r+15}], v13, s[{rC}:{rC+3}], 0 offen
K_tab_ld1:
    v_mov_b32 v48, {N*256}
    v_mov_b32 v49, {N*256}
    v_mov_b32 v50, {N*256}
    v_mov_b32 v51, {N*256}
    v_mov_b32 v52, 0
    v_mov_b32 v53, 0
    v_mov_b32 v54, 0
    v_mov_b32 v55, 0
    s_cmp_ge_u32 s3, 13
    s_cbranch_scc1 K_nofillb
    v_cmp_gt_u32 vcc, 800, v0
    s_and_saveexec_b64 s[{sBIG}:{sBIG+1}], vcc
    ds_write_b128 v{vT16}, v[48:51] offset:{LDS_O}
    ds_write_b128 v{vT16}, v[52:55] offset:{LDS_E}
    s_mov_b64 exec, s[{sBIG}:{sBIG+1}]
K_nofillb:
    v_mov_b32 v16, v12
    v_mov_b32 v17, v13""")
common_consts()
o(f"""    ; staging addresses of chunks u and u+384: (c>>3)*WROW + (c&7)*16
    v_lshrrev_b32 v14, 3, v11
    v_mul_u32_u24 v14, {WROW}, v14
    v_and_b32 v15, 7, v11
    v_lshl_add_u32 v14, v15, 4, v14
    v_add_u32 v14, {LDS_W2}, v14
    v_add_u32 v15, {48*WROW}, v14              ; chunk u+384
    v_bfe_u32 v{vTmp+5}, v{vLane}, 2, 2
    v_lshl_add_u32 v{vTmp+5}, v{vG4}, 3, v{vTmp+5}
    v_mul_u32_u24 v{vTmp+5}, {WROW}, v{vTmp+5}
    v_and_b32 v{vTmp+1}, 3, v{vLane}
    v_lshl_add_u32 v{vTmp+5}, v{vTmp+1}, 3, v{vTmp+5}
    s_lshl_b32 s{sT0}, s{sT3}, 6
    s_add_u32 s{sT0}, s{sT0}, {LDS_W2}
    v_add_u32 v{vTmp+5}, s{sT0}, v{vTmp+5}
    s_sub_u32 s{sT0}, s3, 10
    s_mov_b32 s{sT1}, {LDS_U - 3*2304}
    s_cmp_ge_u32 s{sT0}, 3
    s_cselect_b32 s{sT1}, s{sT1}, {LDS_A}
    s_mul_i32 s{sT0}, s{sT0}, 2304
    s_add_u32 s{sT0}, s{sT0}, s{sT1}
    v_mul_u32_u24 v10, 144, v{vJ}
    v_lshl_add_u32 v10, v{vG4}, 4, v10
    v_add_u32 v10, s{sT0}, v10
    v_lshrrev_b32 v11, 3, v{vLane}
    v_mul_u32_u24 v12, 144, v11
    v_and_b32 v13, 7, v{vLane}
    v_lshl_add_u32 v12, v13, 4, v12
    v_add_u32 v12, s{sT0}, v12
    s_lshl_b32 s{sT0}, s{sT2}, 4
    v_add_u32 v11, s{sT0}, v11
    v_lshlrev_b32 v9, 8, v11
    v_lshl_add_u32 v9, v13, 4, v9
    v_mov_b32 v8, 0
    s_waitcnt lgkmcnt(0)
    s_barrier                                  ; B1
    s_barrier                                  ; B2
    ; second weight pair, x fragments of the A/U tile tau, w_c""")
srd(rA, sWA, D*D*2); srd(rB, sWU, D*D*2)
o(f"""    buffer_load_dwordx4 v[120:123], v16, s[{rA}:{rA+3}], 0 offen
    buffer_load_dwordx4 v[52:55], v16, s[{rB}:{rB+3}], 0 offen
    s_cmp_ge_u32 s3, 12
    s_cbranch_scc1 K_tab_ld2
    buffer_load_dwordx4 v[56:59], v17, s[{rA}:{rA+3}], 0 offen
    buffer_load_dwordx4 v[28:31], v17, s[{rB}:{rB+3}], 0 offen
K_tab_ld2:
    s_lshl_b32 s{sT0}, s{sT2}, 4
    s_add_u32 s{sT0}, s{sT0}, s{sSB}
    v_add_u32 v{vTmp}, s{sT0}, v{vJ}
    v_lshlrev_b32 v{vTmp}, 7, v{vTmp}
    v_lshl_add_u32 v{vTmp}, v{vG4}, 4, v{vTmp}
    buffer_load_dwordx4 v[{vXf2}:{vXf2+3}], v{vTmp}, s[{rX}:{rX+3}], 0 offen
    buffer_load_dwordx4 v[{vXf2+4}:{vXf2+7}], v{vTmp}, s[{rX}:{rX+3}], 0 offen offset:64
    s_barrier                                  ; B3
    s_cmp_ge_u32 s3, 12
    s_cbranch_scc1 K_tab_w5
    s_waitcnt vmcnt(6)
    s_branch K_tab_w
K_tab_w5:
    s_waitcnt vmcnt(4)
K_tab_w:""")
stamp(1)
o(f"""    ds_write_b128 v14, v[{vW1r}:{vW1r+3}] offset:{128*WROW}
    ds_write_b128 v14, v[{vW1r+4}:{vW1r+7}] offset:{192*WROW}
    s_cmp_ge_u32 s3, 12
    s_cbranch_scc1 K_tab_st0
    ds_write_b128 v15, v[{vW1r+8}:{vW1r+11}] offset:{128*WROW}
    ds_write_b128 v15, v[{vW1r+12}:{vW1r+15}] offset:{192*WROW}
K_tab_st0:
    s_waitcnt lgkmcnt(0)
    s_mov_b64 exec, 1
    ds_add_u32 v8, v{vOne} offset:{LDS_FLG+4}
    s_mov_b64 exec, -1
    s_mov_b32 s{sSPIN}, 0
K_tab_meet:
    ds_read_b32 v{vTmp}, v8 offset:{LDS_FLG+4}
    s_add_u32 s{sSPIN}, s{sSPIN}, 1
    s_waitcnt lgkmcnt(0)
    v_readfirstlane_b32 s{sT0}, v{vTmp}
    s_cmp_ge_u32 s{sSPIN}, {SPIN_LDS}
    s_cbranch_scc1 K_tab_met
    s_cmp_lt_u32 s{sT0}, 6
    s_cbranch_scc1 K_tab_meet
K_tab_met:""")
def frag(k, s_): return 72 + (k*2+s_)*4
for m in range(2):
    for jj in range(2):
        for s_ in range(2):
            f = frag(m*2+jj, s_)
            off = (2+m)*64*WROW + s_*32*WROW + jj*32
            o(f"    ds_read_b64_tr_b16 v[{f}:{f+1}], v{vTmp+5} offset:{off}")
            o(f"    ds_read_b64_tr_b16 v[{f+2}:{f+3}], v{vTmp+5} offset:{off+4*WROW}")
for k in range(4):
    a_ = 104 + k*4
    o(f"    s_waitcnt lgkmcnt({12-4*k})")
    o(f"    v_mfma_f32_16x16x32_bf16 v[{a_}:{a_+3}], v[{frag(k,0)}:{frag(k,0)+3}], v[{vX1}:{vX1+3}], 0")
    o(f"    v_mfma_f32_16x16x32_bf16 v[{a_}:{a_+3}], v[{frag(k,1)}:{frag(k,1)+3}], v[{vX1+4}:{vX1+7}], v[{a_}:{a_+3}]")
o(f"""    s_mov_b32 s{sT0}, {NLOG2E:#x}
    s_mov_b32 s{sT1}, 0xffff0000
    s_mov_b32 s{sSPIN}, 0x80000000
    s_mov_b32 s{sGOFF}, 0x7fffffff
    s_lshl_b32 s{sSO+1}, s{sT3}, 7
    s_mul_i32 s{sSO+2}, s2, {40*256}
    s_add_u32 s{sSO+2}, s{sSO+2}, s{sSO+1}
    s_nop 1""")
for jj in range(2):
    B = 104 + jj*4; Vv = 112 + jj*4
    t = 40
    for i in range(4): o(f"    v_mul_f32 v{B+i}, s{sT0}, v{B+i}")
    o(f"    v_cvt_pk_bf16_f32 v{t}, v{B}, v{B+1}")
    o(f"    v_cvt_pk_bf16_f32 v{t+1}, v{B+2}, v{B+3}")
    o(f"    v_and_b32 v{B}, 0xffff, v{t}")
    o(f"    v_lshrrev_b32 v{B+1}, 16, v{t}")
    o(f"    v_and_b32 v{B+2}, 0xffff, v{t+1}")
    o(f"    v_lshrrev_b32 v{B+3}, 16, v{t+1}")
    T = 44 + jj*4
    for i in range(4): o(f"    v_and_b32 v{T+i}, s{sGOFF}, v{Vv+i}")
    for i in range(4): o(f"    v_add_u32 v{T+i}, 0x8000, v{T+i}")
    for i in range(4): o(f"    v_sub_u32_e64 v{T+i}, v{T+i}, v{B+i} clamp")
    for i in range(4): o(f"    v_and_or_b32 v{T+i}, v{T+i}, s{sT1}, v{B+i}")
    for i in range(4): o(f"    v_and_or_b32 v{T+i}, v{Vv+i}, s{sSPIN}, v{T+i}")
    o(f"    ds_write_b128 v10, v[{T}:{T+3}] offset:{jj*64}")
o(f"""    s_waitcnt lgkmcnt(0)
    ds_read_b128 v[44:47], v12
    ds_read_b128 v[48:51], v12 offset:{8*144}
    v_cmp_gt_u32 vcc, 40, v11
    s_mov_b64 s[{sM}:{sM+1}], vcc
    v_cmp_gt_u32 vcc, 32, v11
    s_mov_b64 s[{sM+2}:{sM+3}], vcc
    ; stage w_a|w_u
    s_waitcnt vmcnt(0)
    ds_write_b128 v14, v[120:123]
    ds_write_b128 v14, v[52:55] offset:{64*WROW}
    s_cmp_ge_u32 s3, 12
    s_cbranch_scc1 K_tab_st2
    ds_write_b128 v15, v[56:59]
    ds_write_b128 v15, v[28:31] offset:{64*WROW}
K_tab_st2:
    s_waitcnt lgkmcnt(0)
    s_cmp_ge_u32 s2, 250
    s_cbranch_scc1 K_tab_norows
    s_mov_b64 exec, s[{sM}:{sM+1}]
    s_cbranch_execz K_tab_r1
    buffer_store_dwordx4 v[44:47], v9, s[{rTABW}:{rTABW+3}], s{sSO+2} offen{SCW}
K_tab_r1:
    s_mov_b64 exec, s[{sM+2}:{sM+3}]
    s_cbranch_execz K_tab_r2
    buffer_store_dwordx4 v[48:51], v9, s[{rTABW}:{rTABW+3}], s{sSO+2} offen offset:2048{SCW}
K_tab_r2:
    s_mov_b64 exec, -1
    s_branch K_tab_stored
K_tab_norows:
    s_cmp_lg_u32 s2, 250
    s_cbranch_scc1 K_tab_stored
    s_cmp_lg_u32 s3, 10
    s_cbranch_scc1 K_tab_stored
    v_mov_b32 v44, 0x7f00
    s_mov_b32 s{sT0}, {N*256}
    buffer_store_dword v44, v{vLane4}, s[{rTABW}:{rTABW+3}], s{sT0} offen{SCW}
K_tab_stored:""")
stamp(5)
o("    s_barrier")
stamp(7)
o(f"    ds_read_b64 v[124:125], v{vZ} offset:{LDS_FLG+32}")
vFr, vAcc = 72, 104
for jj in range(2):
    for m in range(2):
        for s_ in range(2):
            f = vFr + ((jj*2+m)*2+s_)*4
            off = m*64*WROW + s_*32*WROW + jj*32
            o(f"    ds_read_b64_tr_b16 v[{f}:{f+1}], v{vTmp+5} offset:{off}")
            o(f"    ds_read_b64_tr_b16 v[{f+2}:{f+3}], v{vTmp+5} offset:{off+4*WROW}")
o(f"""    ; LDS dest: (16*tau + (lane&15))*272 + (32*half + 16*jj + 4*g)*4
    s_lshl_b32 s{sT1}, s{sT2}, 4
    v_add_u32 v9, s{sT1}, v{vJ}
    v_mul_u32_u24 v9, 272, v9
    v_lshl_add_u32 v9, v{vG4}, 4, v9
    s_lshl_b32 s{sT0}, s{sT3}, 7
    v_add_u32 v9, s{sT0}, v9
    v_add_u32 v11, {LDS_U}, v9""")
for k in range(4):
    a_ = vAcc + k*4; f = vFr + k*8
    o(f"    s_waitcnt lgkmcnt({12-4*k})")
    o(f"    v_mfma_f32_16x16x32_bf16 v[{a_}:{a_+3}], v[{f}:{f+3}], v[{vXf2}:{vXf2+3}], 0")
    o(f"    v_mfma_f32_16x16x32_bf16 v[{a_}:{a_+3}], v[{f+4}:{f+7}], v[{vXf2+4}:{vXf2+7}], v[{a_}:{a_+3}]")
o(f"""    s_mov_b32 s{sT0}, {NLOG2E:#x}
    v_mov_b32 v10, 0xc27c0000                  ; -63
    s_nop 7""")
for jj in range(2):
    a_ = vAcc + jj*8
    for i in range(4): o(f"    v_fma_f32 v{a_+i}, v{a_+i}, s{sT0}, v10")
    o(f"    ds_write_b128 v9, v[{a_}:{a_+3}] offset:{LDS_A + jj*64}")
    o(f"    ds_write_b128 v11, v[{a_+4}:{a_+7}] offset:{jj*64}")
o(f"    v_readfirstlane_b32 s{sEP}, v124\n    v_readfirstlane_b32 s{sEP+1}, v125\n    s_nop 3")
tags(False)
o(f"""    ; table-ready signal: the last table wave whose stores have completed publishes one granule per replica
    s_waitcnt vmcnt(0)""")
stamp(6)
o(f"""    s_mov_b64 exec, 1
    ds_add_rtn_u32 v9, v8, v{vOne} offset:{LDS_FLG+8}
    s_mov_b64 exec, -1
    s_waitcnt lgkmcnt(0)
    v_readfirstlane_b32 s{sT0}, v9
    s_nop 3
    s_cmp_lg_u32 s{sT0}, 5
    s_cbranch_scc1 K_poll_setup
    s_add_u32 s{rA}, s{sWS}, {WS_TF:#x}
    s_addc_u32 s{rA+1}, s{sWS+1}, 0
    s_and_b32 s{rA+1}, s{rA+1}, 0xffff
    s_mov_b32 s{rA+2}, {8*2048}
    s_mov_b32 s{rA+3}, 0x20000
    v_lshlrev_b32 v8, 11, v{vLane}
    v_mov_b32 v10, s{sTAGL}
    v_mov_b32 v11, s{sTAGH}
    s_lshl_b32 s{sT0}, s2, 3
    s_mov_b64 exec, 0xff
    buffer_store_dwordx2 v[10:11], v8, s[{rA}:{rA+3}], s{sT0} offen{SC}
    s_mov_b64 exec, -1""")

vG = 72
vEnt, vIdx, vRank = 28, 44, 52
o("K_poll_setup:")
if "sprio" in FL: o("    s_setprio 0")
o(f"""
    v_lshrrev_b32 v8, 4, v0
    v_lshlrev_b32 v8, 9, v8                    ; 4*(t>>4)*128
    s_lshr_b32 s{sT0}, s{sBETA}, 4
    s_lshl_b32 s{sT0}, s{sT0}, 15
    s_and_b32 s{sT1}, s{sBETA}, 15
    s_lshl_b32 s{sT1}, s{sT1}, 3
    s_add_u32 s{sGOFF}, s{sT0}, s{sT1}
    s_mov_b32 s{sSPIN}, 0
    v_mov_b32 v9, 0xff000000
{PRE_SLEEP}{B4B}K_poll:
    buffer_load_dwordx2 v[{vG}:{vG+1}], v8, s[{rOFF}:{rOFF+3}], s{sGOFF} offen{SC}
    buffer_load_dwordx2 v[{vG+2}:{vG+3}], v8, s[{rOFF}:{rOFF+3}], s{sGOFF} offen offset:128{SC}
    buffer_load_dwordx2 v[{vG+4}:{vG+5}], v8, s[{rOFF}:{rOFF+3}], s{sGOFF} offen offset:256{SC}
    buffer_load_dwordx2 v[{vG+6}:{vG+7}], v8, s[{rOFF}:{rOFF+3}], s{sGOFF} offen offset:384{SC}
    s_add_u32 s{sSPIN}, s{sSPIN}, 1
    s_waitcnt vmcnt(0)""")
def tagcheck(d0s, d1s, mask):
    o(f"    v_xor_b32 v{vTmp}, s{sTAGL}, v{d0s[0]}")
    o(f"    v_xor_b32 v{vTmp+1}, s{sTAGL}, v{d0s[1]}")
    o(f"    v_xor_b32 v{vTmp+2}, s{sTAGL}, v{d0s[2]}")
    o(f"    v_xor_b32 v{vTmp+3}, s{sTAGL}, v{d0s[3]}")
    o(f"    v_or3_b32 v{vTmp}, v{vTmp}, v{vTmp+1}, v{vTmp+2}")
    o(f"    v_or_b32 v{vTmp}, v{vTmp}, v{vTmp+3}")
    o(f"    v_and_b32 v{vTmp}, v{mask}, v{vTmp}")
    o(f"    v_xor_b32 v{vTmp+1}, s{sTAGH}, v{d1s[0]}")
    o(f"    v_xor_b32 v{vTmp+2}, s{sTAGH}, v{d1s[1]}")
    o(f"    v_xor_b32 v{vTmp+3}, s{sTAGH}, v{d1s[2]}")
    o(f"    v_xor_b32 v{vTmp+4}, s{sTAGH}, v{d1s[3]}")
    o(f"    v_or3_b32 v{vTmp}, v{vTmp}, v{vTmp+1}, v{vTmp+2}")
    o(f"    v_or3_b32 v{vTmp}, v{vTmp}, v{vTmp+3}, v{vTmp+4}")
    o(f"    v_cmp_ne_u32 vcc, 0, v{vTmp}")
tagcheck([vG, vG+2, vG+4, vG+6], [vG+1, vG+3, vG+5, vG+7], 9)
o(f"""    s_cbranch_vccz K_poll_ok
    s_cmp_ge_u32 s{sSPIN}, {SPIN_MAX}
    s_cbranch_scc1 K_poll_fail
    s_sleep {SLEEP}
    s_branch K_poll
K_poll_fail:""")
for r in range(4): o(f"    v_mov_b32 v{vG+2*r}, 0")
o("K_poll_ok:")
if STAMP: o(f"    v_writelane_b32 v{vST}, s{sSPIN}, 19")
stamp(8)
stampc(18)
vCnt = 80
o(f"""    s_mov_b32 s{sSO}, 0
    s_mov_b32 s{sSO+1}, {CH*8}
    s_mov_b32 s{sSO+2}, {2*CH*8}
    s_mov_b32 s{sSO+3}, {3*CH*8}""")
for r in range(4):
    T = vG + 2*r
    o(f"""    v_bfe_u32 v{vCnt+r}, v{T}, 12, 12          ; count
    v_and_b32 v{vCnt+4+r}, 0xfff, v{T}
    v_add_u32 v{vCnt+4+r}, v{vCnt+4+r}, v{vJ}
    v_cmp_gt_u32 s[{sM+4*r}:{sM+4*r+1}], v{vCnt+r}, v{vJ}
    v_lshl_add_u32 v{vCnt+4+r}, v{vCnt+4+r}, 3, v{vSeg}""")
for r in range(4):
    o(f"""    s_mov_b64 exec, s[{sM+4*r}:{sM+4*r+1}]
    buffer_load_dwordx2 v[{vEnt+4*r}:{vEnt+4*r+1}], v{vCnt+4+r}, s[{rCH}:{rCH+3}], s{sSO+r} offen{SCE}""")
o(f"""    s_mov_b64 exec, -1
    v_lshrrev_b32 v12, 4, v0
    v_add_u32 v12, s{sSB}, v12
    v_lshlrev_b32 v12, 7, v12
    v_lshl_add_u32 v12, v{vJ}, 3, v12
    v_lshlrev_b32 v13, 1, v{vLane}
    buffer_load_ushort v{vWc}, v13, s[{rC}:{rC+3}], 0 offen
    buffer_load_dwordx2 v[{vXe}:{vXe+1}], v12, s[{rX}:{rX+3}], 0 offen
    v_max3_u32 v{vTmp}, v{vCnt}, v{vCnt+1}, v{vCnt+2}
    v_max_u32 v{vTmp}, v{vTmp}, v{vCnt+3}
    v_cmp_lt_u32 vcc, 16, v{vTmp}
    s_mov_b64 s[{sBIG}:{sBIG+1}], vcc
    s_cbranch_vccz K_nok1""")
for r in range(4):
    o(f"""    v_cmp_gt_u32 s[{sM+4*r+2}:{sM+4*r+3}], v{vCnt+r}, v{vJ16}""")
o("    s_nop 1")
for r in range(4):
    o(f"""    s_mov_b64 exec, s[{sM+4*r+2}:{sM+4*r+3}]
    s_cbranch_execz K_nok1_{r}
    buffer_load_dwordx2 v[{vEnt+4*r+2}:{vEnt+4*r+3}], v{vCnt+4+r}, s[{rCH}:{rCH+3}], s{sSO+r} offen offset:128{SCE}
K_nok1_{r}:""")
o(f"""    s_mov_b64 exec, -1
    v_cmp_lt_u32 vcc, 32, v{vTmp}
    s_cbranch_vccz K_nok1
    v_mov_b32 v{vTmp}, 0
    ds_write_b32 v{vTmp}, v{vOne} offset:{LDS_FLG}
K_nok1:
    s_waitcnt vmcnt(0)
    v_lshlrev_b32 v{vWc}, 16, v{vWc}
    v_mul_f32 v{vWc}, {NLOG2E:#x}, v{vWc}""")
stamp(9)
def slots(ks): return [r*2+k for r in range(4) for k in ks]
def hist(es):
    for e in es:
        d0 = vEnt + 2*e
        o(f"    v_lshlrev_b32 v{vIdx+e}, 2, v{d0}")
        o(f"    v_subrev_u32 v{vIdx+e}, s{sSB4}, v{vIdx+e}")
        o(f"    v_and_b32 v{vIdx+e}, 0xfc, v{vIdx+e}")
        o(f"    s_mov_b64 exec, s[{sM+2*e}:{sM+2*e+1}]")
        o(f"    ds_add_rtn_u32 v{vRank+e}, v{vIdx+e}, v{vOne} offset:{LDS_CNT2}")
        o(f"    s_mov_b64 exec, -1")
hist(slots([0]))
o(f"    s_cmp_eq_u64 s[{sBIG}:{sBIG+1}], 0\n    s_cbranch_scc1 K_noh1")
hist(slots([1]))
o(f"""K_noh1:
    s_waitcnt lgkmcnt(0)
    s_barrier""")
stamp(10)
o(f"""    ds_read_b32 v{vInc}, v{vLane4} offset:{LDS_CNT2}
    v_mov_b32 v{vTmp}, 0
    ds_read_b32 v{vTmp+1}, v{vTmp} offset:{LDS_FLG}
    v_lshlrev_b32 v100, 5, v{vLane}
    v_mov_b32 v101, 0xff000000
    s_cmp_lg_u32 s3, 15
    s_cbranch_scc1 K_notf0
    s_add_u32 s{rB}, s{sWS}, {WS_TF:#x}
    s_addc_u32 s{rB+1}, s{sWS+1}, 0
    s_and_b32 s{rB+1}, s{rB+1}, 0xffff
    s_mov_b32 s{rB+2}, {8*2048}
    s_mov_b32 s{rB+3}, 0x20000
    s_and_b32 s{sT3}, s2, 7
    s_lshl_b32 s{sT3}, s{sT3}, 11
    s_mov_b32 s{sSPIN}, 0
    buffer_load_dwordx4 v[88:91], v100, s[{rB}:{rB+3}], s{sT3} offen{SC}
    buffer_load_dwordx4 v[92:95], v100, s[{rB}:{rB+3}], s{sT3} offen offset:16{SC}
K_notf0:""")
if PREF:
    o(f"""    ; pull this workgroup's share of the table into the L2 of its die (speed only)
    s_lshr_b32 s{sT0}, s2, 3
    s_mul_i32 s{sT0}, s{sT0}, {16*5*1024}
    s_mul_i32 s{sT1}, s3, {5*1024}
    s_add_u32 s{sT0}, s{sT0}, s{sT1}
    v_lshlrev_b32 v8, 4, v{vLane}""")
    for i in range(5):
        o(f"    buffer_load_dwordx4 v[100:103], v8, s[{rTABW}:{rTABW+3}], s{sT0} offen offset:{(i%4)*1024}{SC}" if i < 4 else
          f"    s_add_u32 s{sT0}, s{sT0}, 4096\n    buffer_load_dwordx4 v[100:103], v8, s[{rTABW}:{rTABW+3}], s{sT0} offen{SC}")
o(f"""    ; workgroup 0 records this launch's epoch (all workgroups have read the old one by now)
    s_or_b32 s{sT0}, s2, s3
    s_cmp_lg_u32 s{sT0}, 0
    s_cbranch_scc1 K_noep
    s_add_u32 s{rA}, s{sWS}, {WS_EP:#x}
    s_addc_u32 s{rA+1}, s{sWS+1}, 0
    s_and_b32 s{rA+1}, s{rA+1}, 0xffff
    s_mov_b32 s{rA+2}, 8
    s_mov_b32 s{rA+3}, 0x20000
    v_mov_b32 v8, s{sEP}
    v_mov_b32 v9, s{sEP+1}
    s_mov_b64 exec, 1
    buffer_store_dwordx2 v[8:9], v{vTmp}, s[{rA}:{rA+3}], 0 offen
    s_mov_b64 exec, -1
K_noep:
    s_waitcnt lgkmcnt(0)
    v_add_u32 v{vInc}, 3, v{vInc}
    v_readfirstlane_b32 s{sT0}, v{vTmp+1}
    v_lshrrev_b32 v{vInc}, 2, v{vInc}
    v_mov_b32 v{vBase}, v{vInc}""")
fill = [f"v_and_b32 v{vEnt+2*e}, 0xffffff00, v{vEnt+2*e}" for e in range(8)] + \
       [f"s_lshl_b32 s{sT2}, 1, s3", f"v_mov_b32 v{vTmp+2}, s{sT2}"]
wave_scan(vInc, fill)
vPos = 80
o(f"""    v_sub_u32 v{vTmp+3}, v{vInc}, v{vBase}
    v_lshlrev_b32 v{vBase}, 2, v{vTmp+3}
    v_readlane_b32 s{sQ}, v{vInc}, 63
    s_cmp_lg_u32 s{sT0}, 0
    s_cbranch_scc1 K_slow""")
for e in slots([0]): o(f"    ds_bpermute_b32 v{vPos+e}, v{vIdx+e}, v{vBase}")
o(f"""    s_cmp_gt_u32 s{sQ}, {CAPQ}
    s_cbranch_scc1 K_slow
    s_mul_i32 s{sQ0}, s{sQ}, s3
    s_lshr_b32 s{sQ0}, s{sQ0}, 4
    s_add_u32 s{sT0}, s3, 1
    s_mul_i32 s{sQ1}, s{sQ}, s{sT0}
    s_lshr_b32 s{sQ1}, s{sQ1}, 4
    v_cmp_ge_u32 vcc, s{sQ0}, v{vInc}
    s_bcnt1_i32_b64 s{sNODE}, vcc
    v_cmp_lt_u32 s[{rA}:{rA+1}], s{sQ0}, v{vInc}
    v_cmp_gt_u32 s[{rA+2}:{rA+3}], s{sQ1}, v{vTmp+3}
    v_cmp_gt_u32 vcc, v{vInc}, v{vTmp+3}
    v_readlane_b32 s{sBND}, v{vInc}, s{sNODE}
    s_and_b64 s[{rA}:{rA+1}], s[{rA}:{rA+1}], s[{rA+2}:{rA+3}]
    s_and_b64 s[{rA}:{rA+1}], s[{rA}:{rA+1}], vcc
    s_cmp_lt_u32 s{sQ0}, s{sQ1}
    s_cselect_b64 exec, s[{rA}:{rA+1}], 0
    ds_or_b32 v{vLane4}, v{vTmp+2} offset:{LDS_MSK}
    s_mov_b64 exec, -1
    s_waitcnt lgkmcnt(0)""")
def place(es, bperm):
    if bperm:
        for e in es: o(f"    ds_bpermute_b32 v{vPos+e}, v{vIdx+e}, v{vBase}")
        o("    s_waitcnt lgkmcnt(0)")
    for e in es: o(f"    v_add_lshl_u32 v{vPos+e}, v{vPos+e}, v{vRank+e}, 2")
    for e in es:
        d0 = vEnt + 2*e
        o(f"    s_mov_b64 exec, s[{sM+2*e}:{sM+2*e+1}]")
        o(f"    ds_write_b32 v{vPos+e}, v{d0} offset:{LDS_O}")
        o(f"    ds_write_b32 v{vPos+e}, v{d0+1} offset:{LDS_E}")
    o(f"    s_mov_b64 exec, -1")
place(slots([0]), False)
o(f"    s_cmp_eq_u64 s[{sBIG}:{sBIG+1}], 0\n    s_cbranch_scc1 K_nop1")
place(slots([1]), True)
PT = [int(x) for x in opt('pt', '4-7-9').split('-')]
NOPS = [int(x) for x in opt('nops', '').split('-') if x]
NOPPOS = int(opt('noppos', 0))
vA, vAn, vDen, vNum, vAA, vLA, vSL = 8, 9, 10, 12, 14, 15, 27
vO = 16
vE = [20, 28]
RING = int(opt('ring', 4))
vDr = [32, 36, 40, 44] if RING == 4 else [72 + 4*i for i in range(RING)]
vU, vAa, vP, vS_, vQ, vR = 48, 52, 56, 58, 62, 64
vF = 66
o(f"""K_nop1:
    s_mul_i32 s{sT0}, s{sNODE}, 272
    v_add_u32 v{vAA}, s{sT0}, v{vLane4}
    s_add_u32 s{sT1}, s{sNODE}, s3
    s_lshl_b32 s{sT1}, s{sT1}, 9
    v_add_u32 v{vSL}, s{sT1}, v{vLane4}
    s_lshl_b32 s{sT0}, s{sQ0}, 4
    v_mov_b32 v{vLA}, s{sT0}
    ds_read_b32 v{vA}, v{vAA} offset:{LDS_A}
    ds_read_b32 v{vAn}, v{vAA} offset:{LDS_A+272}
    s_min_u32 s{sSTOP}, s{sBND}, s{sQ1}
    s_sub_u32 s{sREM}, s{sSTOP}, s{sQ0}
    s_mov_b32 s{sC63}, 0x5f000000                ; 2^63
    s_mov_b32 s{sC63+1}, 0x5f000000
    s_mov_b32 s{sSEL}, 0x00003f80
    s_mov_b32 s{sIT}, 0
    v_mov_b64 v[{vDen}:{vDen+1}], 0
    v_mov_b64 v[{vNum}:{vNum+1}], 0
    s_cmp_lg_u32 s3, {99 if 'notf' in FL else 15}
    s_cbranch_scc1 K_notf
    s_branch K_tfchk
K_tfpoll:
    buffer_load_dwordx4 v[88:91], v100, s[{rB}:{rB+3}], s{sT3} offen{SC}
    buffer_load_dwordx4 v[92:95], v100, s[{rB}:{rB+3}], s{sT3} offen offset:16{SC}
K_tfchk:
    s_add_u32 s{sSPIN}, s{sSPIN}, 1
    s_waitcnt vmcnt(0)""")
tagcheck([88, 90, 92, 94], [89, 91, 93, 95], 101)
o(f"""    s_cbranch_vccz K_notf
    s_cmp_ge_u32 s{sSPIN}, {SPIN_MAX}
    s_cbranch_scc1 K_notf
    s_sleep 1
    s_branch K_tfpoll
K_notf:
    s_waitcnt lgkmcnt(0)
    s_barrier""")
stamp(11)
stampc(14)
o(f"""    s_cmp_ge_u32 s{sQ0}, s{sQ1}
    s_cbranch_scc1 K_main_done
    s_setprio 3""")
scr = [32, 36, 40, 44, 48, 52, 56] if RING > 4 else [vO, vU, vAa]
for j in range(RING-1): o(f"    ds_read_b128 v[{scr[j]}:{scr[j]+3}], v{vLA} offset:{LDS_O+16*j}")
o(f"    ds_read_b128 v[{vE[0]}:{vE[0]+3}], v{vLA} offset:{LDS_E}")
for j in range(RING-1):
    o(f"    s_waitcnt lgkmcnt({RING-1-j})")
    for i in range(4): o(f"    buffer_load_dword v{vDr[j]+i}, v{scr[j]+i}, s[{rTAB}:{rTAB+3}], 0 offen{SC}")
o(f"    ds_read_b128 v[{vO}:{vO+3}], v{vLA} offset:{LDS_O+16*(RING-1)}")
o(".p2align 3")
o("K_loop:")
for k in range(RING):
    e = vE[k%2]; en = vE[(k+1)%2]; Dk = vDr[k]; Dn = vDr[(k+RING-1)%RING]
    o(f"    s_waitcnt lgkmcnt(0)")
    o(f"    s_sub_u32 s{sREM}, s{sREM}, 1")
    for i in range(4):
        o(f"    buffer_load_dword v{Dn+i}, v{vO+i}, s[{rTAB}:{rTAB+3}], 0 offen{SC}")
    o(f"    ds_read_b128 v[{vO}:{vO+3}], v{vLA} offset:{LDS_O+16*(k+RING)}")
    o(f"    ds_read_b128 v[{en}:{en+3}], v{vLA} offset:{LDS_E+16*(k+1)}")
    o(f"    s_cbranch_scc1 K_h{k}")
    o(f"K_r{k}:")
    o(f"    s_waitcnt vmcnt({4*(RING-1)})")
    o(f"    v_pk_fma_f32 v[{vU}:{vU+1}], v[{e}:{e+1}], v[{vWc}:{vWc+1}], v[{vA}:{vA+1}] op_sel_hi:[1,0,0]")
    o(f"    v_pk_fma_f32 v[{vU+2}:{vU+3}], v[{e+2}:{e+3}], v[{vWc}:{vWc+1}], v[{vA}:{vA+1}] op_sel_hi:[1,0,0]")
    for i in range(4): o(f"    v_dot2c_f32_bf16 v{vU+i}, s{sSEL}, v{Dk+i}")
    if NOPS and NOPPOS == 1:
        for z in NOPS: o(f"    s_nop {z}")
    for i in range(4): o(f"    v_exp_f32_e64 v{vU+i}, v{vU+i} clamp")
    if NOPS and NOPPOS == 2:
        for z in NOPS: o(f"    s_nop {z}")
    o(f"    v_pk_fma_f32 v[{vAa}:{vAa+1}], v[{vU}:{vU+1}], s[{sC63}:{sC63+1}], 1.0 op_sel_hi:[1,0,0]")
    o(f"    v_pk_fma_f32 v[{vAa+2}:{vAa+3}], v[{vU+2}:{vU+3}], s[{sC63}:{sC63+1}], 1.0 op_sel_hi:[1,0,0]")
    if NOPS and NOPPOS == 0:
        for z in NOPS: o(f"    s_nop {z}")
    o(f"    v_pk_mul_f32 v[{vP}:{vP+1}], v[{vAa}:{vAa+1}], v[{vAa+2}:{vAa+3}]")
    o(f"    v_pk_add_f32 v[{vS_}:{vS_+1}], v[{vAa}:{vAa+1}], v[{vAa+2}:{vAa+3}]")
    o(f"    v_rcp_f32 v{vR}, v{vP}")
    o(f"    v_rcp_f32 v{vR+1}, v{vP+1}")
    o(f"    v_pk_mul_f32 v[{vQ}:{vQ+1}], v[{vAa+2}:{vAa+3}], v[{Dk}:{Dk+1}]")
    o(f"    v_pk_fma_f32 v[{vQ}:{vQ+1}], v[{vAa}:{vAa+1}], v[{Dk+2}:{Dk+3}], v[{vQ}:{vQ+1}]")
    o(f"    v_pk_fma_f32 v[{vDen}:{vDen+1}], v[{vS_}:{vS_+1}], v[{vR}:{vR+1}], v[{vDen}:{vDen+1}]")
    o(f"    v_pk_fma_f32 v[{vNum}:{vNum+1}], v[{vQ}:{vQ+1}], v[{vR}:{vR+1}], v[{vNum}:{vNum+1}]")
o(f"""    v_add_u32 v{vLA}, {16*RING}, v{vLA}
    s_add_u32 s{sIT}, s{sIT}, 1
    s_cmp_eq_u32 s{sIT}, {PT[0]}
    s_cbranch_scc1 K_p2
    s_cmp_eq_u32 s{sIT}, {PT[1]}
    s_cbranch_scc1 K_p1
    s_cmp_eq_u32 s{sIT}, {PT[2]}
    s_cbranch_scc0 K_loop
    s_setprio 0
    s_branch K_loop
K_p2:
    s_setprio 2
    s_branch K_loop
K_p1:
    s_setprio 1
    s_branch K_loop""")
for k in range(RING):
    o(f"""K_h{k}:
    v_add_f32 v{vF}, v{vDen}, v{vDen+1}
    v_add_f32 v{vF+1}, v{vNum}, v{vNum+1}
    s_add_u32 s{sNODE}, s{sNODE}, 1
    ds_write_b32 v{vSL}, v{vF} offset:{LDS_SL}
    ds_write_b32 v{vSL}, v{vF+1} offset:{LDS_SL+256}
    s_cmp_ge_u32 s{sSTOP}, s{sQ1}
    s_cbranch_scc1 K_main_done
    v_readlane_b32 s{sBND}, v{vInc}, s{sNODE}
    v_mov_b64 v[{vDen}:{vDen+1}], 0
    v_mov_b64 v[{vNum}:{vNum+1}], 0
    v_mov_b32 v{vA}, v{vAn}
    v_add_u32 v{vAA}, 272, v{vAA}
    v_add_u32 v{vSL}, 512, v{vSL}
    s_cmp_eq_u32 s{sBND}, s{sSTOP}
    s_cbranch_scc1 K_hs{k}
    ds_read_b32 v{vAn}, v{vAA} offset:{LDS_A+272}
K_hr{k}:
    s_mov_b32 s{sT0}, s{sSTOP}
    s_min_u32 s{sSTOP}, s{sBND}, s{sQ1}
    s_sub_u32 s{sREM}, s{sSTOP}, s{sT0}
    s_sub_u32 s{sREM}, s{sREM}, 1
    s_branch K_r{k}
K_hs{k}:
    s_add_u32 s{sNODE}, s{sNODE}, 1
    v_readlane_b32 s{sBND}, v{vInc}, s{sNODE}
    v_add_u32 v{vAA}, 272, v{vAA}
    v_add_u32 v{vSL}, 512, v{vSL}
    s_nop 1
    s_cmp_eq_u32 s{sBND}, s{sSTOP}
    s_cbranch_scc1 K_hs{k}
    ds_read_b32 v{vA}, v{vAA} offset:{LDS_A}
    ds_read_b32 v{vAn}, v{vAA} offset:{LDS_A+272}
    s_waitcnt lgkmcnt(0)
    s_branch K_hr{k}""")

sP, sCNT, sPOS, sN, sEN = 4, 5, 6, 7, 8
o(f"""K_slow:
    s_add_u32 s{rB}, s{sWS}, {WS_TF:#x}
    s_addc_u32 s{rB+1}, s{sWS+1}, 0
    s_and_b32 s{rB+1}, s{rB+1}, 0xffff
    s_mov_b32 s{rB+2}, {8*2048}
    s_mov_b32 s{rB+3}, 0x20000
    s_and_b32 s{sT3}, s2, 7
    s_lshl_b32 s{sT3}, s{sT3}, 11
    v_lshlrev_b32 v100, 5, v{vLane}
    v_mov_b32 v101, 0xff000000
    s_mov_b32 s{sSPIN}, 0
K_s_tf:
    buffer_load_dwordx4 v[88:91], v100, s[{rB}:{rB+3}], s{sT3} offen{SC}
    buffer_load_dwordx4 v[92:95], v100, s[{rB}:{rB+3}], s{sT3} offen offset:16{SC}
    s_add_u32 s{sSPIN}, s{sSPIN}, 1
    s_waitcnt vmcnt(0)""")
tagcheck([88, 90, 92, 94], [89, 91, 93, 95], 101)
o(f"""    s_cbranch_vccz K_s_go
    s_cmp_ge_u32 s{sSPIN}, {SPIN_MAX}
    s_cbranch_scc1 K_s_go
    s_sleep 4
    s_branch K_s_tf
K_s_go:
    s_mov_b32 s{sC63}, 0x5f000000
    s_mov_b32 s{sSEL}, 0x00003f80
    s_mov_b32 s{sN}, s3
    v_mov_b32 v{vTmp}, 0
K_s_node:
    s_mov_b32 s{sT3}, 1
    s_cmp_ge_u32 s{sN}, s{sNB}
    s_cbranch_scc1 K_main_done2
    s_mul_i32 s{sT0}, s{sN}, 272
    v_add_u32 v{vAA}, s{sT0}, v{vLane4}
    ds_read_b32 v{vA}, v{vAA} offset:{LDS_A}
    v_mov_b32 v{vDen}, 0
    v_mov_b32 v{vNum}, 0
    s_mov_b32 s{sP}, 0
    s_waitcnt lgkmcnt(0)
K_s_prod:
    s_lshl_b32 s{sT0}, s{sP}, 7
    s_add_u32 s{sT0}, s{sT0}, s{sGOFF}
    buffer_load_dword v{vU}, v{vTmp}, s[{rOFF}:{rOFF+3}], s{sT0} offen{SC}
    s_waitcnt vmcnt(0)
    v_readfirstlane_b32 s{sCNT}, v{vU}
    s_nop 3
    s_and_b32 s{sPOS}, s{sCNT}, 0xfff
    s_bfe_u32 s{sCNT}, s{sCNT}, 0xc000c
    s_mul_i32 s{sT0}, s{sP}, {CH}
    s_add_u32 s{sPOS}, s{sPOS}, s{sT0}
    s_lshl_b32 s{sPOS}, s{sPOS}, 3
K_s_ent:
    s_cmp_eq_u32 s{sCNT}, 0
    s_cbranch_scc1 K_s_prod_next
    buffer_load_dwordx2 v[{vU}:{vU+1}], v{vTmp}, s[{rCH}:{rCH+3}], s{sPOS} offen{SC}
    s_waitcnt vmcnt(0)
    v_readfirstlane_b32 s{sEN}, v{vU}
    s_nop 3
    s_sub_u32 s{sT0}, s{sEN}, s{sSB}
    s_and_b32 s{sT0}, s{sT0}, 63
    s_cmp_lg_u32 s{sT0}, s{sN}
    s_cbranch_scc1 K_s_ent_next
    s_and_b32 s{sT0}, s{sEN}, 0xffffff00
    buffer_load_dword v{vU+2}, off, s[{rTAB}:{rTAB+3}], s{sT0}{SC}
    v_fma_f32 v{vU}, v{vU+1}, v{vWc}, v{vA}
    s_waitcnt vmcnt(0)
    v_dot2c_f32_bf16 v{vU}, s{sSEL}, v{vU+2}
    s_nop 2
    v_exp_f32_e64 v{vU}, v{vU} clamp
    s_nop 0
    v_fma_f32 v{vU}, v{vU}, s{sC63}, 1.0
    v_rcp_f32 v{vU}, v{vU}
    s_nop 0
    v_add_f32 v{vDen}, v{vDen}, v{vU}
    v_fmac_f32 v{vNum}, v{vU}, v{vU+2}
K_s_ent_next:
    s_add_u32 s{sPOS}, s{sPOS}, 8
    s_sub_u32 s{sCNT}, s{sCNT}, 1
    s_branch K_s_ent
K_s_prod_next:
    s_add_u32 s{sP}, s{sP}, 1
    s_cmp_lt_u32 s{sP}, {NB}
    s_cbranch_scc1 K_s_prod
    s_lshl_b32 s{sT0}, s{sN}, 9
    v_add_u32 v{vF+2}, s{sT0}, v{vLane4}
    ds_write_b32 v{vF+2}, v{vDen} offset:{LDS_SL}
    ds_write_b32 v{vF+2}, v{vNum} offset:{LDS_SL+256}
    s_lshl_b32 s{sT0}, s{sN}, 2
    v_mov_b32 v{vF+3}, s{sT0}
    s_mov_b64 exec, 1
    ds_write_b32 v{vF+3}, v{vOne} offset:{LDS_MSK}
    s_mov_b64 exec, -1
    s_add_u32 s{sN}, s{sN}, 16
    s_branch K_s_node""")

eN, eC, eM, eW, eAd = 8, 9, 10, 11, 12
eDen, eNum, eT0, eT1, eU = 16, 20, 28, 32, 36
OUTF = (" " + opt("outf", "").replace("+", " ")).rstrip()
def slot_addrs():
    o(f"""    v_ffbl_b32 v{eW}, v{eM}
    v_cmp_ne_u32 vcc, 0, v{eM}
    v_lshl_add_u32 v{eW}, v{eW}, 9, v14
    v_add_u32 v33, -1, v{eM}
    v_cndmask_b32 v15, v35, v{eW}, vcc
    v_and_b32 v{eM}, v{eM}, v33
    v_ffbl_b32 v{eW}, v{eM}
    v_cmp_ne_u32 vcc, 0, v{eM}
    v_lshl_add_u32 v{eW}, v{eW}, 9, v14
    v_add_u32 v33, -1, v{eM}
    v_cndmask_b32 v34, v35, v{eW}, vcc
    v_and_b32 v{eM}, v{eM}, v33""")
o(f"""K_main_done:
    s_mov_b32 s{sT3}, 0
K_main_done2:
    s_setprio 0
    s_waitcnt vmcnt(0) lgkmcnt(0)
    s_cmp_ge_u32 s3, 10
    s_cbranch_scc1 K_e_wait
    v_lshrrev_b32 v{eN}, 4, v0
    v_and_b32 v{eC}, 15, v0
    v_lshlrev_b32 v{eAd}, 2, v{eN}
    ds_read_b32 v{eM}, v{eAd} offset:{LDS_MSK}
    v_mul_u32_u24 v13, 272, v{eN}
    v_lshl_add_u32 v13, v{eC}, 4, v13
    v_add_u32 v13, {LDS_U}, v13
    ds_read_b128 v[{eU}:{eU+3}], v13
    v_lshlrev_b32 v{eT0}, 16, v{vXe}
    v_and_b32 v{eT0+1}, 0xffff0000, v{vXe}
    v_lshlrev_b32 v{eT0+2}, 16, v{vXe+1}
    v_and_b32 v{eT0+3}, 0xffff0000, v{vXe+1}
    v_lshlrev_b32 v14, 4, v{eC}
    v_add_u32 v35, {LDS_ZS}, v14
    v_lshl_add_u32 v14, v{eN}, 9, v14
    v_add_u32 v14, {LDS_SL}, v14
    v_mov_b32 v13, v{eAd}
    v_add_u32 v{eAd}, s{sSB}, v{eN}
    v_lshlrev_b32 v{eAd}, 7, v{eAd}
    v_lshl_add_u32 v{eAd}, v{eC}, 3, v{eAd}
    s_waitcnt lgkmcnt(0)""")
slot_addrs()
o("K_e_wait:")
stamp(12)
stampc(15)
o(f"""    s_barrier
    s_cmp_ge_u32 s3, 10
    s_cbranch_scc1 K_exit
    s_cmp_eq_u32 s{sT3}, 0
    s_cbranch_scc1 K_e_fast
    ds_read_b32 v{eM}, v13 offset:{LDS_MSK}
    s_waitcnt lgkmcnt(0)""")
slot_addrs()
o(f"""K_e_fast:
    ds_read_b128 v[{eDen}:{eDen+3}], v15
    ds_read_b128 v[{eNum}:{eNum+3}], v15 offset:256
    ds_read_b128 v[40:43], v34
    ds_read_b128 v[44:47], v34 offset:256
    s_waitcnt lgkmcnt(0)
K_e_loop:
    v_pk_add_f32 v[{eDen}:{eDen+1}], v[{eDen}:{eDen+1}], v[40:41]
    v_pk_add_f32 v[{eDen+2}:{eDen+3}], v[{eDen+2}:{eDen+3}], v[42:43]
    v_pk_add_f32 v[{eNum}:{eNum+1}], v[{eNum}:{eNum+1}], v[44:45]
    v_pk_add_f32 v[{eNum+2}:{eNum+3}], v[{eNum+2}:{eNum+3}], v[46:47]
    v_cmp_ne_u32 vcc, 0, v{eM}
    s_cbranch_vccz K_e_end
    v_ffbl_b32 v{eW}, v{eM}
    v_lshl_add_u32 v{eW}, v{eW}, 9, v14
    v_add_u32 v33, -1, v{eM}
    v_cndmask_b32 v34, v35, v{eW}, vcc
    v_and_b32 v{eM}, v{eM}, v33
    ds_read_b128 v[40:43], v34
    ds_read_b128 v[44:47], v34 offset:256
    s_waitcnt lgkmcnt(0)
    s_branch K_e_loop
K_e_end:""")
for i in range(4): o(f"    v_add_f32 v{eDen+i}, 0x358637bd, v{eDen+i}")
for i in range(4): o(f"    v_rcp_f32 v{eDen+i}, v{eDen+i}")
o(f"    v_cmp_gt_u32 vcc, s{sNB}, v{eN}")
for i in range(4): o(f"    v_fma_f32 v{eU+i}, v{eNum+i}, v{eDen+i}, v{eU+i}")
for i in range(4): o(f"    v_max_f32 v{eU+i}, 0, v{eU+i}")
for i in range(4): o(f"    v_add_f32 v{eU+i}, v{eU+i}, v{eT0+i}")
o(f"""    v_cvt_pk_bf16_f32 v{eT1}, v{eU}, v{eU+1}
    v_cvt_pk_bf16_f32 v{eT1+1}, v{eU+2}, v{eU+3}
    s_and_saveexec_b64 s[{sSAVE}:{sSAVE+1}], vcc
    s_cbranch_execz K_exit
    buffer_store_dwordx2 v[{eT1}:{eT1+1}], v{eAd}, s[{rOUT}:{rOUT+3}], 0 offen{OUTF}
K_exit:""")
if STAMP or DBG:
    o("    s_mov_b64 exec, -1\n    s_waitcnt vmcnt(0)")
    stamp(13)
    stamp_flush()
o("K_done:\n    s_endpgm")
o(f""".section .rodata,"a"
.p2align 6
.amdhsa_kernel {NAME}
  .amdhsa_next_free_vgpr 128
  .amdhsa_next_free_sgpr 102
  .amdhsa_accum_offset 128
  .amdhsa_group_segment_fixed_size 0
  .amdhsa_kernarg_size 96
  .amdhsa_user_sgpr_count 2
  .amdhsa_user_sgpr_kernarg_segment_ptr 1
  .amdhsa_system_sgpr_workgroup_id_x 1
  .amdhsa_dx10_clamp 0
.end_amdhsa_kernel""")
print("\n".join(L))
```

```python
import sys
FL = set(sys.argv[1].split(',')) if len(sys.argv) > 1 else set()
LIGHT = "light" in FL
STAMP = "stamp" in FL or LIGHT
PREF = "nopref" not in FL
NAME = "standalone__edge_featured_mpnn_gatedgcn__graph_kernel"

LSET = {0, 13}
for f_ in FL:
    if f_.startswith('st='): LSET |= {int(x) for x in f_[3:].split('-')}
L = []
def o(s=""): L.append(s)

N, D, E = 10000, 64, 640000
NB = 256
CH = E // NB
BMUL = 26843
WS_T = 0
T_BYTES = (N+1)*256
WS_O = 0x280000
O_BYTES = NB*NB*8
WS_C = 0x300000
C_BYTES = NB*CH*8
WS_EP = 0x7F0000
WS_TF = 0x7F1000
WS_STAMP = 0x800000
NLOG2E = 0xBFB8AA3B
WROW = 144
SPIN_MAX = 5000000
SPIN_LDS = 20000000
SC = " sc1"
def opt(name, default):
    for f in FL:
        if f.startswith(name + "="): return f.split("=")[1]
    return default
SLEEP = int(opt("sleep", 3))
B4B = "    s_barrier\n" if "b4b" in FL else ""
PRE_SLEEP = ("    s_sleep %s\n" % opt("presleep", "")) if opt("presleep", "") else ""
SCW = " " + opt("stf", "sc1").replace("+", " ")
SCE = " " + opt("ldf", "sc1").replace("+", " ")

LDS_CNT2, LDS_MSK, LDS_FLG = 0, 256, 512
LDS_CNT1, LDS_BASE1 = 768, 1792
LDS_O = 2816
LDS_E = LDS_O + 12800
LDS_A = LDS_E + 12800
LDS_SL = LDS_A + 48*272
LDS_U = LDS_SL + 56*512
LDS_W2 = LDS_U + 48*272
LDS_W1 = LDS_W2 + 2*64*WROW
LDS_ZS = LDS_W1 + 2*64*WROW
LDS_TOT = LDS_ZS + 512
LDS_SORT = LDS_SL
CAPQ = 768
assert LDS_SORT + CH*8 + 16 < 65536

def srd(dst, base, nrec, w3=0x20000, stride=0, off=0):
    if off:
        o(f"    s_add_u32 s{dst}, s{base}, {off:#x}")
        o(f"    s_addc_u32 s{dst+1}, s{base+1}, 0")
        o(f"    s_and_b32 s{dst+1}, s{dst+1}, 0xffff")
    else:
        o(f"    s_mov_b32 s{dst}, s{base}")
        o(f"    s_and_b32 s{dst+1}, s{base+1}, 0xffff")
    if stride: o(f"    s_or_b32 s{dst+1}, s{dst+1}, {stride<<16:#x}")
    o(f"    s_mov_b32 s{dst+2}, {nrec:#x}")
    o(f"    s_mov_b32 s{dst+3}, {w3:#x}")

SCAN = ("row_shr:1 row_mask:0xf bank_mask:0xf bound_ctrl:1", "row_shr:2 row_mask:0xf bank_mask:0xf bound_ctrl:1",
        "row_shr:4 row_mask:0xf bank_mask:0xf bound_ctrl:1", "row_shr:8 row_mask:0xf bank_mask:0xf bound_ctrl:1",
        "row_bcast:15 row_mask:0xa bank_mask:0xf", "row_bcast:31 row_mask:0xc bank_mask:0xf")
def wave_scan(v, fill=()):
    fill = list(fill)
    for ctl in SCAN:
        if len(fill) >= 2:
            o("    " + fill.pop(0)); o("    " + fill.pop(0))
        else:
            o("    s_nop 1")
        o(f"    v_add_u32_dpp v{v}, v{v}, v{v} {ctl}")
    for f in fill: o("    " + f)

sX, sEA, sSRC, sDST = 4, 6, 8, 10
sWA, sWB, sWC, sWU = 12, 14, 16, 18
sWV, sOUT = 20, 22
sWS = 24
sEP = 26
rA, rB, rC = 28, 32, 36
rX, rOFF, rCH, rTAB, rTABW, rOUT = 40, 44, 48, 52, 56, 60
sSB, sNB, sSB4 = 64, 65, 66
sT0, sT1, sT2, sT3 = 67, 68, 69, 70
sM = 72
sV625 = 72
sBIG = 88
sSO = 90
sTAGL, sTAGH = 94, 95
sSAVE = 96
sSPIN = 98
sGOFF = 99
sBETA = 71
sSTMP = 100
sQ, sQ0, sQ1, sNODE, sBND, sSTOP, sREM = 4, 5, 6, 7, 8, 9, 10
sC63, sSEL, sIT = 12, 14, 15

vLane, vT16, vLane4, vJ, vJ16, vSeg, vG4 = 1, 3, 4, 5, 6, 7, 2
vXe, vWc = 24, 26
vOne = 60
vTmp = 62
vInc, vBase = 70, 71
vST = 127
vZ = 61

def stamp(idx, pre=False):
    if not STAMP: return
    if LIGHT and idx not in LSET: return
    if not pre:
        o(f"    s_memrealtime s[{sSTMP}:{sSTMP+1}]")
        o(f"    s_waitcnt lgkmcnt(0)")
    o(f"    v_writelane_b32 v{vST}, s{sSTMP}, {idx}")
def stampc(idx):
    if not STAMP or LIGHT: return
    o(f"    s_memtime s[{sSTMP}:{sSTMP+1}]")
    o(f"    s_waitcnt lgkmcnt(0)")
    o(f"    v_writelane_b32 v{vST}, s{sSTMP}, {idx}")
def stamp_flush():
    if not STAMP: return
    o(f"""    s_mov_b64 exec, -1
    s_lshl_b32 s{sT0}, s2, 4
    s_add_u32 s{sT0}, s{sT0}, s3
    s_lshl_b32 s{sT0}, s{sT0}, 7
    s_add_u32 s{rA}, s{sWS}, {WS_STAMP:#x}
    s_addc_u32 s{rA+1}, s{sWS+1}, 0
    s_and_b32 s{rA+1}, s{rA+1}, 0xffff
    s_mov_b32 s{rA+2}, 0x100000
    s_mov_b32 s{rA+3}, 0x20000
    s_mov_b32 exec_lo, -1
    s_mov_b32 exec_hi, 0
    buffer_store_dword v{vST}, v{vLane4}, s[{rA}:{rA+3}], s{sT0} offen
    s_mov_b64 exec, -1""")

for line in """GatedGCN edge-featured MPNN (N=10000 nodes, D=64, E=640000 edges), one launch, 256 workgroups of 16 waves, one per CU.
Kernarg (pointers): 0 x, 8 e_attr, 16 src, 24 dst, 32 w_a, 40 w_b, 48 w_c, 56 w_u, 64 w_v, 72 out, 80 debug, 88 ws.

Maths: g = (x@w_a)[dst] + (x@w_b)[src] + e*w_c ; eta = sigmoid(g) ; out = x + relu(x@w_u + sum(eta*(x@w_v)[src]) / (sum(eta) + 1e-6)).
 Everything is kept in the exp2 domain (weights scaled by -log2 e).  A table row holds, per feature, one dword = (V | B):
 B = bf16(-log2e * x@w_b) in the low half, V = x@w_v rounded so that the whole dword read as fp32 is the nearest value to V.
 Two edges share one reciprocal: 1/a + 1/b = (a+b)/(ab); 2^t is clamped at 2^63 (far below the 1e-6 guard) so ab cannot overflow.

Phase 1 (workgroup p): waves 0..9 counting-sort edge chunk p (2500 edges) by destination bucket in LDS and write it to ws;
 waves 10..15 build table rows 40p..40p+39 (MFMA) and the A = x@w_a - 63, U = x@w_u rows of this workgroup's bucket.
Hand-off: every handed-off byte is stored and loaded with sc1; a writer waits for its stores (vmcnt(0) + barrier) and then
 publishes tagged 8-byte granules {start, count, 40-bit tag}; readers poll for the tag.  The tag is the 64-bit word left in
 ws by the previous launch plus one (it only tells this launch's hand-offs from older ones).  All polls are bounded.
Phase 2 (bucket of <= 40 nodes): fetch the 256 segments, counting-sort them by node in LDS (lists padded to 4 with a dummy
 row), split the list evenly over the 16 waves, lane = feature, gather table rows, accumulate in registers, combine the partial
 sums through LDS slots.  Buckets that do not fit the fast path (segment > 32 entries or > 3072 entries) take a slow general path.

ws: 0x000000 table (10001 x 256 B) | 0x280000 granules [16][256][16] x 8 B | 0x300000 chunks [256][2500] x 8 B
    0x7f0000 epoch | 0x7f1000 table-ready granules [8][256] x 8 B""".split("\n"):
    o(("; " + line).rstrip())
o(f"; @launch grid=({NB},1,1) block=(1024,1,1) lds={LDS_TOT}")
o('.amdgcn_target "amdgcn-amd-amdhsa--gfx950"')
o(".text")
o(f".globl {NAME}\n.p2align 8\n.type {NAME},@function\n{NAME}:")
if STAMP: o(f"    s_memrealtime s[{sSTMP}:{sSTMP+1}]")
o(f"""    s_cmp_ge_u32 s2, {NB}
    s_cbranch_scc1 K_done
    s_load_dwordx8 s[4:11], s[0:1], 0
    s_load_dwordx2 s[{sWS}:{sWS+1}], s[0:1], 88
    s_load_dwordx8 s[12:19], s[0:1], 32        ; w_a, w_b, w_c, w_u
    s_load_dwordx4 s[20:23], s[0:1], 64        ; w_v, out
    v_and_b32 v{vLane}, 63, v0
    v_lshrrev_b32 v{vG4}, 6, v0
    v_lshlrev_b32 v{vT16}, 4, v0
    v_readfirstlane_b32 s3, v{vG4}
    v_lshlrev_b32 v{vLane4}, 2, v{vLane}
    v_mov_b32 v{vOne}, 1
    v_mov_b32 v{vZ}, 0
    v_mov_b32 v{vTmp}, 0
    v_lshlrev_b32 v{vTmp+1}, 2, v0
    v_lshlrev_b32 v8, 3, v0                   ; t*8
    v_cmp_gt_u32 vcc, {CH//4}, v0
    s_mul_i32 s{sSO}, s2, {CH*4}
    s_mul_i32 s{sSO+1}, s2, {CH*2}
    s_mov_b64 s[{sV625}:{sV625+1}], vcc
    s_cmp_ge_u32 s3, 7
    s_cbranch_scc1 K_nozero
    ds_write_b32 v{vTmp+1}, v{vTmp}
K_nozero:
    v_and_b32 v{vJ}, 15, v{vLane}
    v_lshrrev_b32 v{vG4}, 4, v{vLane}         ; g
    s_cmp_ge_u32 s3, 10
    s_cbranch_scc1 K_tab_start
    s_waitcnt lgkmcnt(0)""")
stamp(0, pre=True)
if "sprio" in FL: o("    s_setprio 2")
srd(rA, sDST, E*4)
o(f"""    s_mov_b64 exec, s[{sV625}:{sV625+1}]
    buffer_load_dwordx4 v[32:35], v{vT16}, s[{rA}:{rA+3}], s{sSO} offen
    s_mov_b64 exec, -1""")
srd(rB, sSRC, E*4); srd(rC, sEA, E*2); srd(rOUT, sWS, 8, off=WS_EP)
o(f"""    s_barrier
    s_mov_b64 exec, s[{sV625}:{sV625+1}]
    buffer_load_dwordx4 v[36:39], v{vT16}, s[{rB}:{rB+3}], s{sSO} offen       ; src
    buffer_load_dwordx2 v[40:41], v8, s[{rC}:{rC+3}], s{sSO+1} offen          ; e
    s_mov_b64 exec, -1
    buffer_load_dwordx2 v[10:11], v{vZ}, s[{rOUT}:{rOUT+3}], 0 offen
    v_mov_b32 v48, {N*256}
    v_mov_b32 v49, {N*256}
    v_mov_b32 v50, {N*256}
    v_mov_b32 v51, {N*256}
    v_mov_b32 v52, 0
    v_mov_b32 v53, 0
    v_mov_b32 v54, 0
    v_mov_b32 v55, 0
    s_cmp_ge_u32 s3, 13
    s_cbranch_scc1 K_nofilla
    v_cmp_gt_u32 vcc, 800, v0
    s_and_saveexec_b64 s[{sBIG}:{sBIG+1}], vcc
    ds_write_b128 v{vT16}, v[48:51] offset:{LDS_O}
    ds_write_b128 v{vT16}, v[52:55] offset:{LDS_E}
    s_mov_b64 exec, s[{sBIG}:{sBIG+1}]
K_nofilla:
    v_lshlrev_b32 v56, 4, v{vLane}
    v_add_u32 v56, {LDS_ZS}, v56
    s_cmp_lg_u32 s3, 0
    s_cbranch_scc1 K_nozs
    s_mov_b32 exec_hi, 0
    ds_write_b128 v56, v[52:55]
    s_mov_b64 exec, -1
K_nozs:
""")
def common_consts():
    o(f"""    ; bucket of this workgroup: consecutive buckets on one die (speed only); node range [start(b), start(b+1))
    s_and_b32 s{sBETA}, s2, 7
    s_lshl_b32 s{sBETA}, s{sBETA}, 5
    s_lshr_b32 s{sT0}, s2, 3
    s_or_b32 s{sBETA}, s{sBETA}, s{sT0}
    s_mul_i32 s{sSB}, s{sBETA}, 40000
    s_lshr_b32 s{sSB}, s{sSB}, 10
1:
    s_mul_i32 s{sT0}, s{sSB}, {BMUL}
    s_lshr_b32 s{sT0}, s{sT0}, 20
    s_cmp_ge_u32 s{sT0}, s{sBETA}
    s_cbranch_scc1 2f
    s_add_u32 s{sSB}, s{sSB}, 1
    s_branch 1b
2:
    s_add_u32 s{sT1}, s{sBETA}, 1
    s_mul_i32 s{sNB}, s{sT1}, 40000
    s_lshr_b32 s{sNB}, s{sNB}, 10
3:
    s_mul_i32 s{sT0}, s{sNB}, {BMUL}
    s_lshr_b32 s{sT0}, s{sT0}, 20
    s_cmp_ge_u32 s{sT0}, s{sT1}
    s_cbranch_scc1 4f
    s_add_u32 s{sNB}, s{sNB}, 1
    s_branch 3b
4:
    s_min_u32 s{sNB}, s{sNB}, {N}
    s_sub_u32 s{sNB}, s{sNB}, s{sSB}
    s_lshl_b32 s{sSB4}, s{sSB}, 2
    v_add_u32 v{vJ16}, 16, v{vJ}
    v_lshrrev_b32 v{vTmp}, 4, v0              ; t>>4
    v_mul_u32_u24 v{vSeg}, {4*CH*8}, v{vTmp}
    v_lshlrev_b32 v{vTmp+7}, 1, v{vLane}""")
    srd(rX, sX, N*D*2)
    srd(rC, sWC, D*2)
    srd(rOFF, sWS, O_BYTES, off=WS_O)
    srd(rCH, sWS, C_BYTES, off=WS_C)
    srd(rTAB, sWS, T_BYTES, w3=0x00800000, stride=4, off=WS_T)
    srd(rTABW, sWS, T_BYTES, off=WS_T)
    srd(rOUT, sOUT, N*D*2)
common_consts()
o(f"""    ; epilogue x address
    v_add_u32 v{vTmp+6}, s{sSB}, v{vTmp}
    v_lshlrev_b32 v{vTmp+6}, 7, v{vTmp+6}
    v_lshl_add_u32 v{vTmp+6}, v{vJ}, 3, v{vTmp+6}
    s_mov_b64 exec, s[{sV625}:{sV625+1}]
    s_waitcnt vmcnt(3)""")
for i in range(4): o(f"    v_mul_u32_u24 v{44+i}, {BMUL}, v{32+i}")
for i in range(4): o(f"    v_lshrrev_b32 v{44+i}, 18, v{44+i}")
for i in range(4): o(f"    v_and_b32 v{44+i}, 0x3fc, v{44+i}")
for i in range(4): o(f"    ds_add_rtn_u32 v{48+i}, v{44+i}, v{vOne} offset:{LDS_CNT1}")
for i in range(4): o(f"    v_and_b32 v{32+i}, 63, v{32+i}")
o("    s_mov_b64 exec, -1")
stamp(1)
o(f"""    s_waitcnt lgkmcnt(0)
    s_barrier""")
stamp(2)
o(f"""    s_cmp_lg_u32 s3, 0
    s_cbranch_scc1 K_noscan
    ds_read_b128 v[72:75], v{vT16} offset:{LDS_CNT1}
    s_waitcnt lgkmcnt(0)
    v_add_u32 v76, v72, v73
    v_add_u32 v77, v76, v74
    v_add_u32 v78, v77, v75
    v_mov_b32 v79, v78""")
wave_scan(79)
o(f"""    v_sub_u32 v80, v79, v78
    v_add_u32 v81, v80, v72
    v_add_u32 v82, v80, v76
    v_add_u32 v83, v80, v77
    ds_write_b128 v{vT16}, v[80:83] offset:{LDS_BASE1}
K_noscan:
    s_waitcnt lgkmcnt(0)
    s_barrier""")
stamp(3)
o(f"    s_mov_b64 exec, s[{sV625}:{sV625+1}]")
for i in range(4): o(f"    ds_read_b32 v{12+i}, v{44+i} offset:{LDS_BASE1}")
o("    s_waitcnt vmcnt(0)")
for i in range(4): o(f"    v_lshl_or_b32 v{52+2*i}, v{36+i}, 8, v{32+i}")
o(f"""    v_lshlrev_b32 v53, 16, v40
    v_and_b32 v55, 0xffff0000, v40
    v_lshlrev_b32 v57, 16, v41
    v_and_b32 v59, 0xffff0000, v41
    s_waitcnt lgkmcnt(0)""")
for i in range(4): o(f"    v_add_lshl_u32 v{40+i}, v{12+i}, v{48+i}, 3")
for i in range(4): o(f"    ds_write_b64 v{40+i}, v[{52+2*i}:{53+2*i}] offset:{LDS_SORT}")
o(f"""    s_mov_b64 exec, -1
    v_add_u32 v8, {640*16}, v{vT16}
    v_cmp_gt_u32 vcc, {CH*8//16 - 640}, v0
    s_mul_i32 s{sT0}, s2, {CH*8}
    s_mov_b64 s[{sSAVE}:{sSAVE+1}], vcc
    v_readfirstlane_b32 s{sEP}, v10
    v_readfirstlane_b32 s{sEP+1}, v11
    s_waitcnt lgkmcnt(0)
    s_barrier""")
stamp(4)
o(f"""    ds_read_b128 v[32:35], v{vT16} offset:{LDS_SORT}
    s_mov_b64 exec, s[{sSAVE}:{sSAVE+1}]
    ds_read_b128 v[36:39], v8 offset:{LDS_SORT}
    s_mov_b64 exec, -1
    s_waitcnt lgkmcnt(0)
    buffer_store_dwordx4 v[32:35], v{vT16}, s[{rCH}:{rCH+3}], s{sT0} offen{SCW}
    s_mov_b64 exec, s[{sSAVE}:{sSAVE+1}]
    buffer_store_dwordx4 v[36:39], v8, s[{rCH}:{rCH+3}], s{sT0} offen{SCW}
    s_mov_b64 exec, -1""")
stamp(5)
def tags(inc=True):
    if inc: o(f"""    ; this launch's epoch
    s_add_u32 s{sEP}, s{sEP}, 1
    s_addc_u32 s{sEP+1}, s{sEP+1}, 0""")
    o(f"""    ; this launch's tag
    s_and_b32 s{sTAGL}, s{sEP}, 0xff
    s_lshl_b32 s{sTAGL}, s{sTAGL}, 24
    s_lshr_b64 s[{sSAVE}:{sSAVE+1}], s[{sEP}:{sEP+1}], 8
    s_mov_b32 s{sTAGH}, s{sSAVE}""")
tags()
o(f"""    ; granule of bucket j (thread j < 256) lives at (j>>4)*32768 + p*128 + (j&15)*8
    v_lshrrev_b32 v8, 4, v0
    v_lshlrev_b32 v86, 15, v8
    v_lshl_add_u32 v86, v{vJ}, 3, v86
    v_and_b32 v9, 255, v0
    v_lshlrev_b32 v9, 2, v9
    ds_read_b32 v84, v9 offset:{LDS_BASE1}
    ds_read_b32 v85, v9 offset:{LDS_CNT1}
    s_waitcnt lgkmcnt(0)
    v_lshl_or_b32 v84, v85, 12, v84
    v_or_b32 v84, s{sTAGL}, v84
    v_mov_b32 v85, s{sTAGH}
    s_lshl_b32 s{sT0}, s2, 7                   ; p*128
    v_mov_b32 v12, s{sEP}
    v_mov_b32 v13, s{sEP+1}
    s_mov_b64 exec, 1
    ds_write_b64 v{vZ}, v[12:13] offset:{LDS_FLG+32}
    s_mov_b64 exec, -1
    s_waitcnt vmcnt(0) lgkmcnt(0)""")
stamp(6)
o(f"""    s_barrier""")
stamp(7)
o(f"""    s_cmp_ge_u32 s3, 4
    s_cbranch_scc1 K_poll_setup
    buffer_store_dwordx2 v[84:85], v86, s[{rOFF}:{rOFF+3}], s{sT0} offen{SC}
    s_waitcnt vmcnt(0)
    s_branch K_poll_setup""")

vX1, vW1r, vW2r, vXf2 = 32, 72, 88, 16
o(f"""K_tab_start:
    s_sub_u32 s{sT0}, s3, 10
    s_lshr_b32 s{sT2}, s{sT0}, 1              ; tau
    s_and_b32 s{sT3}, s{sT0}, 1               ; half
    s_lshl_b32 s{sT0}, s{sT2}, 4              ; 16*tau
    s_mul_i32 s{sT1}, s2, 40
    s_add_u32 s{sT1}, s{sT1}, s{sT0}
    v_add_u32 v9, s{sT1}, v{vJ}
    v_lshlrev_b32 v10, 7, v9
    v_lshl_add_u32 v10, v{vG4}, 4, v10
    v_subrev_u32 v11, 640, v0                 ; u = t - 640
    v_lshlrev_b32 v12, 4, v11
    v_add_u32 v13, {384*16}, v12
    s_waitcnt lgkmcnt(0)""")
stamp(0, pre=True)
o("    s_barrier                                  ; B0")
srd(rA, sX, N*D*2); srd(rB, sWB, D*D*2); srd(rC, sWV, D*D*2)
o(f"""    buffer_load_dwordx4 v[{vX1}:{vX1+3}], v10, s[{rA}:{rA+3}], 0 offen
    buffer_load_dwordx4 v[{vX1+4}:{vX1+7}], v10, s[{rA}:{rA+3}], 0 offen offset:64
    buffer_load_dwordx4 v[{vW1r}:{vW1r+3}], v12, s[{rB}:{rB+3}], 0 offen
    buffer_load_dwordx4 v[{vW1r+4}:{vW1r+7}], v12, s[{rC}:{rC+3}], 0 offen
    s_cmp_ge_u32 s3, 12
    s_cbranch_scc1 K_tab_ld1
    buffer_load_dwordx4 v[{vW1r+8}:{vW1r+11}], v13, s[{rB}:{rB+3}], 0 offen
    buffer_load_dwordx4 v[{vW1r+12}:{vW1r+15}], v13, s[{rC}:{rC+3}], 0 offen
K_tab_ld1:
    v_mov_b32 v48, {N*256}
    v_mov_b32 v49, {N*256}
    v_mov_b32 v50, {N*256}
    v_mov_b32 v51, {N*256}
    v_mov_b32 v52, 0
    v_mov_b32 v53, 0
    v_mov_b32 v54, 0
    v_mov_b32 v55, 0
    s_cmp_ge_u32 s3, 13
    s_cbranch_scc1 K_nofillb
    v_cmp_gt_u32 vcc, 800, v0
    s_and_saveexec_b64 s[{sBIG}:{sBIG+1}], vcc
    ds_write_b128 v{vT16}, v[48:51] offset:{LDS_O}
    ds_write_b128 v{vT16}, v[52:55] offset:{LDS_E}
    s_mov_b64 exec, s[{sBIG}:{sBIG+1}]
K_nofillb:
    v_mov_b32 v16, v12
    v_mov_b32 v17, v13""")
common_consts()
o(f"""    ; staging addresses of chunks u and u+384: (c>>3)*WROW + (c&7)*16
    v_lshrrev_b32 v14, 3, v11
    v_mul_u32_u24 v14, {WROW}, v14
    v_and_b32 v15, 7, v11
    v_lshl_add_u32 v14, v15, 4, v14
    v_add_u32 v14, {LDS_W2}, v14
    v_add_u32 v15, {48*WROW}, v14              ; chunk u+384
    v_bfe_u32 v{vTmp+5}, v{vLane}, 2, 2
    v_lshl_add_u32 v{vTmp+5}, v{vG4}, 3, v{vTmp+5}
    v_mul_u32_u24 v{vTmp+5}, {WROW}, v{vTmp+5}
    v_and_b32 v{vTmp+1}, 3, v{vLane}
    v_lshl_add_u32 v{vTmp+5}, v{vTmp+1}, 3, v{vTmp+5}
    s_lshl_b32 s{sT0}, s{sT3}, 6
    s_add_u32 s{sT0}, s{sT0}, {LDS_W2}
    v_add_u32 v{vTmp+5}, s{sT0}, v{vTmp+5}
    s_sub_u32 s{sT0}, s3, 10
    s_mov_b32 s{sT1}, {LDS_U - 3*2304}
    s_cmp_ge_u32 s{sT0}, 3
    s_cselect_b32 s{sT1}, s{sT1}, {LDS_A}
    s_mul_i32 s{sT0}, s{sT0}, 2304
    s_add_u32 s{sT0}, s{sT0}, s{sT1}
    v_mul_u32_u24 v10, 144, v{vJ}
    v_lshl_add_u32 v10, v{vG4}, 4, v10
    v_add_u32 v10, s{sT0}, v10
    v_lshrrev_b32 v11, 3, v{vLane}
    v_mul_u32_u24 v12, 144, v11
    v_and_b32 v13, 7, v{vLane}
    v_lshl_add_u32 v12, v13, 4, v12
    v_add_u32 v12, s{sT0}, v12
    s_lshl_b32 s{sT0}, s{sT2}, 4
    v_add_u32 v11, s{sT0}, v11
    v_lshlrev_b32 v9, 8, v11
    v_lshl_add_u32 v9, v13, 4, v9
    v_mov_b32 v8, 0
    s_waitcnt lgkmcnt(0)
    s_barrier                                  ; B1
    s_barrier                                  ; B2
    ; second weight pair, x fragments of the A/U tile tau, w_c""")
srd(rA, sWA, D*D*2); srd(rB, sWU, D*D*2)
o(f"""    buffer_load_dwordx4 v[120:123], v16, s[{rA}:{rA+3}], 0 offen
    buffer_load_dwordx4 v[52:55], v16, s[{rB}:{rB+3}], 0 offen
    s_cmp_ge_u32 s3, 12
    s_cbranch_scc1 K_tab_ld2
    buffer_load_dwordx4 v[56:59], v17, s[{rA}:{rA+3}], 0 offen
    buffer_load_dwordx4 v[28:31], v17, s[{rB}:{rB+3}], 0 offen
K_tab_ld2:
    s_lshl_b32 s{sT0}, s{sT2}, 4
    s_add_u32 s{sT0}, s{sT0}, s{sSB}
    v_add_u32 v{vTmp}, s{sT0}, v{vJ}
    v_lshlrev_b32 v{vTmp}, 7, v{vTmp}
    v_lshl_add_u32 v{vTmp}, v{vG4}, 4, v{vTmp}
    buffer_load_dwordx4 v[{vXf2}:{vXf2+3}], v{vTmp}, s[{rX}:{rX+3}], 0 offen
    buffer_load_dwordx4 v[{vXf2+4}:{vXf2+7}], v{vTmp}, s[{rX}:{rX+3}], 0 offen offset:64
    s_barrier                                  ; B3
    s_cmp_ge_u32 s3, 12
    s_cbranch_scc1 K_tab_w5
    s_waitcnt vmcnt(6)
    s_branch K_tab_w
K_tab_w5:
    s_waitcnt vmcnt(4)
K_tab_w:""")
stamp(1)
o(f"""    ds_write_b128 v14, v[{vW1r}:{vW1r+3}] offset:{128*WROW}
    ds_write_b128 v14, v[{vW1r+4}:{vW1r+7}] offset:{192*WROW}
    s_cmp_ge_u32 s3, 12
    s_cbranch_scc1 K_tab_st0
    ds_write_b128 v15, v[{vW1r+8}:{vW1r+11}] offset:{128*WROW}
    ds_write_b128 v15, v[{vW1r+12}:{vW1r+15}] offset:{192*WROW}
K_tab_st0:
    s_waitcnt lgkmcnt(0)
    s_mov_b64 exec, 1
    ds_add_u32 v8, v{vOne} offset:{LDS_FLG+4}
    s_mov_b64 exec, -1
    s_mov_b32 s{sSPIN}, 0
K_tab_meet:
    ds_read_b32 v{vTmp}, v8 offset:{LDS_FLG+4}
    s_add_u32 s{sSPIN}, s{sSPIN}, 1
    s_waitcnt lgkmcnt(0)
    v_readfirstlane_b32 s{sT0}, v{vTmp}
    s_cmp_ge_u32 s{sSPIN}, {SPIN_LDS}
    s_cbranch_scc1 K_tab_met
    s_cmp_lt_u32 s{sT0}, 6
    s_cbranch_scc1 K_tab_meet
K_tab_met:""")
def frag(k, s_): return 72 + (k*2+s_)*4
for m in range(2):
    for jj in range(2):
        for s_ in range(2):
            f = frag(m*2+jj, s_)
            off = (2+m)*64*WROW + s_*32*WROW + jj*32
            o(f"    ds_read_b64_tr_b16 v[{f}:{f+1}], v{vTmp+5} offset:{off}")
            o(f"    ds_read_b64_tr_b16 v[{f+2}:{f+3}], v{vTmp+5} offset:{off+4*WROW}")
for k in range(4):
    a_ = 104 + k*4
    o(f"    s_waitcnt lgkmcnt({12-4*k})")
    o(f"    v_mfma_f32_16x16x32_bf16 v[{a_}:{a_+3}], v[{frag(k,0)}:{frag(k,0)+3}], v[{vX1}:{vX1+3}], 0")
    o(f"    v_mfma_f32_16x16x32_bf16 v[{a_}:{a_+3}], v[{frag(k,1)}:{frag(k,1)+3}], v[{vX1+4}:{vX1+7}], v[{a_}:{a_+3}]")
o(f"""    s_mov_b32 s{sT0}, {NLOG2E:#x}
    s_mov_b32 s{sT1}, 0xffff0000
    s_mov_b32 s{sSPIN}, 0x80000000
    s_mov_b32 s{sGOFF}, 0x7fffffff
    s_lshl_b32 s{sSO+1}, s{sT3}, 7
    s_mul_i32 s{sSO+2}, s2, {40*256}
    s_add_u32 s{sSO+2}, s{sSO+2}, s{sSO+1}
    s_nop 1""")
for jj in range(2):
    B = 104 + jj*4; Vv = 112 + jj*4
    t = 40
    for i in range(4): o(f"    v_mul_f32 v{B+i}, s{sT0}, v{B+i}")
    o(f"    v_cvt_pk_bf16_f32 v{t}, v{B}, v{B+1}")
    o(f"    v_cvt_pk_bf16_f32 v{t+1}, v{B+2}, v{B+3}")
    o(f"    v_and_b32 v{B}, 0xffff, v{t}")
    o(f"    v_lshrrev_b32 v{B+1}, 16, v{t}")
    o(f"    v_and_b32 v{B+2}, 0xffff, v{t+1}")
    o(f"    v_lshrrev_b32 v{B+3}, 16, v{t+1}")
    T = 44 + jj*4
    for i in range(4): o(f"    v_and_b32 v{T+i}, s{sGOFF}, v{Vv+i}")
    for i in range(4): o(f"    v_add_u32 v{T+i}, 0x8000, v{T+i}")
    for i in range(4): o(f"    v_sub_u32_e64 v{T+i}, v{T+i}, v{B+i} clamp")
    for i in range(4): o(f"    v_and_or_b32 v{T+i}, v{T+i}, s{sT1}, v{B+i}")
    for i in range(4): o(f"    v_and_or_b32 v{T+i}, v{Vv+i}, s{sSPIN}, v{T+i}")
    o(f"    ds_write_b128 v10, v[{T}:{T+3}] offset:{jj*64}")
o(f"""    s_waitcnt lgkmcnt(0)
    ds_read_b128 v[44:47], v12
    ds_read_b128 v[48:51], v12 offset:{8*144}
    v_cmp_gt_u32 vcc, 40, v11
    s_mov_b64 s[{sM}:{sM+1}], vcc
    v_cmp_gt_u32 vcc, 32, v11
    s_mov_b64 s[{sM+2}:{sM+3}], vcc
    ; stage w_a|w_u
    s_waitcnt vmcnt(0)
    ds_write_b128 v14, v[120:123]
    ds_write_b128 v14, v[52:55] offset:{64*WROW}
    s_cmp_ge_u32 s3, 12
    s_cbranch_scc1 K_tab_st2
    ds_write_b128 v15, v[56:59]
    ds_write_b128 v15, v[28:31] offset:{64*WROW}
K_tab_st2:
    s_waitcnt lgkmcnt(0)
    s_cmp_ge_u32 s2, 250
    s_cbranch_scc1 K_tab_norows
    s_mov_b64 exec, s[{sM}:{sM+1}]
    s_cbranch_execz K_tab_r1
    buffer_store_dwordx4 v[44:47], v9, s[{rTABW}:{rTABW+3}], s{sSO+2} offen{SCW}
K_tab_r1:
    s_mov_b64 exec, s[{sM+2}:{sM+3}]
    s_cbranch_execz K_tab_r2
    buffer_store_dwordx4 v[48:51], v9, s[{rTABW}:{rTABW+3}], s{sSO+2} offen offset:2048{SCW}
K_tab_r2:
    s_mov_b64 exec, -1
    s_branch K_tab_stored
K_tab_norows:
    s_cmp_lg_u32 s2, 250
    s_cbranch_scc1 K_tab_stored
    s_cmp_lg_u32 s3, 10
    s_cbranch_scc1 K_tab_stored
    v_mov_b32 v44, 0x7f00
    s_mov_b32 s{sT0}, {N*256}
    buffer_store_dword v44, v{vLane4}, s[{rTABW}:{rTABW+3}], s{sT0} offen{SCW}
K_tab_stored:""")
stamp(5)
o("    s_barrier")
stamp(7)
o(f"    ds_read_b64 v[124:125], v{vZ} offset:{LDS_FLG+32}")
vFr, vAcc = 72, 104
for jj in range(2):
    for m in range(2):
        for s_ in range(2):
            f = vFr + ((jj*2+m)*2+s_)*4
            off = m*64*WROW + s_*32*WROW + jj*32
            o(f"    ds_read_b64_tr_b16 v[{f}:{f+1}], v{vTmp+5} offset:{off}")
            o(f"    ds_read_b64_tr_b16 v[{f+2}:{f+3}], v{vTmp+5} offset:{off+4*WROW}")
o(f"""    ; LDS dest: (16*tau + (lane&15))*272 + (32*half + 16*jj + 4*g)*4
    s_lshl_b32 s{sT1}, s{sT2}, 4
    v_add_u32 v9, s{sT1}, v{vJ}
    v_mul_u32_u24 v9, 272, v9
    v_lshl_add_u32 v9, v{vG4}, 4, v9
    s_lshl_b32 s{sT0}, s{sT3}, 7
    v_add_u32 v9, s{sT0}, v9
    v_add_u32 v11, {LDS_U}, v9""")
for k in range(4):
    a_ = vAcc + k*4; f = vFr + k*8
    o(f"    s_waitcnt lgkmcnt({12-4*k})")
    o(f"    v_mfma_f32_16x16x32_bf16 v[{a_}:{a_+3}], v[{f}:{f+3}], v[{vXf2}:{vXf2+3}], 0")
    o(f"    v_mfma_f32_16x16x32_bf16 v[{a_}:{a_+3}], v[{f+4}:{f+7}], v[{vXf2+4}:{vXf2+7}], v[{a_}:{a_+3}]")
o(f"""    s_mov_b32 s{sT0}, {NLOG2E:#x}
    v_mov_b32 v10, 0xc27c0000                  ; -63
    s_nop 7""")
for jj in range(2):
    a_ = vAcc + jj*8
    for i in range(4): o(f"    v_fma_f32 v{a_+i}, v{a_+i}, s{sT0}, v10")
    o(f"    ds_write_b128 v9, v[{a_}:{a_+3}] offset:{LDS_A + jj*64}")
    o(f"    ds_write_b128 v11, v[{a_+4}:{a_+7}] offset:{jj*64}")
o(f"    v_readfirstlane_b32 s{sEP}, v124\n    v_readfirstlane_b32 s{sEP+1}, v125\n    s_nop 3")
tags(False)
o(f"""    ; table-ready signal: the last table wave whose stores have completed publishes one granule per replica
    s_waitcnt vmcnt(0)""")
stamp(6)
o(f"""    s_mov_b64 exec, 1
    ds_add_rtn_u32 v9, v8, v{vOne} offset:{LDS_FLG+8}
    s_mov_b64 exec, -1
    s_waitcnt lgkmcnt(0)
    v_readfirstlane_b32 s{sT0}, v9
    s_nop 3
    s_cmp_lg_u32 s{sT0}, 5
    s_cbranch_scc1 K_poll_setup
    s_add_u32 s{rA}, s{sWS}, {WS_TF:#x}
    s_addc_u32 s{rA+1}, s{sWS+1}, 0
    s_and_b32 s{rA+1}, s{rA+1}, 0xffff
    s_mov_b32 s{rA+2}, {8*2048}
    s_mov_b32 s{rA+3}, 0x20000
    v_lshlrev_b32 v8, 11, v{vLane}
    v_mov_b32 v10, s{sTAGL}
    v_mov_b32 v11, s{sTAGH}
    s_lshl_b32 s{sT0}, s2, 3
    s_mov_b64 exec, 0xff
    buffer_store_dwordx2 v[10:11], v8, s[{rA}:{rA+3}], s{sT0} offen{SC}
    s_mov_b64 exec, -1""")

vG = 72
vEnt, vIdx, vRank = 28, 44, 52
o("K_poll_setup:")
if "sprio" in FL: o("    s_setprio 0")
o(f"""
    v_lshrrev_b32 v8, 4, v0
    v_lshlrev_b32 v8, 9, v8                    ; 4*(t>>4)*128
    s_lshr_b32 s{sT0}, s{sBETA}, 4
    s_lshl_b32 s{sT0}, s{sT0}, 15
    s_and_b32 s{sT1}, s{sBETA}, 15
    s_lshl_b32 s{sT1}, s{sT1}, 3
    s_add_u32 s{sGOFF}, s{sT0}, s{sT1}
    s_mov_b32 s{sSPIN}, 0
    v_mov_b32 v9, 0xff000000
{PRE_SLEEP}{B4B}K_poll:
    buffer_load_dwordx2 v[{vG}:{vG+1}], v8, s[{rOFF}:{rOFF+3}], s{sGOFF} offen{SC}
    buffer_load_dwordx2 v[{vG+2}:{vG+3}], v8, s[{rOFF}:{rOFF+3}], s{sGOFF} offen offset:128{SC}
    buffer_load_dwordx2 v[{vG+4}:{vG+5}], v8, s[{rOFF}:{rOFF+3}], s{sGOFF} offen offset:256{SC}
    buffer_load_dwordx2 v[{vG+6}:{vG+7}], v8, s[{rOFF}:{rOFF+3}], s{sGOFF} offen offset:384{SC}
    s_add_u32 s{sSPIN}, s{sSPIN}, 1
    s_waitcnt vmcnt(0)""")
def tagcheck(d0s, d1s, mask):
    o(f"    v_xor_b32 v{vTmp}, s{sTAGL}, v{d0s[0]}")
    o(f"    v_xor_b32 v{vTmp+1}, s{sTAGL}, v{d0s[1]}")
    o(f"    v_xor_b32 v{vTmp+2}, s{sTAGL}, v{d0s[2]}")
    o(f"    v_xor_b32 v{vTmp+3}, s{sTAGL}, v{d0s[3]}")
    o(f"    v_or3_b32 v{vTmp}, v{vTmp}, v{vTmp+1}, v{vTmp+2}")
    o(f"    v_or_b32 v{vTmp}, v{vTmp}, v{vTmp+3}")
    o(f"    v_and_b32 v{vTmp}, v{mask}, v{vTmp}")
    o(f"    v_xor_b32 v{vTmp+1}, s{sTAGH}, v{d1s[0]}")
    o(f"    v_xor_b32 v{vTmp+2}, s{sTAGH}, v{d1s[1]}")
    o(f"    v_xor_b32 v{vTmp+3}, s{sTAGH}, v{d1s[2]}")
    o(f"    v_xor_b32 v{vTmp+4}, s{sTAGH}, v{d1s[3]}")
    o(f"    v_or3_b32 v{vTmp}, v{vTmp}, v{vTmp+1}, v{vTmp+2}")
    o(f"    v_or3_b32 v{vTmp}, v{vTmp}, v{vTmp+3}, v{vTmp+4}")
    o(f"    v_cmp_ne_u32 vcc, 0, v{vTmp}")
tagcheck([vG, vG+2, vG+4, vG+6], [vG+1, vG+3, vG+5, vG+7], 9)
o(f"""    s_cbranch_vccz K_poll_ok
    s_cmp_ge_u32 s{sSPIN}, {SPIN_MAX}
    s_cbranch_scc1 K_poll_fail
    s_sleep {SLEEP}
    s_branch K_poll
K_poll_fail:""")
for r in range(4): o(f"    v_mov_b32 v{vG+2*r}, 0")
o("K_poll_ok:")
if STAMP: o(f"    v_writelane_b32 v{vST}, s{sSPIN}, 19")
stamp(8)
stampc(18)
vCnt = 80
o(f"""    s_mov_b32 s{sSO}, 0
    s_mov_b32 s{sSO+1}, {CH*8}
    s_mov_b32 s{sSO+2}, {2*CH*8}
    s_mov_b32 s{sSO+3}, {3*CH*8}""")
for r in range(4):
    T = vG + 2*r
    o(f"""    v_bfe_u32 v{vCnt+r}, v{T}, 12, 12          ; count
    v_and_b32 v{vCnt+4+r}, 0xfff, v{T}
    v_add_u32 v{vCnt+4+r}, v{vCnt+4+r}, v{vJ}
    v_cmp_gt_u32 s[{sM+4*r}:{sM+4*r+1}], v{vCnt+r}, v{vJ}
    v_lshl_add_u32 v{vCnt+4+r}, v{vCnt+4+r}, 3, v{vSeg}""")
for r in range(4):
    o(f"""    s_mov_b64 exec, s[{sM+4*r}:{sM+4*r+1}]
    buffer_load_dwordx2 v[{vEnt+4*r}:{vEnt+4*r+1}], v{vCnt+4+r}, s[{rCH}:{rCH+3}], s{sSO+r} offen{SCE}""")
o(f"""    s_mov_b64 exec, -1
    v_lshrrev_b32 v12, 4, v0
    v_add_u32 v12, s{sSB}, v12
    v_lshlrev_b32 v12, 7, v12
    v_lshl_add_u32 v12, v{vJ}, 3, v12
    v_lshlrev_b32 v13, 1, v{vLane}
    buffer_load_ushort v{vWc}, v13, s[{rC}:{rC+3}], 0 offen
    buffer_load_dwordx2 v[{vXe}:{vXe+1}], v12, s[{rX}:{rX+3}], 0 offen
    v_max3_u32 v{vTmp}, v{vCnt}, v{vCnt+1}, v{vCnt+2}
    v_max_u32 v{vTmp}, v{vTmp}, v{vCnt+3}
    v_cmp_lt_u32 vcc, 16, v{vTmp}
    s_mov_b64 s[{sBIG}:{sBIG+1}], vcc
    s_cbranch_vccz K_nok1""")
for r in range(4):
    o(f"""    v_cmp_gt_u32 s[{sM+4*r+2}:{sM+4*r+3}], v{vCnt+r}, v{vJ16}""")
o("    s_nop 1")
for r in range(4):
    o(f"""    s_mov_b64 exec, s[{sM+4*r+2}:{sM+4*r+3}]
    s_cbranch_execz K_nok1_{r}
    buffer_load_dwordx2 v[{vEnt+4*r+2}:{vEnt+4*r+3}], v{vCnt+4+r}, s[{rCH}:{rCH+3}], s{sSO+r} offen offset:128{SCE}
K_nok1_{r}:""")
o(f"""    s_mov_b64 exec, -1
    v_cmp_lt_u32 vcc, 32, v{vTmp}
    s_cbranch_vccz K_nok1
    v_mov_b32 v{vTmp}, 0
    ds_write_b32 v{vTmp}, v{vOne} offset:{LDS_FLG}
K_nok1:
    s_waitcnt vmcnt(0)
    v_lshlrev_b32 v{vWc}, 16, v{vWc}
    v_mul_f32 v{vWc}, {NLOG2E:#x}, v{vWc}""")
stamp(9)
def slots(ks): return [r*2+k for r in range(4) for k in ks]
def hist(es):
    for e in es:
        d0 = vEnt + 2*e
        o(f"    v_lshlrev_b32 v{vIdx+e}, 2, v{d0}")
        o(f"    v_subrev_u32 v{vIdx+e}, s{sSB4}, v{vIdx+e}")
        o(f"    v_and_b32 v{vIdx+e}, 0xfc, v{vIdx+e}")
        o(f"    s_mov_b64 exec, s[{sM+2*e}:{sM+2*e+1}]")
        o(f"    ds_add_rtn_u32 v{vRank+e}, v{vIdx+e}, v{vOne} offset:{LDS_CNT2}")
        o(f"    s_mov_b64 exec, -1")
hist(slots([0]))
o(f"    s_cmp_eq_u64 s[{sBIG}:{sBIG+1}], 0\n    s_cbranch_scc1 K_noh1")
hist(slots([1]))
o(f"""K_noh1:
    s_waitcnt lgkmcnt(0)
    s_barrier""")
stamp(10)
o(f"""    ds_read_b32 v{vInc}, v{vLane4} offset:{LDS_CNT2}
    v_mov_b32 v{vTmp}, 0
    ds_read_b32 v{vTmp+1}, v{vTmp} offset:{LDS_FLG}
    v_lshlrev_b32 v100, 5, v{vLane}
    v_mov_b32 v101, 0xff000000
    s_cmp_lg_u32 s3, 15
    s_cbranch_scc1 K_notf0
    s_add_u32 s{rB}, s{sWS}, {WS_TF:#x}
    s_addc_u32 s{rB+1}, s{sWS+1}, 0
    s_and_b32 s{rB+1}, s{rB+1}, 0xffff
    s_mov_b32 s{rB+2}, {8*2048}
    s_mov_b32 s{rB+3}, 0x20000
    s_and_b32 s{sT3}, s2, 7
    s_lshl_b32 s{sT3}, s{sT3}, 11
    s_mov_b32 s{sSPIN}, 0
    buffer_load_dwordx4 v[88:91], v100, s[{rB}:{rB+3}], s{sT3} offen{SC}
    buffer_load_dwordx4 v[92:95], v100, s[{rB}:{rB+3}], s{sT3} offen offset:16{SC}
K_notf0:""")
if PREF:
    o(f"""    ; pull this workgroup's share of the table into the L2 of its die (speed only)
    s_lshr_b32 s{sT0}, s2, 3
    s_mul_i32 s{sT0}, s{sT0}, {16*5*1024}
    s_mul_i32 s{sT1}, s3, {5*1024}
    s_add_u32 s{sT0}, s{sT0}, s{sT1}
    v_lshlrev_b32 v8, 4, v{vLane}""")
    for i in range(5):
        o(f"    buffer_load_dwordx4 v[100:103], v8, s[{rTABW}:{rTABW+3}], s{sT0} offen offset:{(i%4)*1024}{SC}" if i < 4 else
          f"    s_add_u32 s{sT0}, s{sT0}, 4096\n    buffer_load_dwordx4 v[100:103], v8, s[{rTABW}:{rTABW+3}], s{sT0} offen{SC}")
o(f"""    ; workgroup 0 records this launch's epoch (all workgroups have read the old one by now)
    s_or_b32 s{sT0}, s2, s3
    s_cmp_lg_u32 s{sT0}, 0
    s_cbranch_scc1 K_noep
    s_add_u32 s{rA}, s{sWS}, {WS_EP:#x}
    s_addc_u32 s{rA+1}, s{sWS+1}, 0
    s_and_b32 s{rA+1}, s{rA+1}, 0xffff
    s_mov_b32 s{rA+2}, 8
    s_mov_b32 s{rA+3}, 0x20000
    v_mov_b32 v8, s{sEP}
    v_mov_b32 v9, s{sEP+1}
    s_mov_b64 exec, 1
    buffer_store_dwordx2 v[8:9], v{vTmp}, s[{rA}:{rA+3}], 0 offen
    s_mov_b64 exec, -1
K_noep:
    s_waitcnt lgkmcnt(0)
    v_add_u32 v{vInc}, 3, v{vInc}
    v_readfirstlane_b32 s{sT0}, v{vTmp+1}
    v_lshrrev_b32 v{vInc}, 2, v{vInc}
    v_mov_b32 v{vBase}, v{vInc}""")
fill = [f"v_and_b32 v{vEnt+2*e}, 0xffffff00, v{vEnt+2*e}" for e in range(8)] + \
       [f"s_lshl_b32 s{sT2}, 1, s3", f"v_mov_b32 v{vTmp+2}, s{sT2}"]
wave_scan(vInc, fill)
vPos = 80
o(f"""    v_sub_u32 v{vTmp+3}, v{vInc}, v{vBase}
    v_lshlrev_b32 v{vBase}, 2, v{vTmp+3}
    v_readlane_b32 s{sQ}, v{vInc}, 63
    s_cmp_lg_u32 s{sT0}, 0
    s_cbranch_scc1 K_slow""")
for e in slots([0]): o(f"    ds_bpermute_b32 v{vPos+e}, v{vIdx+e}, v{vBase}")
o(f"""    s_cmp_gt_u32 s{sQ}, {CAPQ}
    s_cbranch_scc1 K_slow
    s_mul_i32 s{sQ0}, s{sQ}, s3
    s_lshr_b32 s{sQ0}, s{sQ0}, 4
    s_add_u32 s{sT0}, s3, 1
    s_mul_i32 s{sQ1}, s{sQ}, s{sT0}
    s_lshr_b32 s{sQ1}, s{sQ1}, 4
    v_cmp_ge_u32 vcc, s{sQ0}, v{vInc}
    s_bcnt1_i32_b64 s{sNODE}, vcc
    v_cmp_lt_u32 s[{rA}:{rA+1}], s{sQ0}, v{vInc}
    v_cmp_gt_u32 s[{rA+2}:{rA+3}], s{sQ1}, v{vTmp+3}
    v_cmp_gt_u32 vcc, v{vInc}, v{vTmp+3}
    v_readlane_b32 s{sBND}, v{vInc}, s{sNODE}
    s_and_b64 s[{rA}:{rA+1}], s[{rA}:{rA+1}], s[{rA+2}:{rA+3}]
    s_and_b64 s[{rA}:{rA+1}], s[{rA}:{rA+1}], vcc
    s_cmp_lt_u32 s{sQ0}, s{sQ1}
    s_cselect_b64 exec, s[{rA}:{rA+1}], 0
    ds_or_b32 v{vLane4}, v{vTmp+2} offset:{LDS_MSK}
    s_mov_b64 exec, -1
    s_waitcnt lgkmcnt(0)""")
def place(es, bperm):
    if bperm:
        for e in es: o(f"    ds_bpermute_b32 v{vPos+e}, v{vIdx+e}, v{vBase}")
        o("    s_waitcnt lgkmcnt(0)")
    for e in es: o(f"    v_add_lshl_u32 v{vPos+e}, v{vPos+e}, v{vRank+e}, 2")
    for e in es:
        d0 = vEnt + 2*e
        o(f"    s_mov_b64 exec, s[{sM+2*e}:{sM+2*e+1}]")
        o(f"    ds_write_b32 v{vPos+e}, v{d0} offset:{LDS_O}")
        o(f"    ds_write_b32 v{vPos+e}, v{d0+1} offset:{LDS_E}")
    o(f"    s_mov_b64 exec, -1")
place(slots([0]), False)
o(f"    s_cmp_eq_u64 s[{sBIG}:{sBIG+1}], 0\n    s_cbranch_scc1 K_nop1")
place(slots([1]), True)
PT = [int(x) for x in opt('pt', '4-7-9').split('-')]
NOPS = [int(x) for x in opt('nops', '').split('-') if x]
NOPPOS = int(opt('noppos', 0))
vA, vAn, vDen, vNum, vAA, vLA, vSL = 8, 9, 10, 12, 14, 15, 27
vO = 16
vE = [20, 28]
RING = int(opt('ring', 4))
vDr = [32, 36, 40, 44] if RING == 4 else [72 + 4*i for i in range(RING)]
vU, vAa, vP, vS_, vQ, vR = 48, 52, 56, 58, 62, 64
vF = 66
o(f"""K_nop1:
    s_mul_i32 s{sT0}, s{sNODE}, 272
    v_add_u32 v{vAA}, s{sT0}, v{vLane4}
    s_add_u32 s{sT1}, s{sNODE}, s3
    s_lshl_b32 s{sT1}, s{sT1}, 9
    v_add_u32 v{vSL}, s{sT1}, v{vLane4}
    s_lshl_b32 s{sT0}, s{sQ0}, 4
    v_mov_b32 v{vLA}, s{sT0}
    ds_read_b32 v{vA}, v{vAA} offset:{LDS_A}
    ds_read_b32 v{vAn}, v{vAA} offset:{LDS_A+272}
    s_min_u32 s{sSTOP}, s{sBND}, s{sQ1}
    s_sub_u32 s{sREM}, s{sSTOP}, s{sQ0}
    s_mov_b32 s{sC63}, 0x5f000000                ; 2^63
    s_mov_b32 s{sC63+1}, 0x5f000000
    s_mov_b32 s{sSEL}, 0x00003f80
    s_mov_b32 s{sIT}, 0
    v_mov_b64 v[{vDen}:{vDen+1}], 0
    v_mov_b64 v[{vNum}:{vNum+1}], 0
    s_cmp_lg_u32 s3, {99 if 'notf' in FL else 15}
    s_cbranch_scc1 K_notf
    s_branch K_tfchk
K_tfpoll:
    buffer_load_dwordx4 v[88:91], v100, s[{rB}:{rB+3}], s{sT3} offen{SC}
    buffer_load_dwordx4 v[92:95], v100, s[{rB}:{rB+3}], s{sT3} offen offset:16{SC}
K_tfchk:
    s_add_u32 s{sSPIN}, s{sSPIN}, 1
    s_waitcnt vmcnt(0)""")
tagcheck([88, 90, 92, 94], [89, 91, 93, 95], 101)
o(f"""    s_cbranch_vccz K_notf
    s_cmp_ge_u32 s{sSPIN}, {SPIN_MAX}
    s_cbranch_scc1 K_notf
    s_sleep 1
    s_branch K_tfpoll
K_notf:
    s_waitcnt lgkmcnt(0)
    s_barrier""")
stamp(11)
stampc(14)
o(f"""    s_cmp_ge_u32 s{sQ0}, s{sQ1}
    s_cbranch_scc1 K_main_done
    s_setprio 3""")
scr = [32, 36, 40, 44, 48, 52, 56] if RING > 4 else [vO, vU, vAa]
for j in range(RING-1): o(f"    ds_read_b128 v[{scr[j]}:{scr[j]+3}], v{vLA} offset:{LDS_O+16*j}")
o(f"    ds_read_b128 v[{vE[0]}:{vE[0]+3}], v{vLA} offset:{LDS_E}")
for j in range(RING-1):
    o(f"    s_waitcnt lgkmcnt({RING-1-j})")
    for i in range(4): o(f"    buffer_load_dword v{vDr[j]+i}, v{scr[j]+i}, s[{rTAB}:{rTAB+3}], 0 offen{SC}")
o(f"    ds_read_b128 v[{vO}:{vO+3}], v{vLA} offset:{LDS_O+16*(RING-1)}")
o(".p2align 3")
o("K_loop:")
for k in range(RING):
    e = vE[k%2]; en = vE[(k+1)%2]; Dk = vDr[k]; Dn = vDr[(k+RING-1)%RING]
    o(f"    s_waitcnt lgkmcnt(0)")
    o(f"    s_sub_u32 s{sREM}, s{sREM}, 1")
    for i in range(4):
        o(f"    buffer_load_dword v{Dn+i}, v{vO+i}, s[{rTAB}:{rTAB+3}], 0 offen{SC}")
    o(f"    ds_read_b128 v[{vO}:{vO+3}], v{vLA} offset:{LDS_O+16*(k+RING)}")
    o(f"    ds_read_b128 v[{en}:{en+3}], v{vLA} offset:{LDS_E+16*(k+1)}")
    o(f"    s_cbranch_scc1 K_h{k}")
    o(f"K_r{k}:")
    o(f"    s_waitcnt vmcnt({4*(RING-1)})")
    o(f"    v_pk_fma_f32 v[{vU}:{vU+1}], v[{e}:{e+1}], v[{vWc}:{vWc+1}], v[{vA}:{vA+1}] op_sel_hi:[1,0,0]")
    o(f"    v_pk_fma_f32 v[{vU+2}:{vU+3}], v[{e+2}:{e+3}], v[{vWc}:{vWc+1}], v[{vA}:{vA+1}] op_sel_hi:[1,0,0]")
    for i in range(4): o(f"    v_dot2c_f32_bf16 v{vU+i}, s{sSEL}, v{Dk+i}")
    if NOPS and NOPPOS == 1:
        for z in NOPS: o(f"    s_nop {z}")
    for i in range(4): o(f"    v_exp_f32_e64 v{vU+i}, v{vU+i} clamp")
    if NOPS and NOPPOS == 2:
        for z in NOPS: o(f"    s_nop {z}")
    o(f"    v_pk_fma_f32 v[{vAa}:{vAa+1}], v[{vU}:{vU+1}], s[{sC63}:{sC63+1}], 1.0 op_sel_hi:[1,0,0]")
    o(f"    v_pk_fma_f32 v[{vAa+2}:{vAa+3}], v[{vU+2}:{vU+3}], s[{sC63}:{sC63+1}], 1.0 op_sel_hi:[1,0,0]")
    if NOPS and NOPPOS == 0:
        for z in NOPS: o(f"    s_nop {z}")
    o(f"    v_pk_mul_f32 v[{vP}:{vP+1}], v[{vAa}:{vAa+1}], v[{vAa+2}:{vAa+3}]")
    o(f"    v_pk_add_f32 v[{vS_}:{vS_+1}], v[{vAa}:{vAa+1}], v[{vAa+2}:{vAa+3}]")
    o(f"    v_rcp_f32 v{vR}, v{vP}")
    o(f"    v_rcp_f32 v{vR+1}, v{vP+1}")
    o(f"    v_pk_mul_f32 v[{vQ}:{vQ+1}], v[{vAa+2}:{vAa+3}], v[{Dk}:{Dk+1}]")
    o(f"    v_pk_fma_f32 v[{vQ}:{vQ+1}], v[{vAa}:{vAa+1}], v[{Dk+2}:{Dk+3}], v[{vQ}:{vQ+1}]")
    o(f"    v_pk_fma_f32 v[{vDen}:{vDen+1}], v[{vS_}:{vS_+1}], v[{vR}:{vR+1}], v[{vDen}:{vDen+1}]")
    o(f"    v_pk_fma_f32 v[{vNum}:{vNum+1}], v[{vQ}:{vQ+1}], v[{vR}:{vR+1}], v[{vNum}:{vNum+1}]")
o(f"""    v_add_u32 v{vLA}, {16*RING}, v{vLA}
    s_add_u32 s{sIT}, s{sIT}, 1
    s_cmp_eq_u32 s{sIT}, {PT[0]}
    s_cbranch_scc1 K_p2
    s_cmp_eq_u32 s{sIT}, {PT[1]}
    s_cbranch_scc1 K_p1
    s_cmp_eq_u32 s{sIT}, {PT[2]}
    s_cbranch_scc0 K_loop
    s_setprio 0
    s_branch K_loop
K_p2:
    s_setprio 2
    s_branch K_loop
K_p1:
    s_setprio 1
    s_branch K_loop""")
for k in range(RING):
    o(f"""K_h{k}:
    v_add_f32 v{vF}, v{vDen}, v{vDen+1}
    v_add_f32 v{vF+1}, v{vNum}, v{vNum+1}
    s_add_u32 s{sNODE}, s{sNODE}, 1
    ds_write_b32 v{vSL}, v{vF} offset:{LDS_SL}
    ds_write_b32 v{vSL}, v{vF+1} offset:{LDS_SL+256}
    s_cmp_ge_u32 s{sSTOP}, s{sQ1}
    s_cbranch_scc1 K_main_done
    v_readlane_b32 s{sBND}, v{vInc}, s{sNODE}
    v_mov_b64 v[{vDen}:{vDen+1}], 0
    v_mov_b64 v[{vNum}:{vNum+1}], 0
    v_mov_b32 v{vA}, v{vAn}
    v_add_u32 v{vAA}, 272, v{vAA}
    v_add_u32 v{vSL}, 512, v{vSL}
    s_cmp_eq_u32 s{sBND}, s{sSTOP}
    s_cbranch_scc1 K_hs{k}
    ds_read_b32 v{vAn}, v{vAA} offset:{LDS_A+272}
K_hr{k}:
    s_mov_b32 s{sT0}, s{sSTOP}
    s_min_u32 s{sSTOP}, s{sBND}, s{sQ1}
    s_sub_u32 s{sREM}, s{sSTOP}, s{sT0}
    s_sub_u32 s{sREM}, s{sREM}, 1
    s_branch K_r{k}
K_hs{k}:
    s_add_u32 s{sNODE}, s{sNODE}, 1
    v_readlane_b32 s{sBND}, v{vInc}, s{sNODE}
    v_add_u32 v{vAA}, 272, v{vAA}
    v_add_u32 v{vSL}, 512, v{vSL}
    s_nop 1
    s_cmp_eq_u32 s{sBND}, s{sSTOP}
    s_cbranch_scc1 K_hs{k}
    ds_read_b32 v{vA}, v{vAA} offset:{LDS_A}
    ds_read_b32 v{vAn}, v{vAA} offset:{LDS_A+272}
    s_waitcnt lgkmcnt(0)
    s_branch K_hr{k}""")

sP, sCNT, sPOS, sN, sEN = 4, 5, 6, 7, 8
o(f"""K_slow:
    s_add_u32 s{rB}, s{sWS}, {WS_TF:#x}
    s_addc_u32 s{rB+1}, s{sWS+1}, 0
    s_and_b32 s{rB+1}, s{rB+1}, 0xffff
    s_mov_b32 s{rB+2}, {8*2048}
    s_mov_b32 s{rB+3}, 0x20000
    s_and_b32 s{sT3}, s2, 7
    s_lshl_b32 s{sT3}, s{sT3}, 11
    v_lshlrev_b32 v100, 5, v{vLane}
    v_mov_b32 v101, 0xff000000
    s_mov_b32 s{sSPIN}, 0
K_s_tf:
    buffer_load_dwordx4 v[88:91], v100, s[{rB}:{rB+3}], s{sT3} offen{SC}
    buffer_load_dwordx4 v[92:95], v100, s[{rB}:{rB+3}], s{sT3} offen offset:16{SC}
    s_add_u32 s{sSPIN}, s{sSPIN}, 1
    s_waitcnt vmcnt(0)""")
tagcheck([88, 90, 92, 94], [89, 91, 93, 95], 101)
o(f"""    s_cbranch_vccz K_s_go
    s_cmp_ge_u32 s{sSPIN}, {SPIN_MAX}
    s_cbranch_scc1 K_s_go
    s_sleep 4
    s_branch K_s_tf
K_s_go:
    s_mov_b32 s{sC63}, 0x5f000000
    s_mov_b32 s{sSEL}, 0x00003f80
    s_mov_b32 s{sN}, s3
    v_mov_b32 v{vTmp}, 0
K_s_node:
    s_mov_b32 s{sT3}, 1
    s_cmp_ge_u32 s{sN}, s{sNB}
    s_cbranch_scc1 K_main_done2
    s_mul_i32 s{sT0}, s{sN}, 272
    v_add_u32 v{vAA}, s{sT0}, v{vLane4}
    ds_read_b32 v{vA}, v{vAA} offset:{LDS_A}
    v_mov_b32 v{vDen}, 0
    v_mov_b32 v{vNum}, 0
    s_mov_b32 s{sP}, 0
    s_waitcnt lgkmcnt(0)
K_s_prod:
    s_lshl_b32 s{sT0}, s{sP}, 7
    s_add_u32 s{sT0}, s{sT0}, s{sGOFF}
    buffer_load_dword v{vU}, v{vTmp}, s[{rOFF}:{rOFF+3}], s{sT0} offen{SC}
    s_waitcnt vmcnt(0)
    v_readfirstlane_b32 s{sCNT}, v{vU}
    s_nop 3
    s_and_b32 s{sPOS}, s{sCNT}, 0xfff
    s_bfe_u32 s{sCNT}, s{sCNT}, 0xc000c
    s_mul_i32 s{sT0}, s{sP}, {CH}
    s_add_u32 s{sPOS}, s{sPOS}, s{sT0}
    s_lshl_b32 s{sPOS}, s{sPOS}, 3
K_s_ent:
    s_cmp_eq_u32 s{sCNT}, 0
    s_cbranch_scc1 K_s_prod_next
    buffer_load_dwordx2 v[{vU}:{vU+1}], v{vTmp}, s[{rCH}:{rCH+3}], s{sPOS} offen{SC}
    s_waitcnt vmcnt(0)
    v_readfirstlane_b32 s{sEN}, v{vU}
    s_nop 3
    s_sub_u32 s{sT0}, s{sEN}, s{sSB}
    s_and_b32 s{sT0}, s{sT0}, 63
    s_cmp_lg_u32 s{sT0}, s{sN}
    s_cbranch_scc1 K_s_ent_next
    s_and_b32 s{sT0}, s{sEN}, 0xffffff00
    buffer_load_dword v{vU+2}, off, s[{rTAB}:{rTAB+3}], s{sT0}{SC}
    v_fma_f32 v{vU}, v{vU+1}, v{vWc}, v{vA}
    s_waitcnt vmcnt(0)
    v_dot2c_f32_bf16 v{vU}, s{sSEL}, v{vU+2}
    s_nop 2
    v_exp_f32_e64 v{vU}, v{vU} clamp
    s_nop 0
    v_fma_f32 v{vU}, v{vU}, s{sC63}, 1.0
    v_rcp_f32 v{vU}, v{vU}
    s_nop 0
    v_add_f32 v{vDen}, v{vDen}, v{vU}
    v_fmac_f32 v{vNum}, v{vU}, v{vU+2}
K_s_ent_next:
    s_add_u32 s{sPOS}, s{sPOS}, 8
    s_sub_u32 s{sCNT}, s{sCNT}, 1
    s_branch K_s_ent
K_s_prod_next:
    s_add_u32 s{sP}, s{sP}, 1
    s_cmp_lt_u32 s{sP}, {NB}
    s_cbranch_scc1 K_s_prod
    s_lshl_b32 s{sT0}, s{sN}, 9
    v_add_u32 v{vF+2}, s{sT0}, v{vLane4}
    ds_write_b32 v{vF+2}, v{vDen} offset:{LDS_SL}
    ds_write_b32 v{vF+2}, v{vNum} offset:{LDS_SL+256}
    s_lshl_b32 s{sT0}, s{sN}, 2
    v_mov_b32 v{vF+3}, s{sT0}
    s_mov_b64 exec, 1
    ds_write_b32 v{vF+3}, v{vOne} offset:{LDS_MSK}
    s_mov_b64 exec, -1
    s_add_u32 s{sN}, s{sN}, 16
    s_branch K_s_node""")

eN, eC, eM, eW, eAd = 8, 9, 10, 11, 12
eDen, eNum, eT0, eT1, eU = 16, 20, 28, 32, 36
OUTF = (" " + opt("outf", "").replace("+", " ")).rstrip()
def slot_addrs():
    o(f"""    v_ffbl_b32 v{eW}, v{eM}
    v_cmp_ne_u32 vcc, 0, v{eM}
    v_lshl_add_u32 v{eW}, v{eW}, 9, v14
    v_add_u32 v33, -1, v{eM}
    v_cndmask_b32 v15, v35, v{eW}, vcc
    v_and_b32 v{eM}, v{eM}, v33
    v_ffbl_b32 v{eW}, v{eM}
    v_cmp_ne_u32 vcc, 0, v{eM}
    v_lshl_add_u32 v{eW}, v{eW}, 9, v14
    v_add_u32 v33, -1, v{eM}
    v_cndmask_b32 v34, v35, v{eW}, vcc
    v_and_b32 v{eM}, v{eM}, v33""")
o(f"""K_main_done:
    s_mov_b32 s{sT3}, 0
K_main_done2:
    s_setprio 0
    s_waitcnt vmcnt(0) lgkmcnt(0)
    s_cmp_ge_u32 s3, 10
    s_cbranch_scc1 K_e_wait
    v_lshrrev_b32 v{eN}, 4, v0
    v_and_b32 v{eC}, 15, v0
    v_lshlrev_b32 v{eAd}, 2, v{eN}
    ds_read_b32 v{eM}, v{eAd} offset:{LDS_MSK}
    v_mul_u32_u24 v13, 272, v{eN}
    v_lshl_add_u32 v13, v{eC}, 4, v13
    v_add_u32 v13, {LDS_U}, v13
    ds_read_b128 v[{eU}:{eU+3}], v13
    v_lshlrev_b32 v{eT0}, 16, v{vXe}
    v_and_b32 v{eT0+1}, 0xffff0000, v{vXe}
    v_lshlrev_b32 v{eT0+2}, 16, v{vXe+1}
    v_and_b32 v{eT0+3}, 0xffff0000, v{vXe+1}
    v_lshlrev_b32 v14, 4, v{eC}
    v_add_u32 v35, {LDS_ZS}, v14
    v_lshl_add_u32 v14, v{eN}, 9, v14
    v_add_u32 v14, {LDS_SL}, v14
    v_mov_b32 v13, v{eAd}
    v_add_u32 v{eAd}, s{sSB}, v{eN}
    v_lshlrev_b32 v{eAd}, 7, v{eAd}
    v_lshl_add_u32 v{eAd}, v{eC}, 3, v{eAd}
    s_waitcnt lgkmcnt(0)""")
slot_addrs()
o("K_e_wait:")
stamp(12)
stampc(15)
o(f"""    s_barrier
    s_cmp_ge_u32 s3, 10
    s_cbranch_scc1 K_exit
    s_cmp_eq_u32 s{sT3}, 0
    s_cbranch_scc1 K_e_fast
    ds_read_b32 v{eM}, v13 offset:{LDS_MSK}
    s_waitcnt lgkmcnt(0)""")
slot_addrs()
o(f"""K_e_fast:
    ds_read_b128 v[{eDen}:{eDen+3}], v15
    ds_read_b128 v[{eNum}:{eNum+3}], v15 offset:256
    ds_read_b128 v[40:43], v34
    ds_read_b128 v[44:47], v34 offset:256
    s_waitcnt lgkmcnt(0)
K_e_loop:
    v_pk_add_f32 v[{eDen}:{eDen+1}], v[{eDen}:{eDen+1}], v[40:41]
    v_pk_add_f32 v[{eDen+2}:{eDen+3}], v[{eDen+2}:{eDen+3}], v[42:43]
    v_pk_add_f32 v[{eNum}:{eNum+1}], v[{eNum}:{eNum+1}], v[44:45]
    v_pk_add_f32 v[{eNum+2}:{eNum+3}], v[{eNum+2}:{eNum+3}], v[46:47]
    v_cmp_ne_u32 vcc, 0, v{eM}
    s_cbranch_vccz K_e_end
    v_ffbl_b32 v{eW}, v{eM}
    v_lshl_add_u32 v{eW}, v{eW}, 9, v14
    v_add_u32 v33, -1, v{eM}
    v_cndmask_b32 v34, v35, v{eW}, vcc
    v_and_b32 v{eM}, v{eM}, v33
    ds_read_b128 v[40:43], v34
    ds_read_b128 v[44:47], v34 offset:256
    s_waitcnt lgkmcnt(0)
    s_branch K_e_loop
K_e_end:""")
for i in range(4): o(f"    v_add_f32 v{eDen+i}, 0x358637bd, v{eDen+i}")
for i in range(4): o(f"    v_rcp_f32 v{eDen+i}, v{eDen+i}")
o(f"    v_cmp_gt_u32 vcc, s{sNB}, v{eN}")
for i in range(4): o(f"    v_fma_f32 v{eU+i}, v{eNum+i}, v{eDen+i}, v{eU+i}")
for i in range(4): o(f"    v_max_f32 v{eU+i}, 0, v{eU+i}")
for i in range(4): o(f"    v_add_f32 v{eU+i}, v{eU+i}, v{eT0+i}")
o(f"""    v_cvt_pk_bf16_f32 v{eT1}, v{eU}, v{eU+1}
    v_cvt_pk_bf16_f32 v{eT1+1}, v{eU+2}, v{eU+3}
    s_and_saveexec_b64 s[{sSAVE}:{sSAVE+1}], vcc
    s_cbranch_execz K_exit
    buffer_store_dwordx2 v[{eT1}:{eT1+1}], v{eAd}, s[{rOUT}:{rOUT+3}], 0 offen{OUTF}
K_exit:""")
if STAMP:
    o("    s_mov_b64 exec, -1\n    s_waitcnt vmcnt(0)")
    stamp(13)
    stamp_flush()
o("K_done:\n    s_endpgm")
o(f""".section .rodata,"a"
.p2align 6
.amdhsa_kernel {NAME}
  .amdhsa_next_free_vgpr 128
  .amdhsa_next_free_sgpr 102
  .amdhsa_accum_offset 128
  .amdhsa_group_segment_fixed_size 0
  .amdhsa_kernarg_size 96
  .amdhsa_user_sgpr_count 2
  .amdhsa_user_sgpr_kernarg_segment_ptr 1
  .amdhsa_system_sgpr_workgroup_id_x 1
  .amdhsa_dx10_clamp 0
.end_amdhsa_kernel""")
print("\n".join(L))
```

```python
import sys
FL = set(sys.argv[1].split(',')) if len(sys.argv) > 1 else set()
LIGHT = "light" in FL
STAMP = "stamp" in FL or LIGHT
PREF = "nopref" not in FL
NAME = "standalone__edge_featured_mpnn_gatedgcn__graph_kernel"

LSET = {0, 13}
for f_ in FL:
    if f_.startswith('st='): LSET |= {int(x) for x in f_[3:].split('-')}
L = []
def o(s=""): L.append(s)

N, D, E = 10000, 64, 640000
NB = 256
CH = E // NB
BMUL = 26843
WS_T = 0
T_BYTES = (N+1)*256
WS_O = 0x280000
O_BYTES = NB*NB*8
WS_C = 0x300000
C_BYTES = NB*CH*8
WS_EP = 0x7F0000
WS_TF = 0x7F1000
WS_STAMP = 0x800000
NLOG2E = 0xBFB8AA3B
WROW = 144
SPIN_MAX = 5000000
SPIN_LDS = 20000000
SC = " sc1"
def opt(name, default):
    for f in FL:
        if f.startswith(name + "="): return f.split("=")[1]
    return default
SLEEP = int(opt("sleep", 3))
B4B = "    s_barrier\n" if "b4b" in FL else ""
PRE_SLEEP = ("    s_sleep %s\n" % opt("presleep", "")) if opt("presleep", "") else ""
SCW = " " + opt("stf", "sc1").replace("+", " ")
SCE = " " + opt("ldf", "sc1").replace("+", " ")

LDS_CNT2, LDS_MSK, LDS_FLG = 0, 256, 512
LDS_CNT1, LDS_BASE1 = 768, 1792
LDS_O = 2816
LDS_E = LDS_O + 12800
LDS_A = LDS_E + 12800
LDS_SL = LDS_A + 48*272
LDS_U = LDS_SL + 56*512
LDS_W2 = LDS_U + 48*272
LDS_W1 = LDS_W2 + 2*64*WROW
LDS_ZS = LDS_W1 + 2*64*WROW
LDS_TOT = LDS_ZS + 512
LDS_SORT = LDS_SL
CAPQ = 768
assert LDS_SORT + CH*8 + 16 < 65536

def srd(dst, base, nrec, w3=0x20000, stride=0, off=0):
    if off:
        o(f"    s_add_u32 s{dst}, s{base}, {off:#x}")
        o(f"    s_addc_u32 s{dst+1}, s{base+1}, 0")
        o(f"    s_and_b32 s{dst+1}, s{dst+1}, 0xffff")
    else:
        o(f"    s_mov_b32 s{dst}, s{base}")
        o(f"    s_and_b32 s{dst+1}, s{base+1}, 0xffff")
    if stride: o(f"    s_or_b32 s{dst+1}, s{dst+1}, {stride<<16:#x}")
    o(f"    s_mov_b32 s{dst+2}, {nrec:#x}")
    o(f"    s_mov_b32 s{dst+3}, {w3:#x}")

SCAN = ("row_shr:1 row_mask:0xf bank_mask:0xf bound_ctrl:1", "row_shr:2 row_mask:0xf bank_mask:0xf bound_ctrl:1",
        "row_shr:4 row_mask:0xf bank_mask:0xf bound_ctrl:1", "row_shr:8 row_mask:0xf bank_mask:0xf bound_ctrl:1",
        "row_bcast:15 row_mask:0xa bank_mask:0xf", "row_bcast:31 row_mask:0xc bank_mask:0xf")
def wave_scan(v, fill=()):
    fill = list(fill)
    for ctl in SCAN:
        if len(fill) >= 2:
            o("    " + fill.pop(0)); o("    " + fill.pop(0))
        else:
            o("    s_nop 1")
        o(f"    v_add_u32_dpp v{v}, v{v}, v{v} {ctl}")
    for f in fill: o("    " + f)

sX, sEA, sSRC, sDST = 4, 6, 8, 10
sWA, sWB, sWC, sWU = 12, 14, 16, 18
sWV, sOUT = 20, 22
sWS = 24
sEP = 26
rA, rB, rC = 28, 32, 36
rX, rOFF, rCH, rTAB, rTABW, rOUT = 40, 44, 48, 52, 56, 60
sSB, sNB, sSB4 = 64, 65, 66
sT0, sT1, sT2, sT3 = 67, 68, 69, 70
sM = 72
sV625 = 72
sBIG = 88
sSO = 90
sTAGL, sTAGH = 94, 95
sSAVE = 96
sSPIN = 98
sGOFF = 99
sBETA = 71
sSTMP = 100
sQ, sQ0, sQ1, sNODE, sBND, sSTOP, sREM = 4, 5, 6, 7, 8, 9, 10
sC63, sSEL, sIT = 12, 14, 15

vLane, vT16, vLane4, vJ, vJ16, vSeg, vG4 = 1, 3, 4, 5, 6, 7, 2
vXe, vWc = 24, 26
vOne = 60
vTmp = 62
vInc, vBase = 70, 71
vST = 127
vZ = 61

def stamp(idx, pre=False):
    if not STAMP: return
    if LIGHT and idx not in LSET: return
    if not pre:
        o(f"    s_memrealtime s[{sSTMP}:{sSTMP+1}]")
        o(f"    s_waitcnt lgkmcnt(0)")
    o(f"    v_writelane_b32 v{vST}, s{sSTMP}, {idx}")
def stampc(idx):
    if not STAMP or LIGHT: return
    o(f"    s_memtime s[{sSTMP}:{sSTMP+1}]")
    o(f"    s_waitcnt lgkmcnt(0)")
    o(f"    v_writelane_b32 v{vST}, s{sSTMP}, {idx}")
def stamp_flush():
    if not STAMP: return
    o(f"""    s_mov_b64 exec, -1
    s_lshl_b32 s{sT0}, s2, 4
    s_add_u32 s{sT0}, s{sT0}, s3
    s_lshl_b32 s{sT0}, s{sT0}, 7
    s_add_u32 s{rA}, s{sWS}, {WS_STAMP:#x}
    s_addc_u32 s{rA+1}, s{sWS+1}, 0
    s_and_b32 s{rA+1}, s{rA+1}, 0xffff
    s_mov_b32 s{rA+2}, 0x100000
    s_mov_b32 s{rA+3}, 0x20000
    s_mov_b32 exec_lo, -1
    s_mov_b32 exec_hi, 0
    buffer_store_dword v{vST}, v{vLane4}, s[{rA}:{rA+3}], s{sT0} offen
    s_mov_b64 exec, -1""")

for line in """GatedGCN edge-featured MPNN (N=10000 nodes, D=64, E=640000 edges), one launch, 256 workgroups of 16 waves, one per CU.
Kernarg (pointers): 0 x, 8 e_attr, 16 src, 24 dst, 32 w_a, 40 w_b, 48 w_c, 56 w_u, 64 w_v, 72 out, 80 debug, 88 ws.

Maths: g = (x@w_a)[dst] + (x@w_b)[src] + e*w_c ; eta = sigmoid(g) ; out = x + relu(x@w_u + sum(eta*(x@w_v)[src]) / (sum(eta) + 1e-6)).
 Everything is kept in the exp2 domain (weights scaled by -log2 e).  A table row holds, per feature, one dword = (V | B):
 B = bf16(-log2e * x@w_b) in the low half, V = x@w_v rounded so that the whole dword read as fp32 is the nearest value to V.
 Two edges share one reciprocal: 1/a + 1/b = (a+b)/(ab); 2^t is clamped at 2^63 (far below the 1e-6 guard) so ab cannot overflow.

Phase 1 (workgroup p): waves 0..9 counting-sort edge chunk p (2500 edges) by destination bucket in LDS and write it to ws;
 waves 10..15 build table rows 40p..40p+39 (MFMA) and the A = x@w_a - 63, U = x@w_u rows of this workgroup's bucket.
Hand-off: every handed-off byte is stored and loaded with sc1; a writer waits for its stores (vmcnt(0) + barrier) and then
 publishes tagged 8-byte granules {start, count, 40-bit tag}; readers poll for the tag.  The tag is the 64-bit word left in
 ws by the previous launch plus one (it only tells this launch's hand-offs from older ones).  All polls are bounded.
Phase 2 (bucket of <= 40 nodes): fetch the 256 segments, counting-sort them by node in LDS (lists padded to 4 with a dummy
 row), split the list evenly over the 16 waves, lane = feature, gather table rows, accumulate in registers, combine the partial
 sums through LDS slots.  Buckets that do not fit the fast path (segment > 32 entries or > 3072 entries) take a slow general path.

ws: 0x000000 table (10001 x 256 B) | 0x280000 granules [16][256][16] x 8 B | 0x300000 chunks [256][2500] x 8 B
    0x7f0000 epoch | 0x7f1000 table-ready granules [8][256] x 8 B""".split("\n"):
    o(("; " + line).rstrip())
o(f"; @launch grid=({NB},1,1) block=(1024,1,1) lds={LDS_TOT}")
o('.amdgcn_target "amdgcn-amd-amdhsa--gfx950"')
o(".text")
o(f".globl {NAME}\n.p2align 8\n.type {NAME},@function\n{NAME}:")
if STAMP: o(f"    s_memrealtime s[{sSTMP}:{sSTMP+1}]")
o(f"""    s_cmp_ge_u32 s2, {NB}
    s_cbranch_scc1 K_done
    s_load_dwordx8 s[4:11], s[0:1], 0
    s_load_dwordx2 s[{sWS}:{sWS+1}], s[0:1], 88
    s_load_dwordx8 s[12:19], s[0:1], 32        ; w_a, w_b, w_c, w_u
    s_load_dwordx4 s[20:23], s[0:1], 64        ; w_v, out
    v_and_b32 v{vLane}, 63, v0
    v_lshrrev_b32 v{vG4}, 6, v0
    v_lshlrev_b32 v{vT16}, 4, v0
    v_readfirstlane_b32 s3, v{vG4}
    v_lshlrev_b32 v{vLane4}, 2, v{vLane}
    v_mov_b32 v{vOne}, 1
    v_mov_b32 v{vZ}, 0
    v_mov_b32 v{vTmp}, 0
    v_lshlrev_b32 v{vTmp+1}, 2, v0
    v_lshlrev_b32 v8, 3, v0                   ; t*8
    v_cmp_gt_u32 vcc, {CH//4}, v0
    s_mul_i32 s{sSO}, s2, {CH*4}
    s_mul_i32 s{sSO+1}, s2, {CH*2}
    s_mov_b64 s[{sV625}:{sV625+1}], vcc
    s_cmp_ge_u32 s3, 7
    s_cbranch_scc1 K_nozero
    ds_write_b32 v{vTmp+1}, v{vTmp}
K_nozero:
    v_and_b32 v{vJ}, 15, v{vLane}
    v_lshrrev_b32 v{vG4}, 4, v{vLane}         ; g
    s_cmp_ge_u32 s3, 10
    s_cbranch_scc1 K_tab_start
    s_waitcnt lgkmcnt(0)""")
stamp(0, pre=True)
if "sprio" in FL: o("    s_setprio 2")
srd(rA, sDST, E*4)
o(f"""    s_mov_b64 exec, s[{sV625}:{sV625+1}]
    buffer_load_dwordx4 v[32:35], v{vT16}, s[{rA}:{rA+3}], s{sSO} offen
    s_mov_b64 exec, -1""")
srd(rB, sSRC, E*4); srd(rC, sEA, E*2); srd(rOUT, sWS, 8, off=WS_EP)
o(f"""    s_barrier
    s_mov_b64 exec, s[{sV625}:{sV625+1}]
    buffer_load_dwordx4 v[36:39], v{vT16}, s[{rB}:{rB+3}], s{sSO} offen       ; src
    buffer_load_dwordx2 v[40:41], v8, s[{rC}:{rC+3}], s{sSO+1} offen          ; e
    s_mov_b64 exec, -1
    buffer_load_dwordx2 v[10:11], v{vZ}, s[{rOUT}:{rOUT+3}], 0 offen
    v_mov_b32 v48, {N*256}
    v_mov_b32 v49, {N*256}
    v_mov_b32 v50, {N*256}
    v_mov_b32 v51, {N*256}
    v_mov_b32 v52, 0
    v_mov_b32 v53, 0
    v_mov_b32 v54, 0
    v_mov_b32 v55, 0
    s_cmp_ge_u32 s3, 13
    s_cbranch_scc1 K_nofilla
    v_cmp_gt_u32 vcc, 800, v0
    s_and_saveexec_b64 s[{sBIG}:{sBIG+1}], vcc
    ds_write_b128 v{vT16}, v[48:51] offset:{LDS_O}
    ds_write_b128 v{vT16}, v[52:55] offset:{LDS_E}
    s_mov_b64 exec, s[{sBIG}:{sBIG+1}]
K_nofilla:
    v_lshlrev_b32 v56, 4, v{vLane}
    v_add_u32 v56, {LDS_ZS}, v56
    s_cmp_lg_u32 s3, 0
    s_cbranch_scc1 K_nozs
    s_mov_b32 exec_hi, 0
    ds_write_b128 v56, v[52:55]
    s_mov_b64 exec, -1
K_nozs:
""")
def common_consts():
    o(f"""    ; bucket of this workgroup: consecutive buckets on one die (speed only); node range [start(b), start(b+1))
    s_and_b32 s{sBETA}, s2, 7
    s_lshl_b32 s{sBETA}, s{sBETA}, 5
    s_lshr_b32 s{sT0}, s2, 3
    s_or_b32 s{sBETA}, s{sBETA}, s{sT0}
    s_mul_i32 s{sSB}, s{sBETA}, 40000
    s_lshr_b32 s{sSB}, s{sSB}, 10
1:
    s_mul_i32 s{sT0}, s{sSB}, {BMUL}
    s_lshr_b32 s{sT0}, s{sT0}, 20
    s_cmp_ge_u32 s{sT0}, s{sBETA}
    s_cbranch_scc1 2f
    s_add_u32 s{sSB}, s{sSB}, 1
    s_branch 1b
2:
    s_add_u32 s{sT1}, s{sBETA}, 1
    s_mul_i32 s{sNB}, s{sT1}, 40000
    s_lshr_b32 s{sNB}, s{sNB}, 10
3:
    s_mul_i32 s{sT0}, s{sNB}, {BMUL}
    s_lshr_b32 s{sT0}, s{sT0}, 20
    s_cmp_ge_u32 s{sT0}, s{sT1}
    s_cbranch_scc1 4f
    s_add_u32 s{sNB}, s{sNB}, 1
    s_branch 3b
4:
    s_min_u32 s{sNB}, s{sNB}, {N}
    s_sub_u32 s{sNB}, s{sNB}, s{sSB}
    s_lshl_b32 s{sSB4}, s{sSB}, 2
    v_add_u32 v{vJ16}, 16, v{vJ}
    v_lshrrev_b32 v{vTmp}, 4, v0              ; t>>4
    v_mul_u32_u24 v{vSeg}, {4*CH*8}, v{vTmp}
    v_lshlrev_b32 v{vTmp+7}, 1, v{vLane}""")
    srd(rX, sX, N*D*2)
    srd(rC, sWC, D*2)
    srd(rOFF, sWS, O_BYTES, off=WS_O)
    srd(rCH, sWS, C_BYTES, off=WS_C)
    srd(rTAB, sWS, T_BYTES, w3=0x00800000, stride=4, off=WS_T)
    srd(rTABW, sWS, T_BYTES, off=WS_T)
    srd(rOUT, sOUT, N*D*2)
common_consts()
o(f"""    ; epilogue x address
    v_add_u32 v{vTmp+6}, s{sSB}, v{vTmp}
    v_lshlrev_b32 v{vTmp+6}, 7, v{vTmp+6}
    v_lshl_add_u32 v{vTmp+6}, v{vJ}, 3, v{vTmp+6}
    s_mov_b64 exec, s[{sV625}:{sV625+1}]
    s_waitcnt vmcnt(3)""")
for i in range(4): o(f"    v_mul_u32_u24 v{44+i}, {BMUL}, v{32+i}")
for i in range(4): o(f"    v_lshrrev_b32 v{44+i}, 18, v{44+i}")
for i in range(4): o(f"    v_and_b32 v{44+i}, 0x3fc, v{44+i}")
for i in range(4): o(f"    ds_add_rtn_u32 v{48+i}, v{44+i}, v{vOne} offset:{LDS_CNT1}")
for i in range(4): o(f"    v_and_b32 v{32+i}, 63, v{32+i}")
o("    s_mov_b64 exec, -1")
stamp(1)
o(f"""    s_waitcnt lgkmcnt(0)
    s_barrier""")
stamp(2)
o(f"""    s_cmp_lg_u32 s3, 0
    s_cbranch_scc1 K_noscan
    ds_read_b128 v[72:75], v{vT16} offset:{LDS_CNT1}
    s_waitcnt lgkmcnt(0)
    v_add_u32 v76, v72, v73
    v_add_u32 v77, v76, v74
    v_add_u32 v78, v77, v75
    v_mov_b32 v79, v78""")
wave_scan(79)
o(f"""    v_sub_u32 v80, v79, v78
    v_add_u32 v81, v80, v72
    v_add_u32 v82, v80, v76
    v_add_u32 v83, v80, v77
    ds_write_b128 v{vT16}, v[80:83] offset:{LDS_BASE1}
K_noscan:
    s_waitcnt lgkmcnt(0)
    s_barrier""")
stamp(3)
o(f"    s_mov_b64 exec, s[{sV625}:{sV625+1}]")
for i in range(4): o(f"    ds_read_b32 v{12+i}, v{44+i} offset:{LDS_BASE1}")
o("    s_waitcnt vmcnt(0)")
for i in range(4): o(f"    v_lshl_or_b32 v{52+2*i}, v{36+i}, 8, v{32+i}")
o(f"""    v_lshlrev_b32 v53, 16, v40
    v_and_b32 v55, 0xffff0000, v40
    v_lshlrev_b32 v57, 16, v41
    v_and_b32 v59, 0xffff0000, v41
    s_waitcnt lgkmcnt(0)""")
for i in range(4): o(f"    v_add_lshl_u32 v{40+i}, v{12+i}, v{48+i}, 3")
for i in range(4): o(f"    ds_write_b64 v{40+i}, v[{52+2*i}:{53+2*i}] offset:{LDS_SORT}")
o(f"""    s_mov_b64 exec, -1
    v_add_u32 v8, {640*16}, v{vT16}
    v_cmp_gt_u32 vcc, {CH*8//16 - 640}, v0
    s_mul_i32 s{sT0}, s2, {CH*8}
    s_mov_b64 s[{sSAVE}:{sSAVE+1}], vcc
    v_readfirstlane_b32 s{sEP}, v10
    v_readfirstlane_b32 s{sEP+1}, v11
    s_waitcnt lgkmcnt(0)
    s_barrier""")
stamp(4)
o(f"""    ds_read_b128 v[32:35], v{vT16} offset:{LDS_SORT}
    s_mov_b64 exec, s[{sSAVE}:{sSAVE+1}]
    ds_read_b128 v[36:39], v8 offset:{LDS_SORT}
    s_mov_b64 exec, -1
    s_waitcnt lgkmcnt(0)
    buffer_store_dwordx4 v[32:35], v{vT16}, s[{rCH}:{rCH+3}], s{sT0} offen{SCW}
    s_mov_b64 exec, s[{sSAVE}:{sSAVE+1}]
    buffer_store_dwordx4 v[36:39], v8, s[{rCH}:{rCH+3}], s{sT0} offen{SCW}
    s_mov_b64 exec, -1""")
stamp(5)
def tags(inc=True):
    if inc: o(f"""    ; this launch's epoch
    s_add_u32 s{sEP}, s{sEP}, 1
    s_addc_u32 s{sEP+1}, s{sEP+1}, 0""")
    o(f"""    ; this launch's tag
    s_and_b32 s{sTAGL}, s{sEP}, 0xff
    s_lshl_b32 s{sTAGL}, s{sTAGL}, 24
    s_lshr_b64 s[{sSAVE}:{sSAVE+1}], s[{sEP}:{sEP+1}], 8
    s_mov_b32 s{sTAGH}, s{sSAVE}""")
tags()
o(f"""    ; granule of bucket j (thread j < 256) lives at (j>>4)*32768 + p*128 + (j&15)*8
    v_lshrrev_b32 v8, 4, v0
    v_lshlrev_b32 v86, 15, v8
    v_lshl_add_u32 v86, v{vJ}, 3, v86
    v_and_b32 v9, 255, v0
    v_lshlrev_b32 v9, 2, v9
    ds_read_b32 v84, v9 offset:{LDS_BASE1}
    ds_read_b32 v85, v9 offset:{LDS_CNT1}
    s_waitcnt lgkmcnt(0)
    v_lshl_or_b32 v84, v85, 12, v84
    v_or_b32 v84, s{sTAGL}, v84
    v_mov_b32 v85, s{sTAGH}
    s_lshl_b32 s{sT0}, s2, 7                   ; p*128
    v_mov_b32 v12, s{sEP}
    v_mov_b32 v13, s{sEP+1}
    s_mov_b64 exec, 1
    ds_write_b64 v{vZ}, v[12:13] offset:{LDS_FLG+32}
    s_mov_b64 exec, -1
    s_waitcnt vmcnt(0) lgkmcnt(0)""")
stamp(6)
o(f"""    s_barrier""")
stamp(7)
o(f"""    s_cmp_ge_u32 s3, 4
    s_cbranch_scc1 K_poll_setup
    buffer_store_dwordx2 v[84:85], v86, s[{rOFF}:{rOFF+3}], s{sT0} offen{SC}
    s_waitcnt vmcnt(0)
    s_branch K_poll_setup""")

vX1, vW1r, vW2r, vXf2 = 32, 72, 88, 16
o(f"""K_tab_start:
    s_sub_u32 s{sT0}, s3, 10
    s_lshr_b32 s{sT2}, s{sT0}, 1              ; tau
    s_and_b32 s{sT3}, s{sT0}, 1               ; half
    s_lshl_b32 s{sT0}, s{sT2}, 4              ; 16*tau
    s_mul_i32 s{sT1}, s2, 40
    s_add_u32 s{sT1}, s{sT1}, s{sT0}
    v_add_u32 v9, s{sT1}, v{vJ}
    v_lshlrev_b32 v10, 7, v9
    v_lshl_add_u32 v10, v{vG4}, 4, v10
    v_subrev_u32 v11, 640, v0                 ; u = t - 640
    v_lshlrev_b32 v12, 4, v11
    v_add_u32 v13, {384*16}, v12
    s_waitcnt lgkmcnt(0)""")
stamp(0, pre=True)
o("    s_barrier                                  ; B0")
srd(rA, sX, N*D*2); srd(rB, sWB, D*D*2); srd(rC, sWV, D*D*2)
o(f"""    buffer_load_dwordx4 v[{vX1}:{vX1+3}], v10, s[{rA}:{rA+3}], 0 offen
    buffer_load_dwordx4 v[{vX1+4}:{vX1+7}], v10, s[{rA}:{rA+3}], 0 offen offset:64
    buffer_load_dwordx4 v[{vW1r}:{vW1r+3}], v12, s[{rB}:{rB+3}], 0 offen
    buffer_load_dwordx4 v[{vW1r+4}:{vW1r+7}], v12, s[{rC}:{rC+3}], 0 offen
    s_cmp_ge_u32 s3, 12
    s_cbranch_scc1 K_tab_ld1
    buffer_load_dwordx4 v[{vW1r+8}:{vW1r+11}], v13, s[{rB}:{rB+3}], 0 offen
    buffer_load_dwordx4 v[{vW1r+12}:{vW1r+15}], v13, s[{rC}:{rC+3}], 0 offen
K_tab_ld1:
    v_mov_b32 v48, {N*256}
    v_mov_b32 v49, {N*256}
    v_mov_b32 v50, {N*256}
    v_mov_b32 v51, {N*256}
    v_mov_b32 v52, 0
    v_mov_b32 v53, 0
    v_mov_b32 v54, 0
    v_mov_b32 v55, 0
    s_cmp_ge_u32 s3, 13
    s_cbranch_scc1 K_nofillb
    v_cmp_gt_u32 vcc, 800, v0
    s_and_saveexec_b64 s[{sBIG}:{sBIG+1}], vcc
    ds_write_b128 v{vT16}, v[48:51] offset:{LDS_O}
    ds_write_b128 v{vT16}, v[52:55] offset:{LDS_E}
    s_mov_b64 exec, s[{sBIG}:{sBIG+1}]
K_nofillb:
    v_mov_b32 v16, v12
    v_mov_b32 v17, v13""")
common_consts()
o(f"""    ; staging addresses of chunks u and u+384: (c>>3)*WROW + (c&7)*16
    v_lshrrev_b32 v14, 3, v11
    v_mul_u32_u24 v14, {WROW}, v14
    v_and_b32 v15, 7, v11
    v_lshl_add_u32 v14, v15, 4, v14
    v_add_u32 v14, {LDS_W2}, v14
    v_add_u32 v15, {48*WROW}, v14              ; chunk u+384
    v_bfe_u32 v{vTmp+5}, v{vLane}, 2, 2
    v_lshl_add_u32 v{vTmp+5}, v{vG4}, 3, v{vTmp+5}
    v_mul_u32_u24 v{vTmp+5}, {WROW}, v{vTmp+5}
    v_and_b32 v{vTmp+1}, 3, v{vLane}
    v_lshl_add_u32 v{vTmp+5}, v{vTmp+1}, 3, v{vTmp+5}
    s_lshl_b32 s{sT0}, s{sT3}, 6
    s_add_u32 s{sT0}, s{sT0}, {LDS_W2}
    v_add_u32 v{vTmp+5}, s{sT0}, v{vTmp+5}
    s_sub_u32 s{sT0}, s3, 10
    s_mov_b32 s{sT1}, {LDS_U - 3*2304}
    s_cmp_ge_u32 s{sT0}, 3
    s_cselect_b32 s{sT1}, s{sT1}, {LDS_A}
    s_mul_i32 s{sT0}, s{sT0}, 2304
    s_add_u32 s{sT0}, s{sT0}, s{sT1}
    v_mul_u32_u24 v10, 144, v{vJ}
    v_lshl_add_u32 v10, v{vG4}, 4, v10
    v_add_u32 v10, s{sT0}, v10
    v_lshrrev_b32 v11, 3, v{vLane}
    v_mul_u32_u24 v12, 144, v11
    v_and_b32 v13, 7, v{vLane}
    v_lshl_add_u32 v12, v13, 4, v12
    v_add_u32 v12, s{sT0}, v12
    s_lshl_b32 s{sT0}, s{sT2}, 4
    v_add_u32 v11, s{sT0}, v11
    v_lshlrev_b32 v9, 8, v11
    v_lshl_add_u32 v9, v13, 4, v9
    v_mov_b32 v8, 0
    s_waitcnt lgkmcnt(0)
    s_barrier                                  ; B1
    s_barrier                                  ; B2
    ; second weight pair, x fragments of the A/U tile tau, w_c""")
srd(rA, sWA, D*D*2); srd(rB, sWU, D*D*2)
o(f"""    buffer_load_dwordx4 v[120:123], v16, s[{rA}:{rA+3}], 0 offen
    buffer_load_dwordx4 v[52:55], v16, s[{rB}:{rB+3}], 0 offen
    s_cmp_ge_u32 s3, 12
    s_cbranch_scc1 K_tab_ld2
    buffer_load_dwordx4 v[56:59], v17, s[{rA}:{rA+3}], 0 offen
    buffer_load_dwordx4 v[28:31], v17, s[{rB}:{rB+3}], 0 offen
K_tab_ld2:
    s_lshl_b32 s{sT0}, s{sT2}, 4
    s_add_u32 s{sT0}, s{sT0}, s{sSB}
    v_add_u32 v{vTmp}, s{sT0}, v{vJ}
    v_lshlrev_b32 v{vTmp}, 7, v{vTmp}
    v_lshl_add_u32 v{vTmp}, v{vG4}, 4, v{vTmp}
    buffer_load_dwordx4 v[{vXf2}:{vXf2+3}], v{vTmp}, s[{rX}:{rX+3}], 0 offen
    buffer_load_dwordx4 v[{vXf2+4}:{vXf2+7}], v{vTmp}, s[{rX}:{rX+3}], 0 offen offset:64
    s_barrier                                  ; B3
    s_cmp_ge_u32 s3, 12
    s_cbranch_scc1 K_tab_w5
    s_waitcnt vmcnt(6)
    s_branch K_tab_w
K_tab_w5:
    s_waitcnt vmcnt(4)
K_tab_w:""")
stamp(1)
o(f"""    ds_write_b128 v14, v[{vW1r}:{vW1r+3}] offset:{128*WROW}
    ds_write_b128 v14, v[{vW1r+4}:{vW1r+7}] offset:{192*WROW}
    s_cmp_ge_u32 s3, 12
    s_cbranch_scc1 K_tab_st0
    ds_write_b128 v15, v[{vW1r+8}:{vW1r+11}] offset:{128*WROW}
    ds_write_b128 v15, v[{vW1r+12}:{vW1r+15}] offset:{192*WROW}
K_tab_st0:
    s_waitcnt lgkmcnt(0)
    s_mov_b64 exec, 1
    ds_add_u32 v8, v{vOne} offset:{LDS_FLG+4}
    s_mov_b64 exec, -1
    s_mov_b32 s{sSPIN}, 0
K_tab_meet:
    ds_read_b32 v{vTmp}, v8 offset:{LDS_FLG+4}
    s_add_u32 s{sSPIN}, s{sSPIN}, 1
    s_waitcnt lgkmcnt(0)
    v_readfirstlane_b32 s{sT0}, v{vTmp}
    s_cmp_ge_u32 s{sSPIN}, {SPIN_LDS}
    s_cbranch_scc1 K_tab_met
    s_cmp_lt_u32 s{sT0}, 6
    s_cbranch_scc1 K_tab_meet
K_tab_met:""")
def frag(k, s_): return 72 + (k*2+s_)*4
for m in range(2):
    for jj in range(2):
        for s_ in range(2):
            f = frag(m*2+jj, s_)
            off = (2+m)*64*WROW + s_*32*WROW + jj*32
            o(f"    ds_read_b64_tr_b16 v[{f}:{f+1}], v{vTmp+5} offset:{off}")
            o(f"    ds_read_b64_tr_b16 v[{f+2}:{f+3}], v{vTmp+5} offset:{off+4*WROW}")
for k in range(4):
    a_ = 104 + k*4
    o(f"    s_waitcnt lgkmcnt({12-4*k})")
    o(f"    v_mfma_f32_16x16x32_bf16 v[{a_}:{a_+3}], v[{frag(k,0)}:{frag(k,0)+3}], v[{vX1}:{vX1+3}], 0")
    o(f"    v_mfma_f32_16x16x32_bf16 v[{a_}:{a_+3}], v[{frag(k,1)}:{frag(k,1)+3}], v[{vX1+4}:{vX1+7}], v[{a_}:{a_+3}]")
o(f"""    s_mov_b32 s{sT0}, {NLOG2E:#x}
    s_mov_b32 s{sT1}, 0xffff0000
    s_mov_b32 s{sSPIN}, 0x80000000
    s_mov_b32 s{sGOFF}, 0x7fffffff
    s_lshl_b32 s{sSO+1}, s{sT3}, 7
    s_mul_i32 s{sSO+2}, s2, {40*256}
    s_add_u32 s{sSO+2}, s{sSO+2}, s{sSO+1}
    s_nop 1""")
for jj in range(2):
    B = 104 + jj*4; Vv = 112 + jj*4
    t = 40
    for i in range(4): o(f"    v_mul_f32 v{B+i}, s{sT0}, v{B+i}")
    o(f"    v_cvt_pk_bf16_f32 v{t}, v{B}, v{B+1}")
    o(f"    v_cvt_pk_bf16_f32 v{t+1}, v{B+2}, v{B+3}")
    o(f"    v_and_b32 v{B}, 0xffff, v{t}")
    o(f"    v_lshrrev_b32 v{B+1}, 16, v{t}")
    o(f"    v_and_b32 v{B+2}, 0xffff, v{t+1}")
    o(f"    v_lshrrev_b32 v{B+3}, 16, v{t+1}")
    T = 44 + jj*4
    for i in range(4): o(f"    v_and_b32 v{T+i}, s{sGOFF}, v{Vv+i}")
    for i in range(4): o(f"    v_add_u32 v{T+i}, 0x8000, v{T+i}")
    for i in range(4): o(f"    v_sub_u32_e64 v{T+i}, v{T+i}, v{B+i} clamp")
    for i in range(4): o(f"    v_and_or_b32 v{T+i}, v{T+i}, s{sT1}, v{B+i}")
    for i in range(4): o(f"    v_and_or_b32 v{T+i}, v{Vv+i}, s{sSPIN}, v{T+i}")
    o(f"    ds_write_b128 v10, v[{T}:{T+3}] offset:{jj*64}")
o(f"""    s_waitcnt lgkmcnt(0)
    ds_read_b128 v[44:47], v12
    ds_read_b128 v[48:51], v12 offset:{8*144}
    v_cmp_gt_u32 vcc, 40, v11
    s_mov_b64 s[{sM}:{sM+1}], vcc
    v_cmp_gt_u32 vcc, 32, v11
    s_mov_b64 s[{sM+2}:{sM+3}], vcc
    ; stage w_a|w_u
    s_waitcnt vmcnt(0)
    ds_write_b128 v14, v[120:123]
    ds_write_b128 v14, v[52:55] offset:{64*WROW}
    s_cmp_ge_u32 s3, 12
    s_cbranch_scc1 K_tab_st2
    ds_write_b128 v15, v[56:59]
    ds_write_b128 v15, v[28:31] offset:{64*WROW}
K_tab_st2:
    s_waitcnt lgkmcnt(0)
    s_cmp_ge_u32 s2, 250
    s_cbranch_scc1 K_tab_norows
    s_mov_b64 exec, s[{sM}:{sM+1}]
    s_cbranch_execz K_tab_r1
    buffer_store_dwordx4 v[44:47], v9, s[{rTABW}:{rTABW+3}], s{sSO+2} offen{SCW}
K_tab_r1:
    s_mov_b64 exec, s[{sM+2}:{sM+3}]
    s_cbranch_execz K_tab_r2
    buffer_store_dwordx4 v[48:51], v9, s[{rTABW}:{rTABW+3}], s{sSO+2} offen offset:2048{SCW}
K_tab_r2:
    s_mov_b64 exec, -1
    s_branch K_tab_stored
K_tab_norows:
    s_cmp_lg_u32 s2, 250
    s_cbranch_scc1 K_tab_stored
    s_cmp_lg_u32 s3, 10
    s_cbranch_scc1 K_tab_stored
    v_mov_b32 v44, 0x7f00
    s_mov_b32 s{sT0}, {N*256}
    buffer_store_dword v44, v{vLane4}, s[{rTABW}:{rTABW+3}], s{sT0} offen{SCW}
K_tab_stored:""")
stamp(5)
o("    s_barrier")
stamp(7)
o(f"    ds_read_b64 v[124:125], v{vZ} offset:{LDS_FLG+32}")
vFr, vAcc = 72, 104
for jj in range(2):
    for m in range(2):
        for s_ in range(2):
            f = vFr + ((jj*2+m)*2+s_)*4
            off = m*64*WROW + s_*32*WROW + jj*32
            o(f"    ds_read_b64_tr_b16 v[{f}:{f+1}], v{vTmp+5} offset:{off}")
            o(f"    ds_read_b64_tr_b16 v[{f+2}:{f+3}], v{vTmp+5} offset:{off+4*WROW}")
o(f"""    ; LDS dest: (16*tau + (lane&15))*272 + (32*half + 16*jj + 4*g)*4
    s_lshl_b32 s{sT1}, s{sT2}, 4
    v_add_u32 v9, s{sT1}, v{vJ}
    v_mul_u32_u24 v9, 272, v9
    v_lshl_add_u32 v9, v{vG4}, 4, v9
    s_lshl_b32 s{sT0}, s{sT3}, 7
    v_add_u32 v9, s{sT0}, v9
    v_add_u32 v11, {LDS_U}, v9""")
for k in range(4):
    a_ = vAcc + k*4; f = vFr + k*8
    o(f"    s_waitcnt lgkmcnt({12-4*k})")
    o(f"    v_mfma_f32_16x16x32_bf16 v[{a_}:{a_+3}], v[{f}:{f+3}], v[{vXf2}:{vXf2+3}], 0")
    o(f"    v_mfma_f32_16x16x32_bf16 v[{a_}:{a_+3}], v[{f+4}:{f+7}], v[{vXf2+4}:{vXf2+7}], v[{a_}:{a_+3}]")
o(f"""    s_mov_b32 s{sT0}, {NLOG2E:#x}
    v_mov_b32 v10, 0xc27c0000                  ; -63
    s_nop 7""")
for jj in range(2):
    a_ = vAcc + jj*8
    for i in range(4): o(f"    v_fma_f32 v{a_+i}, v{a_+i}, s{sT0}, v10")
    o(f"    ds_write_b128 v9, v[{a_}:{a_+3}] offset:{LDS_A + jj*64}")
    o(f"    ds_write_b128 v11, v[{a_+4}:{a_+7}] offset:{jj*64}")
o(f"    v_readfirstlane_b32 s{sEP}, v124\n    v_readfirstlane_b32 s{sEP+1}, v125\n    s_nop 3")
tags(False)
o(f"""    ; table-ready signal: the last table wave whose stores have completed publishes one granule per replica
    s_waitcnt vmcnt(0)""")
stamp(6)
o(f"""    s_mov_b64 exec, 1
    ds_add_rtn_u32 v9, v8, v{vOne} offset:{LDS_FLG+8}
    s_mov_b64 exec, -1
    s_waitcnt lgkmcnt(0)
    v_readfirstlane_b32 s{sT0}, v9
    s_nop 3
    s_cmp_lg_u32 s{sT0}, 5
    s_cbranch_scc1 K_poll_setup
    s_add_u32 s{rA}, s{sWS}, {WS_TF:#x}
    s_addc_u32 s{rA+1}, s{sWS+1}, 0
    s_and_b32 s{rA+1}, s{rA+1}, 0xffff
    s_mov_b32 s{rA+2}, {8*2048}
    s_mov_b32 s{rA+3}, 0x20000
    v_lshlrev_b32 v8, 11, v{vLane}
    v_mov_b32 v10, s{sTAGL}
    v_mov_b32 v11, s{sTAGH}
    s_lshl_b32 s{sT0}, s2, 3
    s_mov_b64 exec, 0xff
    buffer_store_dwordx2 v[10:11], v8, s[{rA}:{rA+3}], s{sT0} offen{SC}
    s_mov_b64 exec, -1""")

vG = 72
vEnt, vIdx, vRank = 28, 44, 52
o("K_poll_setup:")
if "sprio" in FL: o("    s_setprio 0")
o(f"""
    v_lshrrev_b32 v8, 4, v0
    v_lshlrev_b32 v8, 9, v8                    ; 4*(t>>4)*128
    s_lshr_b32 s{sT0}, s{sBETA}, 4
    s_lshl_b32 s{sT0}, s{sT0}, 15
    s_and_b32 s{sT1}, s{sBETA}, 15
    s_lshl_b32 s{sT1}, s{sT1}, 3
    s_add_u32 s{sGOFF}, s{sT0}, s{sT1}
    s_mov_b32 s{sSPIN}, 0
    v_mov_b32 v9, 0xff000000
{PRE_SLEEP}{B4B}K_poll:
    buffer_load_dwordx2 v[{vG}:{vG+1}], v8, s[{rOFF}:{rOFF+3}], s{sGOFF} offen{SC}
    buffer_load_dwordx2 v[{vG+2}:{vG+3}], v8, s[{rOFF}:{rOFF+3}], s{sGOFF} offen offset:128{SC}
    buffer_load_dwordx2 v[{vG+4}:{vG+5}], v8, s[{rOFF}:{rOFF+3}], s{sGOFF} offen offset:256{SC}
    buffer_load_dwordx2 v[{vG+6}:{vG+7}], v8, s[{rOFF}:{rOFF+3}], s{sGOFF} offen offset:384{SC}
    s_add_u32 s{sSPIN}, s{sSPIN}, 1
    s_waitcnt vmcnt(0)""")
def tagcheck(d0s, d1s, mask):
    o(f"    v_xor_b32 v{vTmp}, s{sTAGL}, v{d0s[0]}")
    o(f"    v_xor_b32 v{vTmp+1}, s{sTAGL}, v{d0s[1]}")
    o(f"    v_xor_b32 v{vTmp+2}, s{sTAGL}, v{d0s[2]}")
    o(f"    v_xor_b32 v{vTmp+3}, s{sTAGL}, v{d0s[3]}")
    o(f"    v_or3_b32 v{vTmp}, v{vTmp}, v{vTmp+1}, v{vTmp+2}")
    o(f"    v_or_b32 v{vTmp}, v{vTmp}, v{vTmp+3}")
    o(f"    v_and_b32 v{vTmp}, v{mask}, v{vTmp}")
    o(f"    v_xor_b32 v{vTmp+1}, s{sTAGH}, v{d1s[0]}")
    o(f"    v_xor_b32 v{vTmp+2}, s{sTAGH}, v{d1s[1]}")
    o(f"    v_xor_b32 v{vTmp+3}, s{sTAGH}, v{d1s[2]}")
    o(f"    v_xor_b32 v{vTmp+4}, s{sTAGH}, v{d1s[3]}")
    o(f"    v_or3_b32 v{vTmp}, v{vTmp}, v{vTmp+1}, v{vTmp+2}")
    o(f"    v_or3_b32 v{vTmp}, v{vTmp}, v{vTmp+3}, v{vTmp+4}")
    o(f"    v_cmp_ne_u32 vcc, 0, v{vTmp}")
tagcheck([vG, vG+2, vG+4, vG+6], [vG+1, vG+3, vG+5, vG+7], 9)
o(f"""    s_cbranch_vccz K_poll_ok
    s_cmp_ge_u32 s{sSPIN}, {SPIN_MAX}
    s_cbranch_scc1 K_poll_fail
    s_sleep {SLEEP}
    s_branch K_poll
K_poll_fail:""")
for r in range(4): o(f"    v_mov_b32 v{vG+2*r}, 0")
o("K_poll_ok:")
if STAMP: o(f"    v_writelane_b32 v{vST}, s{sSPIN}, 19")
stamp(8)
stampc(18)
vCnt = 80
o(f"""    s_mov_b32 s{sSO}, 0
    s_mov_b32 s{sSO+1}, {CH*8}
    s_mov_b32 s{sSO+2}, {2*CH*8}
    s_mov_b32 s{sSO+3}, {3*CH*8}""")
for r in range(4):
    T = vG + 2*r
    o(f"""    v_bfe_u32 v{vCnt+r}, v{T}, 12, 12          ; count
    v_and_b32 v{vCnt+4+r}, 0xfff, v{T}
    v_add_u32 v{vCnt+4+r}, v{vCnt+4+r}, v{vJ}
    v_cmp_gt_u32 s[{sM+4*r}:{sM+4*r+1}], v{vCnt+r}, v{vJ}
    v_lshl_add_u32 v{vCnt+4+r}, v{vCnt+4+r}, 3, v{vSeg}""")
for r in range(4):
    o(f"""    s_mov_b64 exec, s[{sM+4*r}:{sM+4*r+1}]
    buffer_load_dwordx2 v[{vEnt+4*r}:{vEnt+4*r+1}], v{vCnt+4+r}, s[{rCH}:{rCH+3}], s{sSO+r} offen{SCE}""")
o(f"""    s_mov_b64 exec, -1
    v_lshrrev_b32 v12, 4, v0
    v_add_u32 v12, s{sSB}, v12
    v_lshlrev_b32 v12, 7, v12
    v_lshl_add_u32 v12, v{vJ}, 3, v12
    v_lshlrev_b32 v13, 1, v{vLane}
    buffer_load_ushort v{vWc}, v13, s[{rC}:{rC+3}], 0 offen
    buffer_load_dwordx2 v[{vXe}:{vXe+1}], v12, s[{rX}:{rX+3}], 0 offen
    v_max3_u32 v{vTmp}, v{vCnt}, v{vCnt+1}, v{vCnt+2}
    v_max_u32 v{vTmp}, v{vTmp}, v{vCnt+3}
    v_cmp_lt_u32 vcc, 16, v{vTmp}
    s_mov_b64 s[{sBIG}:{sBIG+1}], vcc
    s_cbranch_vccz K_nok1""")
for r in range(4):
    o(f"""    v_cmp_gt_u32 s[{sM+4*r+2}:{sM+4*r+3}], v{vCnt+r}, v{vJ16}""")
o("    s_nop 1")
for r in range(4):
    o(f"""    s_mov_b64 exec, s[{sM+4*r+2}:{sM+4*r+3}]
    s_cbranch_execz K_nok1_{r}
    buffer_load_dwordx2 v[{vEnt+4*r+2}:{vEnt+4*r+3}], v{vCnt+4+r}, s[{rCH}:{rCH+3}], s{sSO+r} offen offset:128{SCE}
K_nok1_{r}:""")
o(f"""    s_mov_b64 exec, -1
    v_cmp_lt_u32 vcc, 32, v{vTmp}
    s_cbranch_vccz K_nok1
    v_mov_b32 v{vTmp}, 0
    ds_write_b32 v{vTmp}, v{vOne} offset:{LDS_FLG}
K_nok1:
    s_cmp_lg_u32 s3, 15
    s_cbranch_scc1 K_notf
    s_add_u32 s{rB}, s{sWS}, {WS_TF:#x}
    s_addc_u32 s{rB+1}, s{sWS+1}, 0
    s_and_b32 s{rB+1}, s{rB+1}, 0xffff
    s_mov_b32 s{rB+2}, {8*2048}
    s_mov_b32 s{rB+3}, 0x20000
    s_and_b32 s{sT3}, s2, 7
    s_lshl_b32 s{sT3}, s{sT3}, 11
    v_lshlrev_b32 v100, 5, v{vLane}
    v_mov_b32 v101, 0xff000000
    s_mov_b32 s{sSPIN}, 0
K_tfpoll:
    buffer_load_dwordx4 v[88:91], v100, s[{rB}:{rB+3}], s{sT3} offen{SC}
    buffer_load_dwordx4 v[92:95], v100, s[{rB}:{rB+3}], s{sT3} offen offset:16{SC}
    s_add_u32 s{sSPIN}, s{sSPIN}, 1
    s_waitcnt vmcnt(0)""")
tagcheck([88, 90, 92, 94], [89, 91, 93, 95], 101)
o(f"""    s_cbranch_vccz K_notf
    s_cmp_ge_u32 s{sSPIN}, {SPIN_MAX}
    s_cbranch_scc1 K_notf
    s_sleep 1
    s_branch K_tfpoll
K_notf:
    s_waitcnt vmcnt(0)
    v_lshlrev_b32 v{vWc}, 16, v{vWc}
    v_mul_f32 v{vWc}, {NLOG2E:#x}, v{vWc}""")
stamp(9)
def slots(ks): return [r*2+k for r in range(4) for k in ks]
def hist(es):
    for e in es:
        d0 = vEnt + 2*e
        o(f"    v_lshlrev_b32 v{vIdx+e}, 2, v{d0}")
        o(f"    v_subrev_u32 v{vIdx+e}, s{sSB4}, v{vIdx+e}")
        o(f"    v_and_b32 v{vIdx+e}, 0xfc, v{vIdx+e}")
        o(f"    s_mov_b64 exec, s[{sM+2*e}:{sM+2*e+1}]")
        o(f"    ds_add_rtn_u32 v{vRank+e}, v{vIdx+e}, v{vOne} offset:{LDS_CNT2}")
        o(f"    s_mov_b64 exec, -1")
hist(slots([0]))
o(f"    s_cmp_eq_u64 s[{sBIG}:{sBIG+1}], 0\n    s_cbranch_scc1 K_noh1")
hist(slots([1]))
o(f"""K_noh1:
    s_waitcnt lgkmcnt(0)
    s_barrier""")
stamp(10)
o(f"""    ds_read_b32 v{vInc}, v{vLane4} offset:{LDS_CNT2}
    v_mov_b32 v{vTmp}, 0
    ds_read_b32 v{vTmp+1}, v{vTmp} offset:{LDS_FLG}
""")
NPF = int(opt("npf", 0))
NPS = int(opt("nps", 0))
if NPS:
    o(f"""    ; pull this workgroup's share of the table into the L2 of its die (speed only): one dword per line
    s_sub_u32 s{sT1}, s3, {int(opt("npw0", 0))}
    s_cmp_ge_u32 s{sT1}, {NPS}
    s_cbranch_scc1 K_nops
    s_lshr_b32 s{sT0}, s2, 3
    s_mul_i32 s{sT0}, s{sT0}, {640*128}
    s_lshl_b32 s{sT1}, s{sT1}, 13
    s_add_u32 s{sT0}, s{sT0}, s{sT1}
    v_lshlrev_b32 v8, 7, v{vLane}
    buffer_load_dword v104, v8, s[{rTABW}:{rTABW+3}], s{sT0} offen{SC}
K_nops:""")
if NPF:
    o(f"""    ; pull part of this workgroup's share of the table into the L2 of its die (speed only)
    s_lshr_b32 s{sT0}, s2, 3
    s_mul_i32 s{sT0}, s{sT0}, {16*5*1024}
    s_mul_i32 s{sT1}, s3, {5*1024}
    s_add_u32 s{sT0}, s{sT0}, s{sT1}
    v_lshlrev_b32 v8, 4, v{vLane}""")
    for i in range(NPF):
        o(f"    buffer_load_dwordx4 v[104:107], v8, s[{rTABW}:{rTABW+3}], s{sT0} offen offset:{i*1024}{SC}")
o(f"""    ; workgroup 0 records this launch's epoch (all workgroups have read the old one by now)
    s_or_b32 s{sT0}, s2, s3
    s_cmp_lg_u32 s{sT0}, 0
    s_cbranch_scc1 K_noep
    s_add_u32 s{rA}, s{sWS}, {WS_EP:#x}
    s_addc_u32 s{rA+1}, s{sWS+1}, 0
    s_and_b32 s{rA+1}, s{rA+1}, 0xffff
    s_mov_b32 s{rA+2}, 8
    s_mov_b32 s{rA+3}, 0x20000
    v_mov_b32 v8, s{sEP}
    v_mov_b32 v9, s{sEP+1}
    s_mov_b64 exec, 1
    buffer_store_dwordx2 v[8:9], v{vTmp}, s[{rA}:{rA+3}], 0 offen
    s_mov_b64 exec, -1
K_noep:
    s_waitcnt lgkmcnt(0)
    v_add_u32 v{vInc}, 3, v{vInc}
    v_readfirstlane_b32 s{sT0}, v{vTmp+1}
    v_lshrrev_b32 v{vInc}, 2, v{vInc}
    v_mov_b32 v{vBase}, v{vInc}""")
fill = [f"v_and_b32 v{vEnt+2*e}, 0xffffff00, v{vEnt+2*e}" for e in range(8)] + \
       [f"s_lshl_b32 s{sT2}, 1, s3", f"v_mov_b32 v{vTmp+2}, s{sT2}"]
wave_scan(vInc, fill)
vPos = 80
o(f"""    v_sub_u32 v{vTmp+3}, v{vInc}, v{vBase}
    v_lshlrev_b32 v{vBase}, 2, v{vTmp+3}
    v_readlane_b32 s{sQ}, v{vInc}, 63
    s_cmp_lg_u32 s{sT0}, 0
    s_cbranch_scc1 K_slow""")
for e in slots([0]): o(f"    ds_bpermute_b32 v{vPos+e}, v{vIdx+e}, v{vBase}")
o(f"""    s_cmp_gt_u32 s{sQ}, {CAPQ}
    s_cbranch_scc1 K_slow
    s_mul_i32 s{sQ0}, s{sQ}, s3
    s_lshr_b32 s{sQ0}, s{sQ0}, 4
    s_add_u32 s{sT0}, s3, 1
    s_mul_i32 s{sQ1}, s{sQ}, s{sT0}
    s_lshr_b32 s{sQ1}, s{sQ1}, 4
    v_cmp_ge_u32 vcc, s{sQ0}, v{vInc}
    s_bcnt1_i32_b64 s{sNODE}, vcc
    v_cmp_lt_u32 s[{rA}:{rA+1}], s{sQ0}, v{vInc}
    v_cmp_gt_u32 s[{rA+2}:{rA+3}], s{sQ1}, v{vTmp+3}
    v_cmp_gt_u32 vcc, v{vInc}, v{vTmp+3}
    v_readlane_b32 s{sBND}, v{vInc}, s{sNODE}
    s_and_b64 s[{rA}:{rA+1}], s[{rA}:{rA+1}], s[{rA+2}:{rA+3}]
    s_and_b64 s[{rA}:{rA+1}], s[{rA}:{rA+1}], vcc
    s_cmp_lt_u32 s{sQ0}, s{sQ1}
    s_cselect_b64 exec, s[{rA}:{rA+1}], 0
    ds_or_b32 v{vLane4}, v{vTmp+2} offset:{LDS_MSK}
    s_mov_b64 exec, -1
    s_waitcnt lgkmcnt(0)""")
def place(es, bperm):
    if bperm:
        for e in es: o(f"    ds_bpermute_b32 v{vPos+e}, v{vIdx+e}, v{vBase}")
        o("    s_waitcnt lgkmcnt(0)")
    for e in es: o(f"    v_add_lshl_u32 v{vPos+e}, v{vPos+e}, v{vRank+e}, 2")
    for e in es:
        d0 = vEnt + 2*e
        o(f"    s_mov_b64 exec, s[{sM+2*e}:{sM+2*e+1}]")
        o(f"    ds_write_b32 v{vPos+e}, v{d0} offset:{LDS_O}")
        o(f"    ds_write_b32 v{vPos+e}, v{d0+1} offset:{LDS_E}")
    o(f"    s_mov_b64 exec, -1")
place(slots([0]), False)
o(f"    s_cmp_eq_u64 s[{sBIG}:{sBIG+1}], 0\n    s_cbranch_scc1 K_nop1")
place(slots([1]), True)
PT = [int(x) for x in opt('pt', '4-7-9').split('-')]
NOPS = [int(x) for x in opt('nops', '').split('-') if x]
NOPPOS = int(opt('noppos', 0))
vA, vAn, vDen, vNum, vAA, vLA, vSL = 8, 9, 10, 12, 14, 15, 27
vO = 16
vE = [20, 28]
RING = int(opt('ring', 4))
vDr = [32, 36, 40, 44] if RING == 4 else [72 + 4*i for i in range(RING)]
vU, vAa, vP, vS_, vQ, vR = 48, 52, 56, 58, 62, 64
vF = 66
o("K_nop1:")
NPF2 = int(opt("npf2", 0))
if NPF2:
    o(f"""    s_lshr_b32 s{sT0}, s2, 3
    s_mul_i32 s{sT0}, s{sT0}, {16*5*1024}
    s_mul_i32 s{sT1}, s3, {5*1024}
    s_add_u32 s{sT0}, s{sT0}, s{sT1}
    s_add_u32 s{sT0}, s{sT0}, {NPF*1024}
    v_lshlrev_b32 v103, 4, v{vLane}""")
    for i in range(NPF2):
        o(f"    buffer_load_dwordx4 v[104:107], v103, s[{rTABW}:{rTABW+3}], s{sT0} offen offset:{i*1024}{SC}")
o(f"""    s_mul_i32 s{sT0}, s{sNODE}, 272
    v_add_u32 v{vAA}, s{sT0}, v{vLane4}
    s_add_u32 s{sT1}, s{sNODE}, s3
    s_lshl_b32 s{sT1}, s{sT1}, 9
    v_add_u32 v{vSL}, s{sT1}, v{vLane4}
    s_lshl_b32 s{sT0}, s{sQ0}, 4
    v_mov_b32 v{vLA}, s{sT0}
    ds_read_b32 v{vA}, v{vAA} offset:{LDS_A}
    ds_read_b32 v{vAn}, v{vAA} offset:{LDS_A+272}
    s_min_u32 s{sSTOP}, s{sBND}, s{sQ1}
    s_sub_u32 s{sREM}, s{sSTOP}, s{sQ0}
    s_mov_b32 s{sC63}, 0x5f000000                ; 2^63
    s_mov_b32 s{sC63+1}, 0x5f000000
    s_mov_b32 s{sSEL}, 0x00003f80
    s_mov_b32 s{sIT}, 0
    v_mov_b64 v[{vDen}:{vDen+1}], 0
    v_mov_b64 v[{vNum}:{vNum+1}], 0
    s_waitcnt lgkmcnt(0)
    s_barrier""")
stamp(11)
stampc(14)
o(f"""    s_cmp_ge_u32 s{sQ0}, s{sQ1}
    s_cbranch_scc1 K_main_done
    s_setprio 3""")
scr = [32, 36, 40, 44, 48, 52, 56] if RING > 4 else [vO, vU, vAa]
for j in range(RING-1): o(f"    ds_read_b128 v[{scr[j]}:{scr[j]+3}], v{vLA} offset:{LDS_O+16*j}")
o(f"    ds_read_b128 v[{vE[0]}:{vE[0]+3}], v{vLA} offset:{LDS_E}")
for j in range(RING-1):
    o(f"    s_waitcnt lgkmcnt({RING-1-j})")
    for i in range(4): o(f"    buffer_load_dword v{vDr[j]+i}, v{scr[j]+i}, s[{rTAB}:{rTAB+3}], 0 offen{SC}")
o(f"    ds_read_b128 v[{vO}:{vO+3}], v{vLA} offset:{LDS_O+16*(RING-1)}")
NPS2 = int(opt("nps2", 0))
if NPS2:
    o(f"""    ; second share of the table prefetch, behind the first gathers
    s_sub_u32 s{sT1}, s3, 4
    s_cmp_ge_u32 s{sT1}, {NPS2}
    s_cbranch_scc1 K_nops2
    s_lshr_b32 s{sT0}, s2, 3
    s_mul_i32 s{sT0}, s{sT0}, {640*128}
    s_lshl_b32 s{sT1}, s3, 13
    s_add_u32 s{sT0}, s{sT0}, s{sT1}
    v_lshlrev_b32 v104, 7, v{vLane}
    buffer_load_dword v105, v104, s[{rTABW}:{rTABW+3}], s{sT0} offen{SC}
K_nops2:""")
o(".p2align 3")
o("K_loop:")
for k in range(RING):
    e = vE[k%2]; en = vE[(k+1)%2]; Dk = vDr[k]; Dn = vDr[(k+RING-1)%RING]
    o(f"    s_waitcnt lgkmcnt(0)")
    o(f"    s_sub_u32 s{sREM}, s{sREM}, 1")
    for i in range(4):
        o(f"    buffer_load_dword v{Dn+i}, v{vO+i}, s[{rTAB}:{rTAB+3}], 0 offen{SC}")
    o(f"    ds_read_b128 v[{vO}:{vO+3}], v{vLA} offset:{LDS_O+16*(k+RING)}")
    o(f"    ds_read_b128 v[{en}:{en+3}], v{vLA} offset:{LDS_E+16*(k+1)}")
    o(f"    s_cbranch_scc1 K_h{k}")
    o(f"K_r{k}:")
    o(f"    s_waitcnt vmcnt({4*(RING-1)})")
    o(f"    v_pk_fma_f32 v[{vU}:{vU+1}], v[{e}:{e+1}], v[{vWc}:{vWc+1}], v[{vA}:{vA+1}] op_sel_hi:[1,0,0]")
    o(f"    v_pk_fma_f32 v[{vU+2}:{vU+3}], v[{e+2}:{e+3}], v[{vWc}:{vWc+1}], v[{vA}:{vA+1}] op_sel_hi:[1,0,0]")
    for i in range(4): o(f"    v_dot2c_f32_bf16 v{vU+i}, s{sSEL}, v{Dk+i}")
    if NOPS and NOPPOS == 1:
        for z in NOPS: o(f"    s_nop {z}")
    for i in range(4): o(f"    v_exp_f32_e64 v{vU+i}, v{vU+i} clamp")
    if NOPS and NOPPOS == 2:
        for z in NOPS: o(f"    s_nop {z}")
    o(f"    v_pk_fma_f32 v[{vAa}:{vAa+1}], v[{vU}:{vU+1}], s[{sC63}:{sC63+1}], 1.0 op_sel_hi:[1,0,0]")
    o(f"    v_pk_fma_f32 v[{vAa+2}:{vAa+3}], v[{vU+2}:{vU+3}], s[{sC63}:{sC63+1}], 1.0 op_sel_hi:[1,0,0]")
    if NOPS and NOPPOS == 0:
        for z in NOPS: o(f"    s_nop {z}")
    o(f"    v_pk_mul_f32 v[{vP}:{vP+1}], v[{vAa}:{vAa+1}], v[{vAa+2}:{vAa+3}]")
    o(f"    v_pk_add_f32 v[{vS_}:{vS_+1}], v[{vAa}:{vAa+1}], v[{vAa+2}:{vAa+3}]")
    o(f"    v_rcp_f32 v{vR}, v{vP}")
    o(f"    v_rcp_f32 v{vR+1}, v{vP+1}")
    o(f"    v_pk_mul_f32 v[{vQ}:{vQ+1}], v[{vAa+2}:{vAa+3}], v[{Dk}:{Dk+1}]")
    o(f"    v_pk_fma_f32 v[{vQ}:{vQ+1}], v[{vAa}:{vAa+1}], v[{Dk+2}:{Dk+3}], v[{vQ}:{vQ+1}]")
    o(f"    v_pk_fma_f32 v[{vDen}:{vDen+1}], v[{vS_}:{vS_+1}], v[{vR}:{vR+1}], v[{vDen}:{vDen+1}]")
    o(f"    v_pk_fma_f32 v[{vNum}:{vNum+1}], v[{vQ}:{vQ+1}], v[{vR}:{vR+1}], v[{vNum}:{vNum+1}]")
o(f"""    v_add_u32 v{vLA}, {16*RING}, v{vLA}
    s_add_u32 s{sIT}, s{sIT}, 1
    s_cmp_eq_u32 s{sIT}, {PT[0]}
    s_cbranch_scc1 K_p2
    s_cmp_eq_u32 s{sIT}, {PT[1]}
    s_cbranch_scc1 K_p1
    s_cmp_eq_u32 s{sIT}, {PT[2]}
    s_cbranch_scc0 K_loop
    s_setprio 0
    s_branch K_loop
K_p2:
    s_setprio 2
    s_branch K_loop
K_p1:
    s_setprio 1
    s_branch K_loop""")
for k in range(RING):
    o(f"""K_h{k}:
    v_add_f32 v{vF}, v{vDen}, v{vDen+1}
    v_add_f32 v{vF+1}, v{vNum}, v{vNum+1}
    s_add_u32 s{sNODE}, s{sNODE}, 1
    ds_write_b32 v{vSL}, v{vF} offset:{LDS_SL}
    ds_write_b32 v{vSL}, v{vF+1} offset:{LDS_SL+256}
    s_cmp_ge_u32 s{sSTOP}, s{sQ1}
    s_cbranch_scc1 K_main_done
    v_readlane_b32 s{sBND}, v{vInc}, s{sNODE}
    v_mov_b64 v[{vDen}:{vDen+1}], 0
    v_mov_b64 v[{vNum}:{vNum+1}], 0
    v_mov_b32 v{vA}, v{vAn}
    v_add_u32 v{vAA}, 272, v{vAA}
    v_add_u32 v{vSL}, 512, v{vSL}
    s_cmp_eq_u32 s{sBND}, s{sSTOP}
    s_cbranch_scc1 K_hs{k}
    ds_read_b32 v{vAn}, v{vAA} offset:{LDS_A+272}
K_hr{k}:
    s_mov_b32 s{sT0}, s{sSTOP}
    s_min_u32 s{sSTOP}, s{sBND}, s{sQ1}
    s_sub_u32 s{sREM}, s{sSTOP}, s{sT0}
    s_sub_u32 s{sREM}, s{sREM}, 1
    s_branch K_r{k}
K_hs{k}:
    s_add_u32 s{sNODE}, s{sNODE}, 1
    v_readlane_b32 s{sBND}, v{vInc}, s{sNODE}
    v_add_u32 v{vAA}, 272, v{vAA}
    v_add_u32 v{vSL}, 512, v{vSL}
    s_nop 1
    s_cmp_eq_u32 s{sBND}, s{sSTOP}
    s_cbranch_scc1 K_hs{k}
    ds_read_b32 v{vA}, v{vAA} offset:{LDS_A}
    ds_read_b32 v{vAn}, v{vAA} offset:{LDS_A+272}
    s_waitcnt lgkmcnt(0)
    s_branch K_hr{k}""")

sP, sCNT, sPOS, sN, sEN = 4, 5, 6, 7, 8
o(f"""K_slow:
    s_add_u32 s{rB}, s{sWS}, {WS_TF:#x}
    s_addc_u32 s{rB+1}, s{sWS+1}, 0
    s_and_b32 s{rB+1}, s{rB+1}, 0xffff
    s_mov_b32 s{rB+2}, {8*2048}
    s_mov_b32 s{rB+3}, 0x20000
    s_and_b32 s{sT3}, s2, 7
    s_lshl_b32 s{sT3}, s{sT3}, 11
    v_lshlrev_b32 v100, 5, v{vLane}
    v_mov_b32 v101, 0xff000000
    s_mov_b32 s{sSPIN}, 0
K_s_tf:
    buffer_load_dwordx4 v[88:91], v100, s[{rB}:{rB+3}], s{sT3} offen{SC}
    buffer_load_dwordx4 v[92:95], v100, s[{rB}:{rB+3}], s{sT3} offen offset:16{SC}
    s_add_u32 s{sSPIN}, s{sSPIN}, 1
    s_waitcnt vmcnt(0)""")
tagcheck([88, 90, 92, 94], [89, 91, 93, 95], 101)
o(f"""    s_cbranch_vccz K_s_go
    s_cmp_ge_u32 s{sSPIN}, {SPIN_MAX}
    s_cbranch_scc1 K_s_go
    s_sleep 4
    s_branch K_s_tf
K_s_go:
    s_mov_b32 s{sC63}, 0x5f000000
    s_mov_b32 s{sSEL}, 0x00003f80
    s_mov_b32 s{sN}, s3
    v_mov_b32 v{vTmp}, 0
K_s_node:
    s_mov_b32 s{sT3}, 1
    s_cmp_ge_u32 s{sN}, s{sNB}
    s_cbranch_scc1 K_main_done2
    s_mul_i32 s{sT0}, s{sN}, 272
    v_add_u32 v{vAA}, s{sT0}, v{vLane4}
    ds_read_b32 v{vA}, v{vAA} offset:{LDS_A}
    v_mov_b32 v{vDen}, 0
    v_mov_b32 v{vNum}, 0
    s_mov_b32 s{sP}, 0
    s_waitcnt lgkmcnt(0)
K_s_prod:
    s_lshl_b32 s{sT0}, s{sP}, 7
    s_add_u32 s{sT0}, s{sT0}, s{sGOFF}
    buffer_load_dword v{vU}, v{vTmp}, s[{rOFF}:{rOFF+3}], s{sT0} offen{SC}
    s_waitcnt vmcnt(0)
    v_readfirstlane_b32 s{sCNT}, v{vU}
    s_nop 3
    s_and_b32 s{sPOS}, s{sCNT}, 0xfff
    s_bfe_u32 s{sCNT}, s{sCNT}, 0xc000c
    s_mul_i32 s{sT0}, s{sP}, {CH}
    s_add_u32 s{sPOS}, s{sPOS}, s{sT0}
    s_lshl_b32 s{sPOS}, s{sPOS}, 3
K_s_ent:
    s_cmp_eq_u32 s{sCNT}, 0
    s_cbranch_scc1 K_s_prod_next
    buffer_load_dwordx2 v[{vU}:{vU+1}], v{vTmp}, s[{rCH}:{rCH+3}], s{sPOS} offen{SC}
    s_waitcnt vmcnt(0)
    v_readfirstlane_b32 s{sEN}, v{vU}
    s_nop 3
    s_sub_u32 s{sT0}, s{sEN}, s{sSB}
    s_and_b32 s{sT0}, s{sT0}, 63
    s_cmp_lg_u32 s{sT0}, s{sN}
    s_cbranch_scc1 K_s_ent_next
    s_and_b32 s{sT0}, s{sEN}, 0xffffff00
    buffer_load_dword v{vU+2}, off, s[{rTAB}:{rTAB+3}], s{sT0}{SC}
    v_fma_f32 v{vU}, v{vU+1}, v{vWc}, v{vA}
    s_waitcnt vmcnt(0)
    v_dot2c_f32_bf16 v{vU}, s{sSEL}, v{vU+2}
    s_nop 2
    v_exp_f32_e64 v{vU}, v{vU} clamp
    s_nop 0
    v_fma_f32 v{vU}, v{vU}, s{sC63}, 1.0
    v_rcp_f32 v{vU}, v{vU}
    s_nop 0
    v_add_f32 v{vDen}, v{vDen}, v{vU}
    v_fmac_f32 v{vNum}, v{vU}, v{vU+2}
K_s_ent_next:
    s_add_u32 s{sPOS}, s{sPOS}, 8
    s_sub_u32 s{sCNT}, s{sCNT}, 1
    s_branch K_s_ent
K_s_prod_next:
    s_add_u32 s{sP}, s{sP}, 1
    s_cmp_lt_u32 s{sP}, {NB}
    s_cbranch_scc1 K_s_prod
    s_lshl_b32 s{sT0}, s{sN}, 9
    v_add_u32 v{vF+2}, s{sT0}, v{vLane4}
    ds_write_b32 v{vF+2}, v{vDen} offset:{LDS_SL}
    ds_write_b32 v{vF+2}, v{vNum} offset:{LDS_SL+256}
    s_lshl_b32 s{sT0}, s{sN}, 2
    v_mov_b32 v{vF+3}, s{sT0}
    s_mov_b64 exec, 1
    ds_write_b32 v{vF+3}, v{vOne} offset:{LDS_MSK}
    s_mov_b64 exec, -1
    s_add_u32 s{sN}, s{sN}, 16
    s_branch K_s_node""")

eN, eC, eM, eW, eAd = 8, 9, 10, 11, 12
eDen, eNum, eT0, eT1, eU = 16, 20, 28, 32, 36
OUTF = (" " + opt("outf", "").replace("+", " ")).rstrip()
def slot_addrs():
    o(f"""    v_ffbl_b32 v{eW}, v{eM}
    v_cmp_ne_u32 vcc, 0, v{eM}
    v_lshl_add_u32 v{eW}, v{eW}, 9, v14
    v_add_u32 v33, -1, v{eM}
    v_cndmask_b32 v15, v35, v{eW}, vcc
    v_and_b32 v{eM}, v{eM}, v33
    v_ffbl_b32 v{eW}, v{eM}
    v_cmp_ne_u32 vcc, 0, v{eM}
    v_lshl_add_u32 v{eW}, v{eW}, 9, v14
    v_add_u32 v33, -1, v{eM}
    v_cndmask_b32 v34, v35, v{eW}, vcc
    v_and_b32 v{eM}, v{eM}, v33""")
o(f"""K_main_done:
    s_mov_b32 s{sT3}, 0
K_main_done2:
    s_setprio 0
    s_waitcnt vmcnt(0) lgkmcnt(0)
    s_cmp_ge_u32 s3, 10
    s_cbranch_scc1 K_e_wait
    v_lshrrev_b32 v{eN}, 4, v0
    v_and_b32 v{eC}, 15, v0
    v_lshlrev_b32 v{eAd}, 2, v{eN}
    ds_read_b32 v{eM}, v{eAd} offset:{LDS_MSK}
    v_mul_u32_u24 v13, 272, v{eN}
    v_lshl_add_u32 v13, v{eC}, 4, v13
    v_add_u32 v13, {LDS_U}, v13
    ds_read_b128 v[{eU}:{eU+3}], v13
    v_lshlrev_b32 v{eT0}, 16, v{vXe}
    v_and_b32 v{eT0+1}, 0xffff0000, v{vXe}
    v_lshlrev_b32 v{eT0+2}, 16, v{vXe+1}
    v_and_b32 v{eT0+3}, 0xffff0000, v{vXe+1}
    v_lshlrev_b32 v14, 4, v{eC}
    v_add_u32 v35, {LDS_ZS}, v14
    v_lshl_add_u32 v14, v{eN}, 9, v14
    v_add_u32 v14, {LDS_SL}, v14
    v_mov_b32 v13, v{eAd}
    v_add_u32 v{eAd}, s{sSB}, v{eN}
    v_lshlrev_b32 v{eAd}, 7, v{eAd}
    v_lshl_add_u32 v{eAd}, v{eC}, 3, v{eAd}
    s_waitcnt lgkmcnt(0)""")
slot_addrs()
o("K_e_wait:")
stamp(12)
stampc(15)
o(f"""    s_barrier
    s_cmp_ge_u32 s3, 10
    s_cbranch_scc1 K_exit
    s_cmp_eq_u32 s{sT3}, 0
    s_cbranch_scc1 K_e_fast
    ds_read_b32 v{eM}, v13 offset:{LDS_MSK}
    s_waitcnt lgkmcnt(0)""")
slot_addrs()
o(f"""K_e_fast:
    ds_read_b128 v[{eDen}:{eDen+3}], v15
    ds_read_b128 v[{eNum}:{eNum+3}], v15 offset:256
    ds_read_b128 v[40:43], v34
    ds_read_b128 v[44:47], v34 offset:256
    s_waitcnt lgkmcnt(0)
K_e_loop:
    v_pk_add_f32 v[{eDen}:{eDen+1}], v[{eDen}:{eDen+1}], v[40:41]
    v_pk_add_f32 v[{eDen+2}:{eDen+3}], v[{eDen+2}:{eDen+3}], v[42:43]
    v_pk_add_f32 v[{eNum}:{eNum+1}], v[{eNum}:{eNum+1}], v[44:45]
    v_pk_add_f32 v[{eNum+2}:{eNum+3}], v[{eNum+2}:{eNum+3}], v[46:47]
    v_cmp_ne_u32 vcc, 0, v{eM}
    s_cbranch_vccz K_e_end
    v_ffbl_b32 v{eW}, v{eM}
    v_lshl_add_u32 v{eW}, v{eW}, 9, v14
    v_add_u32 v33, -1, v{eM}
    v_cndmask_b32 v34, v35, v{eW}, vcc
    v_and_b32 v{eM}, v{eM}, v33
    ds_read_b128 v[40:43], v34
    ds_read_b128 v[44:47], v34 offset:256
    s_waitcnt lgkmcnt(0)
    s_branch K_e_loop
K_e_end:""")
for i in range(4): o(f"    v_add_f32 v{eDen+i}, 0x358637bd, v{eDen+i}")
for i in range(4): o(f"    v_rcp_f32 v{eDen+i}, v{eDen+i}")
o(f"    v_cmp_gt_u32 vcc, s{sNB}, v{eN}")
for i in range(4): o(f"    v_fma_f32 v{eU+i}, v{eNum+i}, v{eDen+i}, v{eU+i}")
for i in range(4): o(f"    v_max_f32 v{eU+i}, 0, v{eU+i}")
for i in range(4): o(f"    v_add_f32 v{eU+i}, v{eU+i}, v{eT0+i}")
o(f"""    v_cvt_pk_bf16_f32 v{eT1}, v{eU}, v{eU+1}
    v_cvt_pk_bf16_f32 v{eT1+1}, v{eU+2}, v{eU+3}
    s_and_saveexec_b64 s[{sSAVE}:{sSAVE+1}], vcc
    s_cbranch_execz K_exit
    buffer_store_dwordx2 v[{eT1}:{eT1+1}], v{eAd}, s[{rOUT}:{rOUT+3}], 0 offen{OUTF}
K_exit:""")
if STAMP:
    o("    s_mov_b64 exec, -1\n    s_waitcnt vmcnt(0)")
    stamp(13)
    stamp_flush()
o("K_done:\n    s_endpgm")
o(f""".section .rodata,"a"
.p2align 6
.amdhsa_kernel {NAME}
  .amdhsa_next_free_vgpr 128
  .amdhsa_next_free_sgpr 102
  .amdhsa_accum_offset 128
  .amdhsa_group_segment_fixed_size 0
  .amdhsa_kernarg_size 96
  .amdhsa_user_sgpr_count 2
  .amdhsa_user_sgpr_kernarg_segment_ptr 1
  .amdhsa_system_sgpr_workgroup_id_x 1
  .amdhsa_dx10_clamp 0
.end_amdhsa_kernel""")
print("\n".join(L))
```
